```python
import torch

def _softmax(x, axis=-1):
    return torch.softmax(x, dim=axis)
def _gelu(x):
    return torch.nn.functional.gelu(x, approximate="tanh")
def _silu(x):
    return torch.nn.functional.silu(x)
def _sigmoid(x):
    return torch.sigmoid(x)
def _layernorm(x, axis=-1, eps=1e-5):
    m = x.mean(dim=axis, keepdim=True)
    v = x.var(dim=axis, keepdim=True, unbiased=False)
    return (x - m) / torch.sqrt(v + eps)
def _scatter_add(tgt, idx, src, axis=0):
    return tgt.clone().index_add_(axis, idx, src)
def _segment_sum(src, seg, n):
    out = torch.zeros((n,) + src.shape[1:], dtype=src.dtype)
    return out.index_add_(0, seg, src)
def _pad(x, pw):
    flat = tuple(v for pair in reversed(pw) for v in pair)
    return torch.nn.functional.pad(x, flat)

kernel_name = 'standalone__gqa_softmax__prompt'

def setup_inputs():

    _w = (lambda a: (lambda t: t.to(torch.bfloat16) if t.is_floating_point() else t)(torch.as_tensor(a)))
    B, Hq, Hkv, Sq, Sk, D = 1, 32, 4, 2048, 2048, 128
    return {
        "q": _w((lambda *s: torch.randn(*s, dtype=torch.bfloat16) * 0.8)(B, Hq, Sq, D)),
        "k": _w((lambda *s: torch.randn(*s, dtype=torch.bfloat16) * 0.8)(B, Hkv, Sk, D)),
        "v": _w((lambda *s: torch.randn(*s, dtype=torch.bfloat16) * 0.05)(B, Hkv, Sk, D)),
    }

def reference(q, k, v):
    B, Hq, Sq, D = q.shape
    Hkv = k.shape[1]
    rep = Hq // Hkv
    k = (lambda x, n, axis: torch.repeat_interleave(x, n, dim=axis))(k, rep, axis=1)
    v = (lambda x, n, axis: torch.repeat_interleave(x, n, dim=axis))(v, rep, axis=1)
    scale = D ** -0.5
    scores = torch.einsum("bhqd,bhkd->bhqk", q, k) * scale
    p = _softmax(scores, axis=-1)
    return torch.einsum("bhqk,bhkd->bhqd", p, v)
```

```python
import re

def regs(s):
    s = s.strip()
    m = re.fullmatch(r"([vas])\[(\d+):(\d+)\]", s)
    if m:
        return [f"{m.group(1)}{i}" for i in range(int(m.group(2)), int(m.group(3)) + 1)]
    m = re.fullmatch(r"-?\|?([vas])(\d+)\|?", s)
    if m:
        return [f"{m.group(1)}{m.group(2)}"]
    if s in ("vcc", "m0", "exec", "scc"):
        return [s]
    return []

def R(f, lo, n=1):
    return f"{f}{lo}" if n == 1 else f"{f}[{lo}:{lo+n-1}]"

TRANS = ("v_exp_f32", "v_rcp_f32", "v_log_f32", "v_rsq_f32", "v_sqrt_f32")

class I:
    __slots__ = ("text", "kind", "rd", "wr", "A", "B", "C", "D", "tag", "states")
    def __init__(self, text, kind, rd=(), wr=(), tag=None):
        self.text = text; self.kind = kind
        self.rd = set(rd); self.wr = set(wr)
        self.A = self.B = self.C = self.D = None
        self.tag = tag
        self.states = 1

def parse(text, tag=None):
    t = text.strip()
    mn, _, rest = t.partition(" ")
    ops = [o.strip() for o in re.split(r",\s*(?![^\[]*\])", rest)] if rest else []
    ops2 = []
    for o in ops:
        ops2.append(o.split(" ")[0])
    if mn.startswith("v_mfma"):
        i = I(t, "mfma", tag=tag)
        i.D, i.A, i.B, i.C = (regs(ops2[0]), regs(ops2[1]), regs(ops2[2]), regs(ops2[3]))
        i.rd = set(i.A + i.B + i.C); i.wr = set(i.D)
        return i
    if mn.startswith("ds_read"):
        return I(t, "dsr", regs(ops2[1]), regs(ops2[0]), tag)
    if mn.startswith("ds_write"):
        return I(t, "dsw", regs(ops2[0]) + regs(ops2[1]), [], tag)
    if mn.startswith("buffer_load"):
        if " lds" in t:
            return I(t, "dma", regs(ops2[0]) + regs(ops2[1]) + regs(ops2[2]) + ["m0"], [], tag)
        return I(t, "vld", regs(ops2[1]) + regs(ops2[2]) + regs(ops2[3]), regs(ops2[0]), tag)
    if mn.startswith("buffer_store"):
        return I(t, "vst", regs(ops2[0]) + regs(ops2[1]) + regs(ops2[2]) + regs(ops2[3]), [], tag)
    if mn == "s_nop":
        i = I(t, "nop", tag=tag); i.states = int(ops2[0]) + 1; return i
    if mn in ("s_waitcnt", "s_barrier", "s_setprio", "s_endpgm", "s_branch") or mn.startswith("s_cbranch"):
        return I(t, "ctl", tag=tag)
    if mn.startswith("s_load") or mn.startswith("s_memtime") or mn.startswith("s_memrealtime"):
        return I(t, "smem", [r for o in ops2[1:] for r in regs(o)], regs(ops2[0]), tag)
    if mn.startswith("s_cmp"):
        return I(t, "salu", [r for o in ops2 for r in regs(o)], ["scc"], tag)
    if mn.startswith("s_"):
        return I(t, "salu", [r for o in ops2[1:] for r in regs(o)], regs(ops2[0]), tag)
    if mn.startswith("v_"):
        base = re.sub(r"_(e32|e64|dpp|sdwa)$", "", mn)
        kind = "trans" if base in TRANS else "valu"
        wr = regs(ops2[0]); rd = [r for o in ops2[1:] for r in regs(o)]
        if base.startswith("v_permlane") and "swap" in base:
            wr = regs(ops2[0]) + regs(ops2[1]); rd = list(wr)
        if base in ("v_fmac_f32", "v_writelane_b32"):
            rd += wr
        if base.startswith("v_cndmask") and len(ops2) == 3:
            rd.append("vcc")
        i = I(t, kind, rd, wr, tag)
        return i
    if t.endswith(":") or t.startswith("."):
        i = I(t, "label", tag=tag); i.states = 0; return i
    raise ValueError("cannot parse: " + t)

def is_valu(i): return i.kind in ("valu", "trans")

def need_states(p, c):
    n = 0
    vw = {r for r in p.wr if r[0] in "va" and r != "vcc"}
    if p.kind == "mfma":
        passes = 4 if "16x16x32" in p.text else 8
        big = {4: 8, 8: 12}[passes]
        D = set(p.D)
        if is_valu(c) and (D & (c.rd | c.wr)): n = max(n, big)
        if c.kind in ("dsw", "vst", "dma", "vld", "dsr") and (D & c.rd): n = max(n, big)
        if c.kind in ("dsr", "vld") and (D & c.wr): n = max(n, big)
        if c.kind == "mfma":
            if D & set(c.A + c.B): n = max(n, big)
            if D & set(c.C) and c.C != p.D: n = max(n, {4: 6, 8: 10}[passes])
        if is_valu(c) and (set(p.C) & c.wr): n = max(n, {4: 3, 8: 7}[passes])
    if is_valu(p):
        if c.kind == "mfma" and (vw & c.rd): n = max(n, 2)
        if p.kind == "trans" and c.kind == "valu" and (vw & c.rd): n = max(n, 1)
        if is_valu(c):
            mn = c.text.split(" ")[0]
            if ("permlane" in mn or "_dpp" in mn or "row_" in c.text or "quad_perm" in c.text) and (vw & c.rd): n = max(n, 2)
            if mn.startswith("v_readfirstlane") or mn.startswith("v_readlane"):
                if vw & c.rd: n = max(n, 1)
            if "sdwa" in p.text and (vw & c.rd): n = max(n, 1)
        sw = {r for r in p.wr if r[0] == "s" or r == "vcc"}
        if sw:
            if c.kind in ("dma", "vld", "vst") and (sw & c.rd): n = max(n, 5)
            if is_valu(c) and (sw & c.rd): n = max(n, 2)
            if c.kind == "salu" and (sw & c.rd): n = max(n, 2)
            if c.kind == "ctl" and "vcc" in sw and "vcc" in c.text: n = max(n, 5)
        if "exec" in p.wr and c.kind == "mfma": n = max(n, 4)
    if p.kind == "salu" and "m0" in p.wr and c.kind == "dma": n = max(n, 1)
    if p.kind == "vst" and "x4" in p.text and (is_valu(c) or c.kind in ("dsr", "vld")):
        data = set(regs(p.text.split(" ")[1].rstrip(",")))
        if data & c.wr: n = max(n, 2)
    if p.kind == "dsw" and ("b128" in p.text or "b64" in p.text) and is_valu(c):
        if p.rd & c.wr: n = max(n, 2)
    return n

class Stream:
    WINDOW = 24
    def __init__(self):
        self.ins = []
        self.lgkm = []
        self.vm = []
        self.nops_inserted = []
        self.strict = False
    def _hazard(self, c):
        need = 0; dist = 0
        for p in reversed(self.ins[-self.WINDOW:]):
            n = need_states(p, c)
            if n - dist > need: need = n - dist
            dist += p.states
            if dist >= 16: break
        return need
    def add(self, x, tag=None):
        i = parse(x, tag) if isinstance(x, str) else x
        if i.kind != "label":
            need = self._hazard(i)
            if need > 0:
                self.nops_inserted.append((len(self.ins), need, i.text))
                self.ins.append(parse(f"s_nop {need-1}", "autonop"))
            touched = i.rd | i.wr
            for o in self.lgkm:
                if o.kind in ("dsr", "smem") and (o.wr & touched):
                    raise RuntimeError(f"missing lgkm wait: {o.text}  ->  {i.text}")
            for o in self.vm:
                if o.kind == "vld" and (o.wr & touched):
                    raise RuntimeError(f"missing vm wait: {o.text}  ->  {i.text}")
        if i.kind in ("dsr", "dsw", "smem"): self.lgkm.append(i)
        if i.kind in ("dma", "vld", "vst"): self.vm.append(i)
        if i.text.startswith("s_waitcnt"):
            m = re.search(r"lgkmcnt\((\d+)\)", i.text)
            if m:
                n = int(m.group(1))
                if any(o.kind == "smem" for o in self.lgkm): assert n == 0, "smem outstanding needs lgkmcnt(0)"
                self.lgkm = self.lgkm[max(0, len(self.lgkm) - n):] if n else []
            m = re.search(r"vmcnt\((\d+)\)", i.text)
            if m:
                n = int(m.group(1))
                self.vm = self.vm[max(0, len(self.vm) - n):] if n else []
        self.ins.append(i)
        return i
    def lgkm_needed(self, regset):
        last = -1
        for k, o in enumerate(self.lgkm):
            if o.wr & regset: last = k
        if last < 0: return None
        return min(15, len(self.lgkm) - 1 - last)
    def vm_needed(self, pred):
        last = -1
        for k, o in enumerate(self.vm):
            if pred(o): last = k
        if last < 0: return None
        return min(63, len(self.vm) - 1 - last)
    def wait_regs(self, *names):
        rs = set()
        for n in names: rs |= set(regs(n))
        n = self.lgkm_needed(rs)
        if n is not None: self.add(f"s_waitcnt lgkmcnt({n})")
        n = self.vm_needed(lambda o: o.kind == "vld" and (o.wr & rs))
        if n is not None: self.add(f"s_waitcnt vmcnt({n})")
    def text(self, lo=0, hi=None):
        out = []
        for i in self.ins[lo:hi]:
            out.append(i.text if i.kind == "label" else "  " + i.text)
        return "\n".join(out)
```

```python
import sys, argparse, math, struct
from asmlib import *

KNAME = "standalone__gqa_softmax__prompt_kernel"
NT = 32
MF = "v_mfma_f32_16x16x32_bf16"

S0, P0, NEGM, LS, KA, VA, DK, DV, OA, Q0 = 16, 80, 144, 160, 168, 172, 180, 181, 182, 192
O0, VF, KF, L0, ONES = 0, 128, 192, 224, 240
def Sb(kb, qb): return S0 + (kb * 4 + qb) * 4
def Pf(buf, qb, sl): return P0 + buf * 32 + (qb * 2 + sl) * 4
def Qf(qb, s): return Q0 + (qb * 4 + s) * 4
def Ob(db, qb): return O0 + (db * 4 + qb) * 4
def Vf(db, sl): return VF + (db * 2 + sl) * 4
def Kf(buf, s): return KF + (buf * 4 + s) * 4
SQ, SK, SV, SO = 12, 16, 20, 24
SW, SOFFK, SOFFV, SCNT = 28, 29, 30, 31
SM0K, SM0V = 36, 40
SQB = 44
STMP = 48
VBASE = 65536

def f32bits(x): return struct.unpack("<I", struct.pack("<f", x))[0]

class Cfg: pass

def build_template(cfg):
    ones = cfg.ones
    n1 = 2 * len(ones)
    G = 128 + n1
    pv0 = 64 + n1
    M = []
    for kb in range(4):
        for qb in range(4):
            order = range(4) if (qb % 2 == 0 or not cfg.bous) else range(3, -1, -1)
            for n, s in enumerate(order):
                M.append(("QK", kb, qb, s, n == 0))
    for qb in ones:
        for sl in range(2):
            M.append(("ONE", qb, sl))
    for db in range(8):
        for qb in range(4):
            order = (0, 1) if (qb % 2 == 0 or not cfg.bous) else (1, 0)
            for sl in order:
                M.append(("PV", db, qb, sl))
    assert len(M) == G
    typ = []
    for g in range(G):
        if g < 112: typ.append("E" if g % 2 == 0 else "D")
        elif g < 112 + n1: typ.append("D")
        else: typ.append("E" if (g - 112 - n1) % 2 == 0 else "D")
    Eg = [g for g in range(G) if typ[g] == "E"]
    assert len(Eg) == 64
    mem = [None] * G
    for kb in range(4):
        base = 16 * (kb - 1)
        order = range(4)
        for n, s in enumerate(order):
            g = base + 1 + 2 * n
            toff = 1
            if g < 0: g += G; toff = 2
            assert typ[g] == "D" and mem[g] is None
            mem[g] = ("KR", toff, kb, s)
    gpos = cfg.gpos
    for n, g in enumerate(gpos):
        assert typ[g] == "D" and mem[g] is None, g
        mem[g] = ("DMAV", 2, n) if n < 4 else ("DMAK", 4, n - 4)
    gbar = G - 18
    free = [g for g in range(cfg.vstart, G - 19) if typ[g] == "D" and mem[g] is None]
    vreads = [(db, sl, u) for db in range(8) for sl in range(2) for u in range(2)]
    assert len(free) >= 32, len(free)
    for n, v in enumerate(vreads):
        g = free[(n * len(free)) // 32]
        assert g <= pv0 + 8 * v[0] - 6, (g, v)
        mem[g] = ("VR", 0) + v
    cap = [0] * G
    for g in range(G):
        if typ[g] == "D": cap[g] = 1 if mem[g] else 2
    reserve = [gbar, cfg.gbranch]
    need = 32 + 16 * (4 - len(ones))
    for g in reserve:
        if typ[g] == "D" and sum(cap) - cap[g] >= need: cap[g] = 0
    short = need - sum(cap)
    if short > 0:
        cand = [g for g in range(G) if typ[g] == "E"]
        for n in range(short):
            cap[cand[(n * len(cand)) // short]] += 1
    val = [[] for _ in range(G)]
    e0 = next(k for k, g in enumerate(Eg) if g >= cfg.lag)
    plain = []
    for k in range(64):
        idx = e0 + k
        g = Eg[idx % 64]; X = g + G * (idx // 64)
        b, r = k // 4, k % 4
        kb, qb = b // 4, b % 4
        val[g].append(("EXP", 1 - idx // 64, kb, qb, r))
        if qb not in ones: plain.append((X + 1, ("ADD", kb, qb, r)))
        if r % 2 == 1: plain.append((X + 1, ("CVT", kb, qb, r // 2)))
    used = [0] * G
    last = 0
    for ready, op in plain:
        X = max(ready, last)
        while used[X % G] >= cap[X % G]: X += 1
        used[X % G] += 1
        last = X
        kb, qb = op[1], op[2]
        assert X < G + 4 * (kb * 4 + qb), ("S overwritten", op, X)
        assert X < G + 60, ("P late", op, X)
        val[X % G].append((op[0], 1 - X // G) + op[1:])
    sca = [None] * G
    for kb in range(4): sca[(16 * kb - 1) % G] = ("WAITL",)
    for db in range(8): sca[pv0 + 8 * db - 1] = ("WAITL",)
    def put(g, item, step=-1):
        while sca[g % G] is not None: g += step
        sca[g % G] = item
        return g
    assert sca[gbar] is None and sca[gbar - 1] is None
    sca[gbar - 1] = ("WAITV",); sca[gbar] = ("BAR",)
    assert sca[cfg.gbranch] is None
    sca[cfg.gbranch] = ("BRANCH",)
    g1 = put(cfg.gbranch - 1, ("CMP",))
    put(g1 - 1, ("CNT",))
    a = put(gpos[0] - 1, ("M0V", 2)); assert a >= 0
    a = put(gpos[4] - 1, ("M0K", 4)); assert a >= gpos[3]
    put(gpos[3] + 1, ("INCV",), +1)
    put(gpos[7] + 1, ("INCK",), +1)
    for g in range(g1 + 1, cfg.gbranch):
        assert sca[g % G] is None or sca[g % G][0] in ("WAITL", "WAITV", "BAR", "M0V", "M0K")
    T = Cfg()
    T.G, T.pv0, T.M, T.mem, T.val, T.sca, T.typ = G, pv0, M, mem, val, sca, typ
    return T

def mfma_text(cfg, m, t):
    if m[0] == "QK":
        _, kb, qb, s, first = m
        d = R("v", Sb(kb, qb), 4)
        c = R("v", NEGM + 4 * qb, 4) if first else d
        return f"{MF} {d}, {R('a', Kf(kb % 2, s), 4)}, {R('v', Qf(qb, s), 4)}, {c}"
    if m[0] == "ONE":
        _, qb, sl = m
        d = R("a", L0 + 4 * qb, 4)
        a, b = R("a", ONES, 4), R("v", Pf(t % 2, qb, sl), 4)
        if cfg.ap: a, b = b, a
        return f"{MF} {d}, {a}, {b}, {d}"
    _, db, qb, sl = m
    d = R("a", Ob(db, qb), 4)
    a, b = R("a", Vf(db, sl), 4), R("v", Pf(t % 2, qb, sl), 4)
    if cfg.ap: a, b = b, a
    return f"{MF} {d}, {a}, {b}, {d}"

def emit_iter(st, cfg, T, t, forced, record, marks):
    G = T.G
    def exists_m(tt, m): return (0 <= tt + 1 < NT) if m[0] == "QK" else (0 <= tt < NT)
    for g in range(G):
        m = T.M[g]
        if exists_m(t, m): st.add(mfma_text(cfg, m, t))
        sc = T.sca[g]
        if sc:
            k = sc[0]
            if k == "WAITL":
                tt, gg = (t, g + 1) if g + 1 < G else (t + 1, 0)
                rs = set()
                n = 16 if T.M[gg][0] == "QK" else 8
                for x in range(gg, gg + n):
                    if exists_m(tt, T.M[x]): rs |= parse(mfma_text(cfg, T.M[x], tt)).rd
                n = st.lgkm_needed(rs)
                record[(t, g)] = n
                if (t, g) in forced: n = forced[(t, g)]
                if n is not None: st.add(f"s_waitcnt lgkmcnt({n})")
            elif k == "WAITV":
                p = t + 2
                if p < NT + 1:
                    n = st.vm_needed(lambda o: o.tag in (("K", p), ("V", p - 1)))
                    record[(t, g)] = n
                    if (t, g) in forced: n = forced[(t, g)]
                    if n is not None: st.add(f"s_waitcnt vmcnt({n})")
            elif k == "BAR":
                if t + 2 < NT + 1: st.add("s_barrier")
            elif k == "M0V":
                if t + 2 < NT: st.add(f"s_mov_b32 m0, s{SM0V + (t + 2) % 4}")
            elif k == "M0K":
                if t + 4 < NT: st.add(f"s_mov_b32 m0, s{SM0K + (t + 4) % 4}")
            elif k == "INCV":
                if t + 2 < NT: st.add(f"s_add_u32 s{SOFFV}, s{SOFFV}, 0x4000")
            elif k == "INCK":
                if t + 4 < NT: st.add(f"s_add_u32 s{SOFFK}, s{SOFFK}, 0x4000")
            elif k == "CNT":
                if cfg.loop0 < t <= cfg.loop1 and (t - cfg.loop0) % 4 == 0: st.add(f"s_sub_u32 s{SCNT}, s{SCNT}, 1")
            elif k == "CMP":
                if cfg.loop0 < t <= cfg.loop1 and (t - cfg.loop0) % 4 == 0: st.add(f"s_cmp_lg_u32 s{SCNT}, 0")
            elif k == "BRANCH":
                if cfg.loop0 <= t <= cfg.loop1 and (t - cfg.loop0) % 4 == 0:
                    if t > cfg.loop0: st.add("s_cbranch_scc1 L_loop")
                    marks[t] = len(st.ins)
        me = T.mem[g]
        if me:
            k, tt = me[0], t + me[1]
            if 0 <= tt < NT:
                slot = tt % 4
                if k == "KR":
                    _, _, kb, s = me
                    st.add(f"ds_read_b128 {R('a', Kf(kb % 2, s), 4)}, v{KA + s} offset:{slot * 16384 + kb * 1024}")
                elif k == "VR":
                    _, _, db, sl, u = me
                    st.add(f"ds_read_b64_tr_b16 {R('a', Vf(db, sl) + 2 * u, 2)}, v{VA + db} offset:{slot * 16384 + (8 * sl + 4 * u) * 256}")
                elif k == "DMAK":
                    st.add(f"buffer_load_dwordx4 v{DK}, s[{SK}:{SK+3}], s{SOFFK} offen offset:{1024 * me[2]} lds", tag=("K", tt))
                elif k == "DMAV":
                    st.add(f"buffer_load_dwordx4 v{DV}, s[{SV}:{SV+3}], s{SOFFV} offen offset:{1024 * me[2]} lds", tag=("V", tt))
        for v in T.val[g]:
            k, tt = v[0], t + v[1]
            if not (0 <= tt < NT): continue
            kb, qb, r = v[2], v[3], v[4]
            x = Sb(kb, qb)
            if k == "EXP": st.add(f"v_exp_f32 v{x + r}, v{x + r}")
            elif k == "ADD":
                a = LS + 2 * qb + (r % 2)
                st.add(f"v_add_f32 v{a}, v{a}, v{x + r}")
            elif k == "CVT":
                d = Pf(tt % 2, qb, kb // 2) + (kb % 2) * 2 + r
                st.add(f"v_cvt_pk_bf16_f32 v{d}, v{x + 2 * r}, v{x + 2 * r + 1}")

def stamp(st, cfg, idx):
    if not cfg.stamps: return
    st.add("s_waitcnt lgkmcnt(0)")
    st.add(f"s_memtime s[60:61]")
    st.add(f"s_memrealtime s[62:63]")
    st.add("s_waitcnt lgkmcnt(0)")
    st.add(f"s_mov_b32 s{64 + 2 * idx}, s60")
    st.add(f"s_mov_b32 s{65 + 2 * idx}, s62")

def prologue(st, cfg):
    A = st.add
    A("s_cmp_ge_u32 s2, 0x100")
    A("s_cbranch_scc1 L_end")
    stamp(st, cfg, 0)
    A("s_load_dwordx8 s[4:11], s[0:1], 0")
    if cfg.stamps: A("s_load_dwordx2 s[56:57], s[0:1], 40")
    A("v_lshrrev_b32 v1, 6, v0")
    A("v_and_b32 v2, 63, v0")
    A(f"v_readfirstlane_b32 s{SW}, v1")
    A("v_and_b32 v3, 15, v2")
    A("v_lshrrev_b32 v4, 4, v2")
    A("s_bfe_u32 s50, s2, 0x20001")
    A("s_and_b32 s51, s2, 1")
    A("s_lshl_b32 s51, s51, 5")
    A("s_lshr_b32 s52, s2, 3")
    A("s_or_b32 s51, s51, s52")
    A("s_lshl_b32 s52, s50, 6")
    A("s_add_u32 s51, s51, s52")
    A("s_lshl_b32 s51, s51, 16")
    A("s_lshl_b32 s50, s50, 19")
    for i in range(4):
        A(f"s_mov_b32 s{SQB + i}, {4096 * i}")
    A(f"s_lshl_b32 s52, s{SW}, 12")
    for i in range(4):
        A(f"s_add_u32 s{SM0K + i}, s52, {16384 * i}")
        A(f"s_add_u32 s{SM0V + i}, s52, {VBASE + 16384 * i}")
    A(f"s_lshl_b32 s53, s{SW}, 2")
    A("v_add_u32 v5, s53, v4")
    A("v_xor_b32 v5, v5, v3")
    A("v_lshlrev_b32 v5, 4, v5")
    A("v_lshl_add_u32 v6, v4, 8, s52")
    A(f"v_add_u32 v{DK}, v5, v6")
    A(f"s_and_b32 s53, s{SW}, 1")
    A("s_lshl_b32 s53, s53, 2")
    A("v_add_u32 v5, s53, v4")
    A("v_lshlrev_b32 v5, 1, v5")
    A("v_xor_b32 v5, v5, v3")
    A("v_lshlrev_b32 v5, 4, v5")
    A(f"v_add_u32 v{DV}, v5, v6")
    for j in range(4):
        A(f"v_add_u32 v5, {4 * j}, v4")
        A("v_xor_b32 v5, v5, v3")
        A("v_lshlrev_b32 v5, 4, v5")
        A(f"v_lshl_add_u32 v{8 + j}, v4, 8, v5")
    A(f"s_lshl_b32 s54, s{SW}, 14")
    A(f"s_add_u32 s55, s54, {VBASE}")
    A(f"s_cmp_eq_u32 s{SW}, 0")
    A("s_cselect_b32 s55, 0xc000, s55")
    A("s_waitcnt lgkmcnt(0)")
    for (srd, p, off, n) in ((SQ, 4, 51, 65536), (SK, 6, 50, 524288), (SV, 8, 50, 524288), (SO, 10, 51, 65536)):
        A(f"s_add_u32 s{srd}, s{p}, s{off}")
        A(f"s_addc_u32 s{srd + 1}, s{p + 1}, 0")
        A(f"s_mov_b32 s{srd + 2}, {n}")
        A(f"s_mov_b32 s{srd + 3}, 0x20000")
    A(f"s_mov_b32 s{SOFFK}, 0")
    A(f"s_mov_b32 s{SOFFV}, 0")
    def dmak(t):
        A(f"s_mov_b32 m0, s{SM0K + t % 4}")
        for j in range(4):
            A(f"buffer_load_dwordx4 v{DK}, s[{SK}:{SK+3}], s{SOFFK} offen offset:{1024 * j} lds", tag=("K", t))
        A(f"s_add_u32 s{SOFFK}, s{SOFFK}, 0x4000")
    def dmav(t):
        A(f"s_mov_b32 m0, s{SM0V + t % 4}")
        for j in range(4):
            A(f"buffer_load_dwordx4 v{DV}, s[{SV}:{SV+3}], s{SOFFV} offen offset:{1024 * j} lds", tag=("V", t))
        A(f"s_add_u32 s{SOFFV}, s{SOFFV}, 0x4000")
    dmak(0)
    for qb in range(4):
        A(f"s_add_u32 m0, s55, {4096 * qb}")
        A(f"s_add_u32 s53, s54, {4096 * qb}")
        for j in range(4):
            A(f"buffer_load_dwordx4 v{8 + j}, s[{SQ}:{SQ+3}], s53 offen offset:{1024 * j} lds", tag=("Q", qb))
    dmak(1); dmav(0); dmak(2)
    A("v_lshrrev_b32 v5, 2, v3")
    A("v_lshlrev_b32 v5, 12, v5")
    A("v_and_b32 v6, 3, v3")
    A("v_lshl_add_u32 v5, v6, 8, v5")
    A("v_lshlrev_b32 v7, 8, v3")
    A("v_add_u32 v7, s55, v7")
    for s in range(4):
        A(f"v_add_u32 v6, {4 * s}, v4")
        A("v_xor_b32 v6, v6, v3")
        A(f"v_lshl_add_u32 v{KA + s}, v6, 4, v5")
        A(f"v_lshl_add_u32 v{12 + s}, v6, 4, v7")
    A("v_lshrrev_b32 v5, 2, v3")
    A("v_and_b32 v6, 1, v4")
    A("v_lshl_add_u32 v6, v6, 2, v5")
    A("v_lshl_add_u32 v5, v4, 4, v5")
    A("v_lshlrev_b32 v5, 8, v5")
    A("v_and_b32 v7, 3, v3")
    A("v_lshl_add_u32 v5, v7, 3, v5")
    A(f"v_add_u32 v5, {VBASE}, v5")
    for db in range(8):
        A(f"v_xor_b32 v7, {db}, v6")
        A(f"v_lshl_add_u32 v{VA + db}, v7, 5, v5")
    A("v_and_b32 v5, 1, v4")
    A("v_lshlrev_b32 v5, 5, v5")
    A("v_lshrrev_b32 v6, 1, v4")
    A("v_lshl_add_u32 v5, v6, 4, v5")
    A("v_lshl_add_u32 v5, v3, 8, v5")
    A(f"v_add_u32 v{OA}, s54, v5")
    for i in range(128): A(f"v_accvgpr_write_b32 a{O0 + i}, 0")
    for i in range(16): A(f"v_accvgpr_write_b32 a{L0 + i}, 0")
    A("v_mov_b32 v5, 0x3f803f80")
    for i in range(4): A(f"v_accvgpr_write_b32 a{ONES + i}, v5")
    for i in range(8): A(f"v_mov_b32 v{LS + i}, 0")
    c = math.log2(math.e) / math.sqrt(128.0)
    A(f"s_mov_b32 s58, {f32bits(c):#x}")
    A(f"s_mov_b32 s59, s58")
    A(f"s_mov_b32 s{SCNT}, {(cfg.loop1 - cfg.loop0) // 4}")
    stamp(st, cfg, 1)
    for qb in range(4):
        n = st.vm_needed(lambda o: o.tag == ("Q", qb))
        A(f"s_waitcnt vmcnt({n})")
        for s in range(4):
            A(f"ds_read_b128 {R('v', Qf(qb, s), 4)}, v{12 + s} offset:{4096 * qb}")
        for s in range(4):
            st.wait_regs(R('v', Qf(qb, s), 4))
            for i in range(4):
                x = Qf(qb, s) + i
                tmp = 184 + 2 * i
                A(f"v_lshlrev_b32 v{tmp}, 16, v{x}")
                A(f"v_and_b32 v{tmp + 1}, 0xffff0000, v{x}")
            for i in range(4):
                tmp = 184 + 2 * i
                A(f"v_pk_mul_f32 v[{tmp}:{tmp+1}], v[{tmp}:{tmp+1}], s[58:59]")
            for i in range(4):
                tmp = 184 + 2 * i
                A(f"v_cvt_pk_bf16_f32 v{Qf(qb, s) + i}, v{tmp}, v{tmp + 1}")
    A("s_barrier")
    stamp(st, cfg, 2)
    for s in range(4):
        A(f"ds_read_b128 {R('a', Kf(0, s), 4)}, v{KA + s} offset:0")
    A("s_waitcnt lgkmcnt(0)")
    for qb in range(4):
        for s in range(4):
            d = R("v", Sb(0, qb), 4)
            A(f"{MF} {d}, {R('a', Kf(0, s), 4)}, {R('v', Qf(qb, s), 4)}, {'0' if s == 0 else d}")
    for qb in range(4):
        x = Sb(0, qb)
        A(f"v_max3_f32 v{x}, v{x}, v{x+1}, v{x+2}")
        A(f"v_max_f32 v{x}, v{x}, v{x+3}")
        A(f"v_mov_b32 v{x+1}, v{x}")
    for sw in ("v_permlane16_swap_b32", "v_permlane32_swap_b32"):
        for qb in range(4):
            x = Sb(0, qb)
            A(f"{sw} v{x}, v{x+1}")
        for qb in range(4):
            x = Sb(0, qb)
            A(f"v_max_f32 v{x}, v{x}, v{x+1}")
            A(f"v_mov_b32 v{x+1}, v{x}")
    for qb in range(4):
        x = Sb(0, qb)
        for i in range(4):
            A(f"v_sub_f32 v{NEGM + 4 * qb + i}, 0, v{x}")
    stamp(st, cfg, 3)

def epilogue(st, cfg):
    A = st.add
    stamp(st, cfg, 4)
    for qb in range(4):
        if qb in cfg.ones:
            A(f"v_accvgpr_read_b32 v{1 + qb}, a{L0 + 4 * qb}")
        else:
            A(f"v_add_f32 v{1 + qb}, v{LS + 2 * qb}, v{LS + 2 * qb + 1}")
            A(f"v_mov_b32 v{5 + qb}, v{1 + qb}")
    for sw in ("v_permlane16_swap_b32", "v_permlane32_swap_b32"):
        for qb in range(4):
            if qb in cfg.ones: continue
            A(f"{sw} v{1 + qb}, v{5 + qb}")
            A(f"v_add_f32 v{1 + qb}, v{1 + qb}, v{5 + qb}")
            A(f"v_mov_b32 v{5 + qb}, v{1 + qb}")
    for qb in range(4):
        A(f"v_rcp_f32 v{1 + qb}, v{1 + qb}")
    n = 0
    for qb in range(4):
        for j in range(4):
            tb = S0 + (n % 4) * 12
            n += 1
            for h in range(2):
                for i in range(4):
                    A(f"v_accvgpr_read_b32 v{tb + 4 * h + i}, a{Ob(2 * j + h, qb) + i}")
            for i in range(8):
                A(f"v_mul_f32 v{tb + i}, v{tb + i}, v{1 + qb}")
            for i in range(4):
                A(f"v_cvt_pk_bf16_f32 v{tb + 8 + i}, v{tb + 2 * i}, v{tb + 2 * i + 1}")
            A(f"v_permlane16_swap_b32 v{tb + 8}, v{tb + 10}")
            A(f"v_permlane16_swap_b32 v{tb + 9}, v{tb + 11}")
            A(f"buffer_store_dwordx4 v[{tb + 8}:{tb + 11}], v{OA}, s[{SO}:{SO+3}], s{SQB + qb} offen offset:{64 * j}")
    if cfg.stamps:
        stamp(st, cfg, 5)
        A("s_waitcnt vmcnt(0)")
        stamp(st, cfg, 6)
        A("s_mov_b32 s8, s56"); A("s_mov_b32 s9, s57"); A("s_mov_b32 s10, 0x100000"); A("s_mov_b32 s11, 0x20000")
        A("s_lshl_b32 s3, s2, 2"); A(f"s_add_u32 s3, s3, s{SW}"); A("s_lshl_b32 s3, s3, 6")
        A("v_mov_b32 v1, s3")
        for k in range(4):
            for i in range(4): A(f"v_mov_b32 v{4 + i}, s{64 + 4 * k + i}")
            A(f"buffer_store_dwordx4 v[4:7], v1, s[8:11], 0 offen offset:{16 * k}")
            A("s_nop 1")
    A("L_end:")
    A("s_endpgm")

def flat(cfg, T, forced):
    st = Stream(); rec = {}; marks = {}
    prologue(st, cfg)
    p_end = len(st.ins)
    for t in range(-1, NT):
        emit_iter(st, cfg, T, t, forced, rec, marks)
    m_end = len(st.ins)
    epilogue(st, cfg)
    return st, rec, marks, p_end, m_end

def generate(cfg):
    T = build_template(cfg)
    st, rec, marks, _, _ = flat(cfg, T, {})
    forced = {}
    def inloop(t, g): return (cfg.loop0, cfg.gbranch) < (t, g) <= (cfg.loop1, cfg.gbranch)
    cls = {}
    for (t, g), n in rec.items():
        if inloop(t, g): cls.setdefault((t % 4, g), []).append(n)
    for (t, g), n in rec.items():
        if inloop(t, g):
            v = [x for x in cls[(t % 4, g)] if x is not None]
            forced[(t, g)] = min(v) if v else None
    st, rec, marks, p_end, m_end = flat(cfg, T, forced)
    ts = sorted(marks)
    body = st.text(marks[ts[0]], marks[ts[1]])
    for a, b in zip(ts[1:-1], ts[2:]):
        assert st.text(marks[a], marks[b]) == body, "loop not periodic"
    nl = [x for x in st.nops_inserted if marks[ts[0]] <= x[0] < marks[ts[1]]]
    sys.stderr.write(f"G={T.G} loop body instrs={marks[ts[1]]-marks[ts[0]]} nops in loop: {nl}\n")
    sys.stderr.write(f"nops elsewhere: {len(st.nops_inserted) - len(nl)*(len(ts)-1)}\n")
    out = []
    out.append(open("standalone__gqa_softmax__prompt.s.ref").read().split("; Override")[0].rstrip()
               if cfg.header else "; test build")
    out.append(f"; @launch grid=(256,1,1) block=(256,1,1) lds={cfg.lds}")
    out.append('.amdgcn_target "amdgcn-amd-amdhsa--gfx950"\n.text')
    out.append(f".globl {KNAME}\n.p2align 8\n.type {KNAME},@function\n{KNAME}:")
    out.append(st.text(0, marks[ts[0]]))
    out.append("L_loop:")
    out.append(body)
    out.append(st.text(marks[ts[-1]]))
    out.append(f'''.section .rodata,"a"
.p2align 6
.amdhsa_kernel {KNAME}
  .amdhsa_next_free_vgpr 512
  .amdhsa_next_free_sgpr 102
  .amdhsa_accum_offset 256
  .amdhsa_group_segment_fixed_size 0
  .amdhsa_kernarg_size 48
  .amdhsa_user_sgpr_count 2
  .amdhsa_user_sgpr_kernarg_segment_ptr 1
  .amdhsa_system_sgpr_workgroup_id_x 1
.end_amdhsa_kernel''')
    return "\n".join(out) + "\n", T

if __name__ == "__main__":
    ap = argparse.ArgumentParser()
    ap.add_argument("-o", default="/dev/stdout")
    ap.add_argument("--ones", default="0,2")
    ap.add_argument("--ap", type=int, default=0)
    ap.add_argument("--bous", type=int, default=1)
    ap.add_argument("--lag", type=int, default=8)
    ap.add_argument("--stamps", type=int, default=0)
    ap.add_argument("--gpos", default="11,27,43,57,71,85,99,109")
    ap.add_argument("--vstart", type=int, default=9)
    ap.add_argument("--gbranch", type=int, default=107)
    ap.add_argument("--show", type=int, default=0)
    a = ap.parse_args()
    cfg = Cfg()
    cfg.ones = [int(x) for x in a.ones.split(",") if x != ""]
    cfg.ap, cfg.bous, cfg.lag, cfg.stamps = a.ap, a.bous, a.lag, a.stamps
    cfg.gpos = [int(x) for x in a.gpos.split(",")]
    cfg.vstart, cfg.gbranch = a.vstart, a.gbranch
    cfg.loop0, cfg.loop1 = 0, 24
    cfg.lds = 131072
    cfg.header = True
    txt, T = generate(cfg)
    open(a.o, "w").write(txt)
    if a.show:
        for g in range(T.G):
            sys.stderr.write(f"{g:3d} {T.typ[g]} {T.M[g]} | {T.sca[g]} | {T.mem[g]} | {T.val[g]}\n")
```

```python
import re

def regs(s):
    s = s.strip()
    m = re.fullmatch(r"([vas])\[(\d+):(\d+)\]", s)
    if m:
        return [f"{m.group(1)}{i}" for i in range(int(m.group(2)), int(m.group(3)) + 1)]
    m = re.fullmatch(r"-?\|?([vas])(\d+)\|?", s)
    if m:
        return [f"{m.group(1)}{m.group(2)}"]
    if s in ("vcc", "m0", "exec", "scc"):
        return [s]
    return []

def R(f, lo, n=1):
    return f"{f}{lo}" if n == 1 else f"{f}[{lo}:{lo+n-1}]"

TRANS = ("v_exp_f32", "v_rcp_f32", "v_log_f32", "v_rsq_f32", "v_sqrt_f32")

class I:
    __slots__ = ("text", "kind", "rd", "wr", "A", "B", "C", "D", "tag", "states")
    def __init__(self, text, kind, rd=(), wr=(), tag=None):
        self.text = text; self.kind = kind
        self.rd = set(rd); self.wr = set(wr)
        self.A = self.B = self.C = self.D = None
        self.tag = tag
        self.states = 1

def parse(text, tag=None):
    t = text.strip()
    mn, _, rest = t.partition(" ")
    ops = [o.strip() for o in re.split(r",\s*(?![^\[]*\])", rest)] if rest else []
    ops2 = []
    for o in ops:
        ops2.append(o.split(" ")[0])
    if mn.startswith("v_mfma"):
        i = I(t, "mfma", tag=tag)
        i.D, i.A, i.B, i.C = (regs(ops2[0]), regs(ops2[1]), regs(ops2[2]), regs(ops2[3]))
        i.rd = set(i.A + i.B + i.C); i.wr = set(i.D)
        return i
    if mn.startswith("ds_read"):
        return I(t, "dsr", regs(ops2[1]), regs(ops2[0]), tag)
    if mn.startswith("ds_write"):
        return I(t, "dsw", regs(ops2[0]) + regs(ops2[1]), [], tag)
    if mn.startswith("buffer_load"):
        if " lds" in t:
            return I(t, "dma", regs(ops2[0]) + regs(ops2[1]) + regs(ops2[2]) + ["m0"], [], tag)
        return I(t, "vld", regs(ops2[1]) + regs(ops2[2]) + regs(ops2[3]), regs(ops2[0]), tag)
    if mn.startswith("global_load"):
        return I(t, "vld", regs(ops2[1]), regs(ops2[0]), tag)
    if mn.startswith("buffer_store"):
        return I(t, "vst", regs(ops2[0]) + regs(ops2[1]) + regs(ops2[2]) + regs(ops2[3]), [], tag)
    if mn == "s_nop":
        i = I(t, "nop", tag=tag); i.states = int(ops2[0]) + 1; return i
    if mn in ("s_waitcnt", "s_barrier", "s_setprio", "s_endpgm", "s_branch") or mn.startswith("s_cbranch"):
        return I(t, "ctl", tag=tag)
    if mn.startswith("s_load") or mn.startswith("s_memtime") or mn.startswith("s_memrealtime"):
        return I(t, "smem", [r for o in ops2[1:] for r in regs(o)], regs(ops2[0]), tag)
    if mn.startswith("s_cmp"):
        return I(t, "salu", [r for o in ops2 for r in regs(o)], ["scc"], tag)
    if mn.startswith("s_") and not t.endswith(":"):
        rd = [r for o in ops2[1:] for r in regs(o)]
        if mn.startswith("s_addk"): rd += regs(ops2[0])
        return I(t, "salu", rd, regs(ops2[0]), tag)
    if mn.startswith("v_"):
        base = re.sub(r"_(e32|e64|dpp|sdwa)$", "", mn)
        kind = "trans" if base in TRANS else "valu"
        wr = regs(ops2[0]); rd = [r for o in ops2[1:] for r in regs(o)]
        if base.startswith("v_permlane") and "swap" in base:
            wr = regs(ops2[0]) + regs(ops2[1]); rd = list(wr)
        if base in ("v_add_co_u32", "v_addc_co_u32"):
            wr = wr + ["vcc"]
        if base in ("v_fmac_f32", "v_writelane_b32"):
            rd += wr
        if base.startswith("v_cndmask") and len(ops2) == 3:
            rd.append("vcc")
        i = I(t, kind, rd, wr, tag)
        return i
    if t.endswith(":") or t.startswith("."):
        i = I(t, "label", tag=tag); i.states = 0; return i
    raise ValueError("cannot parse: " + t)

def is_valu(i): return i.kind in ("valu", "trans")

def need_states(p, c):
    n = 0
    vw = {r for r in p.wr if r[0] in "va" and r != "vcc"}
    if p.kind == "mfma":
        passes = 4 if "16x16x32" in p.text else 8
        big = {4: 8, 8: 12}[passes]
        D = set(p.D)
        if is_valu(c) and (D & (c.rd | c.wr)): n = max(n, big)
        if c.kind in ("dsw", "vst", "dma", "vld", "dsr") and (D & c.rd): n = max(n, big)
        if c.kind in ("dsr", "vld") and (D & c.wr): n = max(n, big)
        if c.kind == "mfma":
            if D & set(c.A + c.B): n = max(n, big)
            if D & set(c.C) and c.C != p.D: n = max(n, {4: 6, 8: 10}[passes])
        if is_valu(c) and (set(p.C) & c.wr): n = max(n, {4: 3, 8: 7}[passes])
    if is_valu(p):
        if c.kind == "mfma" and (vw & c.rd): n = max(n, 2)
        if p.kind == "trans" and c.kind == "valu" and (vw & c.rd): n = max(n, 1)
        if is_valu(c):
            mn = c.text.split(" ")[0]
            if ("permlane" in mn or "_dpp" in mn or "row_" in c.text or "quad_perm" in c.text) and (vw & c.rd): n = max(n, 2)
            if mn.startswith("v_readfirstlane") or mn.startswith("v_readlane"):
                if vw & c.rd: n = max(n, 1)
            if "sdwa" in p.text and (vw & c.rd): n = max(n, 1)
        sw = {r for r in p.wr if r[0] == "s" or r == "vcc"}
        if sw:
            if c.kind in ("dma", "vld", "vst") and (sw & c.rd): n = max(n, 5)
            if is_valu(c) and (sw & c.rd): n = max(n, 2)
            if c.kind == "salu" and (sw & c.rd): n = max(n, 2)
            if c.kind == "ctl" and "vcc" in sw and "vcc" in c.text: n = max(n, 5)
        if "exec" in p.wr and c.kind == "mfma": n = max(n, 4)
    if p.kind == "salu" and "m0" in p.wr and c.kind == "dma": n = max(n, 1)
    if p.kind == "vst" and "x4" in p.text and (is_valu(c) or c.kind in ("dsr", "vld")):
        data = set(regs(p.text.split(" ")[1].rstrip(",")))
        if data & c.wr: n = max(n, 2)
    if p.kind == "dsw" and ("b128" in p.text or "b64" in p.text) and is_valu(c):
        if p.rd & c.wr: n = max(n, 2)
    return n

class Stream:
    WINDOW = 24
    def __init__(self):
        self.ins = []
        self.lgkm = []
        self.vm = []
        self.nops_inserted = []
        self.strict = False
    def _hazard(self, c):
        need = 0; dist = 0
        for p in reversed(self.ins[-self.WINDOW:]):
            n = need_states(p, c)
            if n - dist > need: need = n - dist
            dist += p.states
            if dist >= 16: break
        return need
    def add(self, x, tag=None):
        i = parse(x, tag) if isinstance(x, str) else x
        if i.kind != "label":
            need = self._hazard(i)
            if need > 0:
                self.nops_inserted.append((len(self.ins), need, i.text))
                self.ins.append(parse(f"s_nop {need-1}", "autonop"))
            touched = i.rd | i.wr
            for o in self.lgkm:
                if o.kind in ("dsr", "smem") and (o.wr & touched):
                    raise RuntimeError(f"missing lgkm wait: {o.text}  ->  {i.text}")
            for o in self.vm:
                if o.kind == "vld" and (o.wr & touched):
                    raise RuntimeError(f"missing vm wait: {o.text}  ->  {i.text}")
        if i.kind in ("dsr", "dsw", "smem"): self.lgkm.append(i)
        if i.kind in ("dma", "vld", "vst"): self.vm.append(i)
        if i.text.startswith("s_waitcnt"):
            m = re.search(r"lgkmcnt\((\d+)\)", i.text)
            if m:
                n = int(m.group(1))
                if any(o.kind == "smem" for o in self.lgkm): assert n == 0, "smem outstanding needs lgkmcnt(0)"
                self.lgkm = self.lgkm[max(0, len(self.lgkm) - n):] if n else []
            m = re.search(r"vmcnt\((\d+)\)", i.text)
            if m:
                n = int(m.group(1))
                self.vm = self.vm[max(0, len(self.vm) - n):] if n else []
        self.ins.append(i)
        return i
    def lgkm_needed(self, regset):
        last = -1
        for k, o in enumerate(self.lgkm):
            if o.wr & regset: last = k
        if last < 0: return None
        if any(o.kind == "smem" for o in self.lgkm): return 0
        return min(15, len(self.lgkm) - 1 - last)
    def vm_needed(self, pred):
        last = -1
        for k, o in enumerate(self.vm):
            if pred(o): last = k
        if last < 0: return None
        return min(63, len(self.vm) - 1 - last)
    def wait_regs(self, *names):
        rs = set()
        for n in names: rs |= set(regs(n))
        n = self.lgkm_needed(rs)
        if n is not None: self.add(f"s_waitcnt lgkmcnt({n})")
        n = self.vm_needed(lambda o: o.kind == "vld" and (o.wr & rs))
        if n is not None: self.add(f"s_waitcnt vmcnt({n})")
    def text(self, lo=0, hi=None):
        out = []
        for i in self.ins[lo:hi]:
            out.append(i.text if i.kind == "label" else "  " + i.text)
        return "\n".join(out)
```

```python
import sys, argparse, math, struct, re
from asmlib import *

KNAME = "standalone__gqa_softmax__prompt_kernel"
NT = 32
MF = "v_mfma_f32_16x16x32_bf16"

S0, P0, NEGM, LS, KA, VA, DK, DV, OW, OR_, OS, Q0 = 16, 80, 144, 160, 168, 172, 180, 181, 182, 183, 184, 192
O0, VF, KF, L0, ONES = 0, 128, 192, 224, 240
def Sb(kb, qb): return S0 + (kb * 4 + qb) * 4
def Pf(buf, qb, sl): return P0 + buf * 32 + (qb * 2 + sl) * 4
def Qf(qb, s): return Q0 + (qb * 4 + s) * 4
def Ob(db, qb): return O0 + (db * 4 + qb) * 4
def Vf(db, sl): return VF + (db * 2 + sl) * 4
def Kf(buf, s): return KF + (buf * 4 + s) * 4
def K0f(kb, s): return VF + (kb * 4 + s) * 4
SQ, SK, SV, SO = 12, 16, 20, 24
SW, SOFFK, SOFFV, SCNT, SMODE, SX8000, SW4K = 28, 29, 30, 31, 32, 33, 34
SQB = 44
SC = 58
VBASE = 65536
FLAGS = 131072
QSTAGE = [3 * 16384, VBASE + 16384, VBASE + 2 * 16384, VBASE + 3 * 16384]

def f32bits(x): return struct.unpack("<I", struct.pack("<f", x))[0]
class Cfg: pass

def build_template(cfg):
    ones = cfg.ones
    n1 = 2 * len(ones)
    G = 128 + n1
    pv0 = 64 + n1
    M = []
    for kb in range(4):
        for qb in range(4):
            order = range(4) if (qb % 2 == 0 or not cfg.bous) else range(3, -1, -1)
            for n, s in enumerate(order):
                M.append(("QK", kb, qb, s, n == 0))
    for qb in ones:
        for sl in range(2):
            M.append(("ONE", qb, sl))
    for db in range(8):
        for qb in range(4):
            order = (0, 1) if (qb % 2 == 0 or not cfg.bous) else (1, 0)
            for sl in order:
                M.append(("PV", db, qb, sl))
    assert len(M) == G
    typ = []
    for g in range(G):
        if g < 112: typ.append("E" if g % 2 == 0 else "D")
        elif g < 112 + n1: typ.append("D")
        else: typ.append("E" if (g - 112 - n1) % 2 == 0 else "D")
    Eg = [g for g in range(G) if typ[g] == "E"]
    assert len(Eg) == 64
    mem = [None] * G
    for kb in range(4):
        base = 16 * (kb - 1)
        for s in range(4):
            g = base + 1 + 2 * s
            toff = 1
            if g < 0: g += G; toff = 2
            assert typ[g] == "D" and mem[g] is None
            mem[g] = ("KR", toff, kb, s)
    gpos = cfg.gpos
    for n, g in enumerate(gpos):
        assert typ[g] == "D" and mem[g] is None, g
        mem[g] = ("DMAV", 2, n) if n < 4 else ("DMAK", 4, n - 4)
    gbar = G - 18
    free = [g for g in range(cfg.vstart, min(cfg.vend, G - 19)) if typ[g] == "D" and mem[g] is None]
    vreads = [(db, sl, u) for db in range(8) for sl in range(2) for u in range(2)]
    assert len(free) >= 32, len(free)
    vpos = {}
    for n, v in enumerate(vreads):
        g = free[(n * len(free)) // 32]
        assert g <= pv0 + 8 * v[0] - 6, (g, v)
        mem[g] = ("VR", 0) + v
        vpos.setdefault(v[0], []).append(g)
    cap = [0] * G
    for g in range(G):
        if typ[g] == "D": cap[g] = 1 if mem[g] else 2
    cap[G - 1] = 0
    need = 32 + 16 * (4 - len(ones)) + 8
    if typ[gbar] == "D" and sum(cap) - cap[gbar] >= need: cap[gbar] = 0
    short = need - sum(cap)
    if short > 0:
        cand = [g for g in range(G) if typ[g] == "E"]
        for n in range(short):
            cap[cand[(n * len(cand)) // short]] += 1
    val = [[] for _ in range(G)]
    e0 = next(k for k, g in enumerate(Eg) if g >= cfg.lag)
    plain = []
    for k in range(64):
        idx = e0 + k
        g = Eg[idx % 64]; X = g + G * (idx // 64)
        b, r = k // 4, k % 4
        kb, qb = b // 4, b % 4
        val[g].append(("EXP", 1 - idx // 64, kb, qb, r))
        if qb not in ones: plain.append((X + 1, ("ADD", kb, qb, r)))
        if r % 2 == 1: plain.append((X + 1, ("CVT", kb, qb, r // 2)))
    used = [0] * G
    last = 0
    for ready, op in plain:
        X = max(ready, last)
        while used[X % G] >= cap[X % G]: X += 1
        used[X % G] += 1
        last = X
        kb, qb = op[1], op[2]
        assert X < G + 4 * (kb * 4 + qb), ("S overwritten", op, X)
        assert X < G + 60, ("P late", op, X)
        val[X % G].append((op[0], 1 - X // G) + op[1:])
    xk = 0
    for db in range(8):
        X = max(vpos[db]) + 1
        if xk < 4: X = max(X, 40)
        while used[X] >= cap[X]: X += 1
        assert X < G
        used[X] += 1
        s = None
        if xk < 4 and 40 <= X < G - 16: s = xk; xk += 1
        val[X].append(("XOR", 0, db, s))
    assert xk == 4
    sca = [None] * G
    for kb in range(1, 4): sca[16 * kb - 1] = ("WAITL", 16 * kb)
    sca[G - 2] = ("WAITL", G)
    for db in range(8): sca[pv0 + 8 * db - 1] = ("WAITL", pv0 + 8 * db)
    def put(g, item, step=-1):
        while sca[g % G] is not None: g += step
        sca[g % G] = item
        return g
    assert sca[gbar] is None and sca[gbar - 1] is None
    sca[gbar - 1] = ("WAITV",); sca[gbar] = ("BAR",)
    sca[G - 1] = ("BRANCH",)
    g1 = put(G - 3, ("CMP",))
    put(g1 - 1, ("CNT",))
    a = put(gpos[0] - 1, ("M0V",)); assert a >= 0
    a = put(gpos[4] - 1, ("M0K",)); assert a >= gpos[3]
    put(gpos[3] + 1, ("INCV",), +1)
    a = put(gpos[7] + 1, ("INCK",), +1); assert a < g1
    T = Cfg()
    T.G, T.pv0, T.M, T.mem, T.val, T.sca, T.typ = G, pv0, M, mem, val, sca, typ
    T.wrapped = [v for g in range(G) for v in val[g] if v[0] in ("EXP", "ADD", "CVT") and v[1] == 0]
    return T

def mfma_text(cfg, m, t):
    if m[0] == "QK":
        _, kb, qb, s, first = m
        d = R("v", Sb(kb, qb), 4)
        c = R("v", NEGM + 4 * qb, 4) if first else d
        return f"{MF} {d}, {R('a', Kf(kb % 2, s), 4)}, {R('v', Qf(qb, s), 4)}, {c}"
    if m[0] == "ONE":
        _, qb, sl = m
        d = R("a", L0 + 4 * qb, 4)
        a, b = R("a", ONES, 4), R("v", Pf(t % 2, qb, sl), 4)
        if cfg.ap: a, b = b, a
        return f"{MF} {d}, {a}, {b}, {d}"
    _, db, qb, sl = m
    d = R("a", Ob(db, qb), 4)
    a, b = R("a", Vf(db, sl), 4), R("v", Pf(t % 2, qb, sl), 4)
    if cfg.ap: a, b = b, a
    return f"{MF} {d}, {a}, {b}, {d}"

def kr_text(tt, kb, s): return f"ds_read_b128 {R('a', Kf(kb % 2, s), 4)}, v{KA + s} offset:{(tt % 2) * 16384 + kb * 1024}"
def vr_text(tt, db, sl, u): return f"ds_read_b64_tr_b16 {R('a', Vf(db, sl) + 2 * u, 2)}, v{VA + db} offset:{(tt % 2) * 16384 + (8 * sl + 4 * u) * 256}"
def dmak_text(cfg, j): return f"buffer_load_dwordx4 v{DK}, s[{SK}:{SK+3}], s{SOFFK} offen offset:{1024 * j}{cfg.pol} lds"
def dmav_text(cfg, j): return f"buffer_load_dwordx4 v{DV}, s[{SV}:{SV+3}], s{SOFFV} offen offset:{1024 * j}{cfg.pol} lds"
def sm_text(k, tt, kb, qb, r):
    x = Sb(kb, qb)
    if k == "EXP": return f"v_exp_f32 v{x + r}, v{x + r}"
    if k == "ADD":
        a = LS + 2 * qb + (r % 2)
        return f"v_add_f32 v{a}, v{a}, v{x + r}"
    d = Pf(tt % 2, qb, kb // 2) + (kb % 2) * 2 + r
    return f"v_cvt_pk_bf16_f32 v{d}, v{x + 2 * r}, v{x + 2 * r + 1}"

def emit_iter(st, cfg, T, t, forced, record):
    G = T.G
    for g in range(G):
        st.add(mfma_text(cfg, T.M[g], t))
        sc = T.sca[g]
        if cfg.itstamp and g == G - 8: st.add("s_memtime s[60:61]")
        if cfg.itstamp and g == G - 1:
            st.add("v_writelane_b32 v186, s60, m0")
        if cfg.itstamp and g == G - 6: st.add("s_mov_b32 m0, s35")
        if cfg.itstamp and g == 2: st.add("s_add_u32 s35, s35, 1")
        if sc:
            k = sc[0]
            if k == "WAITL":
                tt, gg = (t, sc[1]) if sc[1] < G else (t + 1, 0)
                rs = set()
                n = 16 if T.M[gg][0] == "QK" else 8
                for x in range(gg, gg + n): rs |= parse(mfma_text(cfg, T.M[x], tt)).rd
                n = st.lgkm_needed(rs)
                record[(t, g)] = n
                if (t, g) in forced: n = forced[(t, g)]
                if n is not None: st.add(f"s_waitcnt lgkmcnt({n})")
            elif k == "WAITV":
                p = t + 2
                n = st.vm_needed(lambda o: o.tag in (("K", p), ("V", p - 1)))
                record[(t, g)] = n
                if (t, g) in forced: n = forced[(t, g)]
                if n is not None: st.add(f"s_waitcnt vmcnt({n})")
            elif k == "BAR":
                if not cfg.nobar: st.add("s_barrier")
            elif k == "M0V": st.add(f"s_pack_ll_b32_b16 m0, s{SOFFV}, 1")
            elif k == "M0K": st.add(f"s_pack_ll_b32_b16 m0, s{SOFFK}, 0")
            elif k == "INCV": st.add(f"s_addk_i32 s{SOFFV}, 0x4000")
            elif k == "INCK": st.add(f"s_addk_i32 s{SOFFK}, 0x4000")
            elif k == "CNT":
                if t % 2 == 0: st.add(f"s_sub_u32 s{SCNT}, s{SCNT}, 1")
            elif k == "CMP":
                if t % 2 == 0: st.add(f"s_cmp_lg_u32 s{SCNT}, 0")
            elif k == "BRANCH":
                if t % 2 == 0: st.add("s_cbranch_scc1 L_loop")
        me = T.mem[g]
        if me:
            k, tt = me[0], t + me[1]
            if k == "KR": st.add(kr_text(tt, me[2], me[3]))
            elif k == "VR": st.add(vr_text(tt, me[2], me[3], me[4]))
            elif cfg.nodma: pass
            elif k == "DMAK": st.add(dmak_text(cfg, me[2]), tag=("K", tt))
            elif k == "DMAV": st.add(dmav_text(cfg, me[2]), tag=("V", tt))
        for v in T.val[g]:
            if v[0] == "XOR":
                if t % 2 == 1: st.add(f"v_xor_b32 v{VA + v[2]}, s{SX8000}, v{VA + v[2]}")
                elif v[3] is not None: st.add(f"v_xor_b32 v{KA + v[3]}, s{SX8000}, v{KA + v[3]}")
            else:
                st.add(sm_text(v[0], t + v[1], v[2], v[3], v[4]))

def stamp(st, cfg, name):
    if not cfg.stamps: return
    if not hasattr(st, "stampnames"): st.stampnames = []
    idx = len(st.stampnames); st.stampnames.append(str(name)); assert idx < 16
    st.add("s_waitcnt lgkmcnt(0)")
    st.add(f"s_memtime s[60:61]")
    st.add(f"s_memrealtime s[62:63]")
    st.add("s_waitcnt lgkmcnt(0)")
    st.add(f"s_mov_b32 s{64 + 2 * idx}, s60")
    st.add(f"s_mov_b32 s{65 + 2 * idx}, s62")

def dma_tile(st, cfg, which, t):
    A = st.add
    if which == "K":
        A(f"s_pack_ll_b32_b16 m0, s{SOFFK}, 0")
        for j in range(4): A(dmak_text(cfg, j), tag=("K", t))
        A(f"s_addk_i32 s{SOFFK}, 0x4000")
    else:
        A(f"s_pack_ll_b32_b16 m0, s{SOFFV}, 1")
        for j in range(4): A(dmav_text(cfg, j), tag=("V", t))
        A(f"s_addk_i32 s{SOFFV}, 0x4000")

def waitv(st, *tags):
    n = st.vm_needed(lambda o: o.tag in tags)
    if n is not None: st.add(f"s_waitcnt vmcnt({n})")

def xlane(st, op, x, y):
    for sw in ("v_permlane16_swap_b32", "v_permlane32_swap_b32"):
        st.add(f"v_mov_b32 v{y}, v{x}")
        st.add(f"{sw} v{x}, v{y}")
        st.add(f"{op} v{x}, v{x}, v{y}")

def softmax0(st, cfg, T, qb):
    W = set((v[0],) + tuple(v[2:]) for v in T.wrapped)
    for kb in range(4):
        for r in range(4):
            if ("EXP", kb, qb, r) not in W: st.add(sm_text("EXP", 0, kb, qb, r))
    for kb in range(4):
        for r in range(4):
            if qb not in cfg.ones and ("ADD", kb, qb, r) not in W: st.add(sm_text("ADD", 0, kb, qb, r))
        for r in range(2):
            if ("CVT", kb, qb, r) not in W: st.add(sm_text("CVT", 0, kb, qb, r))

def init_acc(st):
    A = st.add
    for i in range(128): A(f"v_accvgpr_write_b32 a{O0 + i}, 0")
    for i in range(16): A(f"v_accvgpr_write_b32 a{L0 + i}, 0")
    for i in range(8): A(f"v_mov_b32 v{LS + i}, 0")

def prologue(st, cfg, T):
    A = st.add
    A("s_cmp_ge_u32 s2, 0x100")
    A("s_cbranch_scc1 L_end")
    stamp(st, cfg, "start")
    A("s_load_dwordx8 s[4:11], s[0:1], 0")
    if cfg.stamps: A("s_load_dwordx2 s[56:57], s[0:1], 40")
    A("v_lshrrev_b32 v1, 6, v0")
    A("v_and_b32 v2, 63, v0")
    A(f"v_readfirstlane_b32 s{SW}, v1")
    A("v_and_b32 v3, 15, v2")
    A("v_lshrrev_b32 v4, 4, v2")
    if cfg.pf:
        A("s_getpc_b64 s[36:37]")
        A("L_pc:")
        A(f"v_min_u32 v5, (L_codeend-L_pc-4)/128, v0")
        A("v_lshlrev_b32 v5, 7, v5")
        A("v_mov_b32 v7, s37")
        A("v_add_co_u32 v6, vcc, s36, v5")
        A("v_addc_co_u32 v7, vcc, 0, v7, vcc")
        A("global_load_dword v185, v[6:7], off")
    A("s_bfe_u32 s50, s2, 0x20001")
    A("s_and_b32 s51, s2, 1")
    A("s_lshl_b32 s51, s51, 5")
    A("s_lshr_b32 s52, s2, 3")
    A("s_or_b32 s51, s51, s52")
    A("s_lshl_b32 s52, s50, 6")
    A("s_add_u32 s51, s51, s52")
    A("s_lshl_b32 s51, s51, 16")
    A("s_lshl_b32 s50, s50, 19")
    A(f"s_lshl_b32 s{SW4K}, s{SW}, 12")
    A(f"s_lshl_b32 s{SQB}, s{SW}, 14")
    if cfg.qmap == 0:
        for i in range(1, 4): A(f"s_add_u32 s{SQB + i}, s{SQB}, {4096 * i}")
    elif cfg.qmap == 1:
        A(f"s_lshr_b32 s53, s2, 3")
        A(f"s_add_u32 s53, s53, s{SW}")
        A(f"s_mov_b32 s54, s{SQB}")
        for i in range(4):
            A(f"s_add_u32 s55, s53, {i}")
            A(f"s_and_b32 s55, s55, 3")
            A(f"s_lshl_b32 s55, s55, 12")
            A(f"s_add_u32 s{SQB + i}, s54, s55")
    elif cfg.qmap == 2:
        for i in range(4): A(f"s_add_u32 s{SQB + i}, s{SW4K}, {16384 * i}")
    elif cfg.qmap == 3:
        A(f"s_lshr_b32 s53, s2, 3")
        for i in range(4):
            A(f"s_add_u32 s55, s53, {i}")
            A(f"s_and_b32 s55, s55, 3")
            A(f"s_lshl_b32 s55, s55, 14")
            A(f"s_add_u32 s{SQB + i}, s{SW4K}, s55")
    A(f"s_mov_b32 s{SOFFK}, s{SW4K}")
    A(f"s_mov_b32 s{SOFFV}, s{SW4K}")
    A(f"s_lshl_b32 s53, s{SW}, 2")
    A("v_add_u32 v5, s53, v4")
    A("v_xor_b32 v5, v5, v3")
    A("v_lshlrev_b32 v6, 8, v4")
    A(f"v_lshl_add_u32 v{DK}, v5, 4, v6")
    for j in range(4):
        A(f"v_add_u32 v5, {4 * j}, v4")
        A("v_xor_b32 v5, v5, v3")
        A(f"v_lshl_add_u32 v{8 + j}, v5, 4, v6")
    A("s_waitcnt lgkmcnt(0)")
    stamp(st, cfg, "kernarg")
    def srd(srd, p, off, n):
        A(f"s_add_u32 s{srd}, s{p}, s{off}")
        A(f"s_addc_u32 s{srd + 1}, s{p + 1}, 0")
        A(f"s_mov_b32 s{srd + 2}, {n}")
        A(f"s_mov_b32 s{srd + 3}, 0x20000")
    srd(SK, 6, 50, 524288)
    dma_tile(st, cfg, "K", 0)
    srd(SQ, 4, 51, 65536)
    def dmaq(qb):
        A(f"s_add_u32 m0, s{SW4K}, {QSTAGE[qb]}")
        for j in range(4):
            A(f"buffer_load_dwordx4 v{8 + j}, s[{SQ}:{SQ+3}], s{SQB + qb} offen offset:{1024 * j}{cfg.qpol} lds", tag=("Q", qb))
    def part2():
        srd(SV, 8, 50, 524288)
        srd(SO, 10, 51, 65536)
        A(f"s_and_b32 s53, s{SW}, 1")
        A("s_lshl_b32 s53, s53, 2")
        A("v_add_u32 v5, s53, v4")
        A("v_lshlrev_b32 v5, 1, v5")
        A("v_xor_b32 v5, v5, v3")
        A(f"v_lshl_add_u32 v{DV}, v5, 4, v6")
        A("v_lshrrev_b32 v5, 2, v3")
        A("v_lshlrev_b32 v5, 12, v5")
        A("v_and_b32 v6, 3, v3")
        A("v_lshl_add_u32 v5, v6, 8, v5")
        A(f"v_lshl_add_u32 v7, v3, 8, s{SW4K}")
        for s in range(4):
            A(f"v_add_u32 v6, {4 * s}, v4")
            A("v_xor_b32 v6, v6, v3")
            A(f"v_lshl_add_u32 v{KA + s}, v6, 4, v5")
            A(f"v_lshl_add_u32 v{12 + s}, v6, 4, v7")
        A("v_lshrrev_b32 v5, 1, v4")
        A("v_xor_b32 v5, v5, v3")
        A("v_lshl_add_u32 v5, v5, 4, v7")
        A("v_and_b32 v6, 1, v4")
        A(f"v_lshl_add_u32 v{OW}, v6, 3, v5")
        A("v_xor_b32 v5, v3, v4")
        A("v_lshlrev_b32 v5, 4, v5")
        A("v_lshl_add_u32 v5, v4, 8, v5")
        A(f"v_add_u32 v{OR_}, s{SW4K}, v5")
        A(f"v_lshlrev_b32 v{OS}, 4, v2")
        A("v_lshrrev_b32 v5, 2, v3")
        A("v_and_b32 v6, 1, v4")
        A("v_lshl_add_u32 v6, v6, 2, v5")
        A("v_lshl_add_u32 v5, v4, 4, v5")
        A("v_lshlrev_b32 v5, 8, v5")
        A("v_and_b32 v7, 3, v3")
        A("v_lshl_add_u32 v5, v7, 3, v5")
        A(f"v_add_u32 v5, {VBASE}, v5")
        for db in range(8):
            A(f"v_xor_b32 v7, {db}, v6")
            A(f"v_lshl_add_u32 v{VA + db}, v7, 5, v5")
        init_acc(st)
        A("v_mov_b32 v5, 0x3f803f80")
        for i in range(4): A(f"v_accvgpr_write_b32 a{ONES + i}, v5")
        c = math.log2(math.e) / math.sqrt(128.0)
        A(f"s_mov_b32 s{SC}, {f32bits(c):#x}")
        A(f"s_mov_b32 s{SC + 1}, s{SC}")
        A(f"s_mov_b32 s{SCNT}, 16")
        A(f"s_mov_b32 s{SMODE}, 0")
        if cfg.itstamp: A("s_mov_b32 s35, -1"); A("v_mov_b32 v186, 0")
        A(f"s_mov_b32 s{SX8000}, 0x8000")
    pend = [("K", 1), ("V", 0), ("K", 2), ("V", 1), ("K", 3)]
    done_q = [0]
    def later(n):
        for _ in range(n):
            w, t = pend.pop(0)
            assert (w, t) not in (("V", 1), ("K", 3)) or done_q[0] >= 2
            dma_tile(st, cfg, w, t)
    for qb in range(cfg.qfirst): dmaq(qb)
    stamp(st, cfg, "dmaQa")
    part2()
    stamp(st, cfg, "init")
    for qb in range(cfg.qfirst, 4): dmaq(qb)
    later(cfg.sched[0])
    stamp(st, cfg, "dmaQb")
    if cfg.probe:
        waitv(st, ("K", 0)); stamp(st, cfg, "pK0")
        for qb in range(4):
            waitv(st, ("Q", qb)); stamp(st, cfg, f"pQ{qb}")
    waitv(st, ("K", 0))
    A("s_barrier")
    if not cfg.probe: stamp(st, cfg, "B0")
    for kb in range(4):
        for s in range(4):
            A(f"ds_read_b128 {R('a', K0f(kb, s), 4)}, v{KA + s} offset:{kb * 1024}")
    for qb in range(4):
        waitv(st, ("Q", qb))
        if not cfg.probe: stamp(st, cfg, f"Q{qb}landed")
        qoff = QSTAGE[qb]
        if qoff >= 65536:
            if qb == 1:
                for s in range(4): A(f"v_add_u32 v{12 + s}, {VBASE}, v{12 + s}")
            qoff -= VBASE
        for s in range(4):
            A(f"ds_read_b128 {R('v', Qf(qb, s), 4)}, v{12 + s} offset:{qoff}")
        for s in range(4):
            st.wait_regs(R('v', Qf(qb, s), 4))
            tb = P0 + 32 + 8 * s
            for i in range(4):
                x = Qf(qb, s) + i
                A(f"v_lshlrev_b32 v{tb + 2 * i}, 16, v{x}")
                A(f"v_and_b32 v{tb + 2 * i + 1}, 0xffff0000, v{x}")
            for i in range(4):
                A(f"v_pk_mul_f32 v[{tb + 2 * i}:{tb + 2 * i + 1}], v[{tb + 2 * i}:{tb + 2 * i + 1}], s[{SC}:{SC + 1}]")
            for i in range(4):
                A(f"v_cvt_pk_bf16_f32 v{Qf(qb, s) + i}, v{tb + 2 * i}, v{tb + 2 * i + 1}")
        done_q[0] = qb + 1
        later(cfg.sched[1 + qb])
        for kb in range(4):
            for s in range(4):
                d = R("v", Sb(kb, qb), 4)
                A(f"{MF} {d}, {R('a', K0f(kb, s), 4)}, {R('v', Qf(qb, s), 4)}, {'0' if s == 0 else d}")
        x = [Sb(kb, qb) + r for kb in range(4) for r in range(4)]
        A(f"v_max3_f32 v1, v{x[0]}, v{x[1]}, v{x[2]}")
        for i in range(3, 15, 2): A(f"v_max3_f32 v1, v1, v{x[i]}, v{x[i + 1]}")
        A(f"v_max_f32 v1, v1, v{x[15]}")
        xlane(st, "v_max_f32", 1, 5)
        for i in range(4): A(f"v_sub_f32 v{NEGM + 4 * qb + i}, 0, v1")
        for i in range(0, 16, 2):
            A(f"v_pk_add_f32 v[{x[i]}:{x[i] + 1}], v[{x[i]}:{x[i] + 1}], v[{NEGM + 4 * qb}:{NEGM + 4 * qb + 1}]")
        softmax0(st, cfg, T, qb)
    assert not pend
    stamp(st, cfg, "tile0")
    enter_loop(st, cfg)

def enter_loop(st, cfg):
    A = st.add
    waitv(st, ("K", 1), ("V", 0))
    A("s_barrier")
    for s in range(4): A(kr_text(1, 0, s))
    A("s_waitcnt lgkmcnt(0)")
    stamp(st, cfg, "mainstart")
    A("s_branch L_entry")

def tail(st, cfg, T):
    A = st.add
    t = NT - 1
    stamp(st, cfg, "loopend")
    vr = [vr_text(t, db, sl, u) for db in range(8) for sl in range(2) for u in range(2)]
    wr = [sm_text(v[0], t, v[2], v[3], v[4]) for v in T.wrapped]
    for _ in range(8): A(vr.pop(0))
    for x in wr: A(x)
    mf = [("ONE", qb, sl) for qb in cfg.ones for sl in range(2)]
    for qb in range(4):
        for db in range(8):
            for sl in ((0, 1) if db % 2 == 0 else (1, 0)): mf.append(("PV", db, qb, sl))
    RL = 1
    def rl(qb): return 2 + 2 * qb
    pre = []
    for qb in range(4):
        if qb in cfg.ones: pre.append(f"v_accvgpr_read_b32 v{LS + 2 * qb}, a{L0 + 4 * qb}")
        else:
            pre.append(f"v_add_f32 v{LS + 2 * qb}, v{LS + 2 * qb}, v{LS + 2 * qb + 1}")
            for sw in ("v_permlane16_swap_b32", "v_permlane32_swap_b32"):
                pre.append(f"v_mov_b32 v{LS + 2 * qb + 1}, v{LS + 2 * qb}")
                pre.append(f"{sw} v{LS + 2 * qb}, v{LS + 2 * qb + 1}")
                pre.append(f"v_add_f32 v{LS + 2 * qb}, v{LS + 2 * qb}, v{LS + 2 * qb + 1}")
    for qb in range(4): pre.append(f"v_rcp_f32 v{rl(qb)}, v{LS + 2 * qb}")
    def epi(qb, packed):
        L = []
        tb = S0 + (qb % 2) * 32
        pk = P0 + ((t + 1) % 2) * 32 + (qb % 2) * 16
        for db in range(8):
            x = tb + 4 * db
            for i in range(4): L.append(("v", f"v_accvgpr_read_b32 v{x + i}, a{Ob(db, qb) + i}"))
            if packed(db):
                for i in (0, 2): L.append(("v", f"v_pk_mul_f32 v[{x + i}:{x + i + 1}], v[{x + i}:{x + i + 1}], v[{rl(qb)}:{rl(qb) + 1}] op_sel_hi:[1,0]"))
            else:
                for i in range(4): L.append(("v", f"v_mul_f32 v{x + i}, v{x + i}, v{rl(qb)}"))
            for i in range(2): L.append(("v", f"v_cvt_pk_bf16_f32 v{pk + 2 * db + i}, v{x + 2 * i}, v{x + 2 * i + 1}"))
            L.append(("m", f"ds_write_b64 v{VA + db}, v[{pk + 2 * db}:{pk + 2 * db + 1}] offset:{qb * 16384}"))
        for n in range(4): L.append(("m", f"ds_read_b128 v[{tb + 4 * n}:{tb + 4 * n + 3}], v{KA + n} offset:{qb * 16384 + n * 1024}"))
        St = [("m", f"buffer_store_dwordx4 v[{tb + 4 * n}:{tb + 4 * n + 3}], v{OS}, s[{SO}:{SO+3}], s{SQB + qb} offen offset:{n * 1024}{cfg.opol}") for n in range(4)]
        L = (L, St)
        return L
    addr = [("v", f"v_xor_b32 v{VA + db}, {32 * db}, v{OW}") for db in range(8)] + \
           [("v", f"v_xor_b32 v{KA + n}, {64 * n}, v{OR_}") for n in range(4)]
    queue = []
    n1 = 2 * len(cfg.ones)
    for x in pre: queue.append((n1 + 3, "v", x))
    for k, x in addr: queue.append((n1 + 3, k, x))
    queue.append((0, "s", "s_waitcnt vmcnt(0)"))
    nhid = cfg.hid
    prev = []
    for qb in range(4):
        L, St = epi(qb, lambda db: qb * 8 + db >= nhid)
        for n, x in enumerate(prev): L.insert(cfg.stdelay + n * (cfg.ststep + 1), x)
        prev = St
        for k, x in L: queue.append((n1 + 16 * qb + 16 + 3, k, x))
    for k, x in prev: queue.append((0, k, x))
    def emit(x):
        if x.startswith("buffer_store"):
            n = st.lgkm_needed(parse(x).rd)
            if n is not None: A(f"s_waitcnt lgkmcnt({n})")
        A(x)
    for i, m in enumerate(mf):
        txt = mfma_text(cfg, m, t)
        n = st.lgkm_needed(parse(txt).rd)
        if n is not None: A(f"s_waitcnt lgkmcnt({n})")
        A(txt)
        if vr:
            A(vr.pop(0))
            if vr and i >= n1 - 2: A(vr.pop(0))
            continue
        slots = 2
        while slots > 0 and queue and queue[0][0] <= i and "pk_mul" not in queue[0][2]:
            _, k, x = queue[0]
            if k == "m" and slots < 2: break
            if x.startswith("v_rcp"):
                if slots < 2: break
                slots -= 1
            queue.pop(0); emit(x)
            if k != "s": slots -= 1
    stamp(st, cfg, "mainend")
    sys.stderr.write(f"tail: {len(queue)} epilogue instrs left after last MFMA\n")
    for _, k, x in queue: emit(x)

def finish(st, cfg, T):
    A = st.add
    stamp(st, cfg, "stored")
    if cfg.fallback:
        A(f"s_cmp_lg_u32 s{SMODE}, 0")
        A("s_cbranch_scc1 L_done")
        A(f"s_mov_b32 s36, {f32bits(2.0 ** 40):#x}")
        A(f"v_add_f32 v3, v{LS}, v{LS + 2}")
        A(f"v_add_f32 v5, v{LS + 4}, v{LS + 6}")
        A("v_add_f32 v3, v3, v5")
        A("v_cmp_nge_f32 vcc, s36, v3")
        A("s_cmp_lg_u64 vcc, 0")
        A("s_cselect_b32 s37, 1, 0")
        A("v_mov_b32 v1, s37")
        A(f"s_lshl_b32 s38, s{SW}, 2")
        A(f"s_add_u32 s38, s38, {FLAGS}")
        A("v_mov_b32 v3, s38")
        A("ds_write_b32 v3, v1")
        A("s_waitcnt lgkmcnt(0)")
        A("s_barrier")
        A(f"v_mov_b32 v3, {FLAGS}")
        A("ds_read_b128 v[4:7], v3")
        A("s_waitcnt lgkmcnt(0)")
        A("v_or_b32 v4, v4, v5")
        A("v_or3_b32 v4, v4, v6, v7")
        A("v_readfirstlane_b32 s37, v4")
        A("s_cmp_lg_u32 s37, 0")
        A("s_cbranch_scc1 L_fallback")
        A("L_done:")
    if cfg.stamps:
        A("s_waitcnt vmcnt(0)")
        stamp(st, cfg, "drained")
        A("s_mov_b32 s8, s56"); A("s_mov_b32 s9, s57"); A("s_mov_b32 s10, 0x100000"); A("s_mov_b32 s11, 0x20000")
        A("s_lshl_b32 s3, s2, 2"); A(f"s_add_u32 s3, s3, s{SW}"); A("s_lshl_b32 s3, s3, 7")
        A("v_mov_b32 v1, s3")
        for k in range((len(st.stampnames) + 1) // 2):
            for i in range(4): A(f"v_mov_b32 v{4 + i}, s{64 + 4 * k + i}")
            A(f"buffer_store_dwordx4 v[4:7], v1, s[8:11], 0 offen offset:{16 * k}")
            A("s_nop 1")
    if cfg.itstamp:
        A("s_lshl_b32 s3, s3, 1")
        A("s_add_u32 s3, s3, 0x40000")
        A("v_and_b32 v1, 63, v0")
        A("v_lshl_add_u32 v1, v1, 2, s3")
        A("buffer_store_dword v186, v1, s[8:11], 0 offen")
    A("L_end:")
    A("s_endpgm")
    A("L_codeend:")

def fallback(cfg, T):
    st = Stream(); A = st.add
    A("L_fallback:")
    A("s_waitcnt vmcnt(0) lgkmcnt(0)")
    A(f"s_mov_b32 s{SMODE}, 1")
    A("v_and_b32 v2, 63, v0")
    A("v_and_b32 v3, 15, v2")
    A("v_lshrrev_b32 v4, 4, v2")
    A("v_lshrrev_b32 v5, 2, v3")
    A("v_lshlrev_b32 v5, 12, v5")
    A("v_and_b32 v6, 3, v3")
    A("v_lshl_add_u32 v5, v6, 8, v5")
    for s in range(4):
        A(f"v_add_u32 v6, {4 * s}, v4")
        A("v_xor_b32 v6, v6, v3")
        A(f"v_lshl_add_u32 v{KA + s}, v6, 4, v5")
    A("v_lshrrev_b32 v5, 2, v3")
    A("v_and_b32 v6, 1, v4")
    A("v_lshl_add_u32 v6, v6, 2, v5")
    A("v_lshl_add_u32 v5, v4, 4, v5")
    A("v_lshlrev_b32 v5, 8, v5")
    A("v_and_b32 v7, 3, v3")
    A("v_lshl_add_u32 v5, v7, 3, v5")
    A(f"v_add_u32 v5, {VBASE}, v5")
    for db in range(8):
        A(f"v_xor_b32 v7, {db}, v6")
        A(f"v_lshl_add_u32 v{VA + db}, v7, 5, v5")
    for qb in range(4): A(f"v_mov_b32 v{8 + qb}, 0xff800000")
    A(f"s_mov_b32 s{SOFFK}, s{SW4K}")
    A(f"s_mov_b32 s{SCNT}, {NT}")
    A("L_fb1:")
    A("s_barrier")
    A(f"s_mov_b32 m0, s{SW4K}")
    for j in range(4): A(dmak_text(cfg, j))
    A(f"s_addk_i32 s{SOFFK}, 0x4000")
    A("s_waitcnt vmcnt(0)")
    A("s_barrier")
    for kb in range(4):
        for s in range(4):
            A(f"ds_read_b128 {R('a', K0f(kb, s), 4)}, v{KA + s} offset:{kb * 1024}")
    A("s_waitcnt lgkmcnt(0)")
    for qb in range(4):
        for kb in range(4):
            for s in range(4):
                d = R("v", Sb(kb, qb), 4)
                A(f"{MF} {d}, {R('a', K0f(kb, s), 4)}, {R('v', Qf(qb, s), 4)}, {'0' if s == 0 else d}")
    A("s_nop 7")
    for qb in range(4):
        x = [Sb(kb, qb) + r for kb in range(4) for r in range(4)]
        for i in range(0, 16, 2): A(f"v_max3_f32 v{8 + qb}, v{8 + qb}, v{x[i]}, v{x[i + 1]}")
    A(f"s_sub_u32 s{SCNT}, s{SCNT}, 1")
    A(f"s_cmp_lg_u32 s{SCNT}, 0")
    A("s_cbranch_scc1 L_fb1")
    for qb in range(4):
        xlane(st, "v_max_f32", 8 + qb, 5)
        for i in range(4): A(f"v_sub_f32 v{NEGM + 4 * qb + i}, 0, v{8 + qb}")
    init_acc(st)
    A(f"s_mov_b32 s{SOFFK}, s{SW4K}")
    A(f"s_mov_b32 s{SOFFV}, s{SW4K}")
    A(f"s_mov_b32 s{SCNT}, 16")
    A("s_barrier")
    for w, t in (("K", 0), ("K", 1), ("V", 0), ("K", 2), ("V", 1), ("K", 3)): dma_tile(st, cfg, w, t)
    A("s_waitcnt vmcnt(0)")
    A("s_barrier")
    for kb in range(4):
        for s in range(4):
            A(f"ds_read_b128 {R('a', K0f(kb, s), 4)}, v{KA + s} offset:{kb * 1024}")
    A("s_waitcnt lgkmcnt(0)")
    for qb in range(4):
        for kb in range(4):
            for s in range(4):
                d = R("v", Sb(kb, qb), 4)
                c = R("v", NEGM + 4 * qb, 4) if s == 0 else d
                A(f"{MF} {d}, {R('a', K0f(kb, s), 4)}, {R('v', Qf(qb, s), 4)}, {c}")
    A("s_nop 7")
    for qb in range(4): softmax0(st, cfg, T, qb)
    A("s_barrier")
    for s in range(4): A(kr_text(1, 0, s))
    A("s_waitcnt lgkmcnt(0)")
    A("s_nop 7")
    A("s_branch L_entry")
    return st

def flat(cfg, T, forced):
    st = Stream(); rec = {}; marks = {}
    prologue(st, cfg, T)
    for t in range(0, NT - 1):
        marks[t] = len(st.ins)
        emit_iter(st, cfg, T, t, forced, rec)
    marks[NT - 1] = len(st.ins)
    tail(st, cfg, T)
    finish(st, cfg, T)
    return st, rec, marks

def generate(cfg):
    T = build_template(cfg)
    st, rec, marks = flat(cfg, T, {})
    forced = {}; cls = {}
    for (t, g), n in rec.items(): cls.setdefault((t % 2, g), []).append(n)
    for (t, g), n in rec.items():
        v = [x for x in cls[(t % 2, g)] if x is not None]
        forced[(t, g)] = min(v) if v else None
    st, rec, marks = flat(cfg, T, forced)
    its = [st.text(marks[t], marks[t + 1]) for t in range(NT - 1)]
    for t in range(2, NT - 1): assert its[t] == its[t - 2], f"loop not periodic at {t}"
    nl = [x for x in st.nops_inserted if marks[1] <= x[0] < marks[3]]
    sys.stderr.write(f"G={T.G} loop body instrs={marks[3]-marks[1]} nops in loop: {nl}; total auto nops {len(st.nops_inserted)}\n")
    out = []
    out.append(open("standalone__gqa_softmax__prompt.s.ref").read().split("; Override")[0].rstrip())
    if cfg.stamps: out.append("; STAMPS " + " ".join(st.stampnames))
    out.append(f"; @launch grid=(256,1,1) block=(256,1,1) lds={cfg.lds}")
    out.append('.amdgcn_target "amdgcn-amd-amdhsa--gfx950"\n.text')
    out.append(f".globl {KNAME}\n.p2align 8\n.type {KNAME},@function\n{KNAME}:")
    out.append(st.text(0, marks[0]))
    out.append(".p2align 6")
    out.append("L_loop:")
    out.append(its[1])
    out.append("L_entry:")
    out.append(its[0])
    out.append(st.text(marks[NT - 1]))
    if cfg.fallback: out.append(fallback(cfg, T).text())
    out.append(f'''.section .rodata,"a"
.p2align 6
.amdhsa_kernel {KNAME}
  .amdhsa_next_free_vgpr 512
  .amdhsa_next_free_sgpr 102
  .amdhsa_accum_offset 256
  .amdhsa_group_segment_fixed_size 0
  .amdhsa_kernarg_size 48
  .amdhsa_user_sgpr_count 2
  .amdhsa_user_sgpr_kernarg_segment_ptr 1
  .amdhsa_system_sgpr_workgroup_id_x 1
.end_amdhsa_kernel''')
    return "\n".join(out) + "\n", T

if __name__ == "__main__":
    ap = argparse.ArgumentParser()
    ap.add_argument("-o", default="/dev/stdout")
    ap.add_argument("--ones", default="0,1,2,3")
    for n, d in (("ap", 0), ("bous", 1), ("lag", 8), ("stamps", 0), ("vstart", 9), ("vend", 200), ("show", 0), ("nobar", 0),
                 ("nodma", 0), ("pf", 0), ("qfirst", 2), ("hid", 8), ("itstamp", 0), ("probe", 0), ("qmap", 0), ("stdelay", 20), ("ststep", 8), ("fallback", 1)):
        ap.add_argument("--" + n, type=int, default=d)
    ap.add_argument("--gpos", default="11,27,43,57,71,85,99,109")
    ap.add_argument("--sched", default="0,1,1,1,2")
    ap.add_argument("--pol", default="")
    ap.add_argument("--qpol", default="")
    ap.add_argument("--opol", default="")
    a = ap.parse_args()
    cfg = Cfg()
    cfg.__dict__.update(vars(a))
    cfg.ones = [int(x) for x in a.ones.split(",") if x != ""]
    cfg.gpos = [int(x) for x in a.gpos.split(",")]
    cfg.sched = [int(x) for x in a.sched.split(",")]
    for n in ("pol", "qpol", "opol"):
        v = getattr(cfg, n).replace("+", " ")
        setattr(cfg, n, " " + v if v else "")
    cfg.lds = 131072 + 64
    txt, T = generate(cfg)
    open(a.o, "w").write(txt)
    if a.show:
        for g in range(T.G):
            sys.stderr.write(f"{g:3d} {T.typ[g]} {T.M[g]} | {T.sca[g]} | {T.mem[g]} | {T.val[g]}\n")
```

```python
import re

def regs(s):
    s = s.strip()
    m = re.fullmatch(r"([vas])\[(\d+):(\d+)\]", s)
    if m:
        return [f"{m.group(1)}{i}" for i in range(int(m.group(2)), int(m.group(3)) + 1)]
    m = re.fullmatch(r"-?\|?([vas])(\d+)\|?", s)
    if m:
        return [f"{m.group(1)}{m.group(2)}"]
    if s in ("vcc", "m0", "exec", "scc"):
        return [s]
    return []

def R(f, lo, n=1):
    return f"{f}{lo}" if n == 1 else f"{f}[{lo}:{lo+n-1}]"

TRANS = ("v_exp_f32", "v_rcp_f32", "v_log_f32", "v_rsq_f32", "v_sqrt_f32")

class I:
    __slots__ = ("text", "kind", "rd", "wr", "A", "B", "C", "D", "tag", "states")
    def __init__(self, text, kind, rd=(), wr=(), tag=None):
        self.text = text; self.kind = kind
        self.rd = set(rd); self.wr = set(wr)
        self.A = self.B = self.C = self.D = None
        self.tag = tag
        self.states = 1

def parse(text, tag=None):
    t = text.strip()
    mn, _, rest = t.partition(" ")
    ops = [o.strip() for o in re.split(r",\s*(?![^\[]*\])", rest)] if rest else []
    ops2 = []
    for o in ops:
        ops2.append(o.split(" ")[0])
    if mn.startswith("v_smfmac"):
        i = I(t, "mfma", tag=tag)
        i.D, i.A, i.B, i.C = (regs(ops2[0]), regs(ops2[1]) + regs(ops2[3]), regs(ops2[2]), regs(ops2[0]))
        i.rd = set(i.A + i.B + i.C); i.wr = set(i.D)
        return i
    if mn.startswith("v_mfma"):
        i = I(t, "mfma", tag=tag)
        i.D, i.A, i.B, i.C = (regs(ops2[0]), regs(ops2[1]), regs(ops2[2]), regs(ops2[3]))
        i.rd = set(i.A + i.B + i.C); i.wr = set(i.D)
        return i
    if mn.startswith("ds_read"):
        return I(t, "dsr", regs(ops2[1]), regs(ops2[0]), tag)
    if mn.startswith("ds_write"):
        return I(t, "dsw", regs(ops2[0]) + regs(ops2[1]), [], tag)
    if mn.startswith("buffer_load"):
        if " lds" in t:
            return I(t, "dma", regs(ops2[0]) + regs(ops2[1]) + regs(ops2[2]) + ["m0"], [], tag)
        return I(t, "vld", regs(ops2[1]) + regs(ops2[2]) + regs(ops2[3]), regs(ops2[0]), tag)
    if mn.startswith("global_load"):
        return I(t, "vld", regs(ops2[1]), regs(ops2[0]), tag)
    if mn.startswith("buffer_store"):
        return I(t, "vst", regs(ops2[0]) + regs(ops2[1]) + regs(ops2[2]) + regs(ops2[3]), [], tag)
    if mn == "s_nop":
        i = I(t, "nop", tag=tag); i.states = int(ops2[0]) + 1; return i
    if mn in ("s_waitcnt", "s_barrier", "s_setprio", "s_endpgm", "s_branch") or mn.startswith("s_cbranch"):
        return I(t, "ctl", tag=tag)
    if mn.startswith("s_load") or mn.startswith("s_memtime") or mn.startswith("s_memrealtime"):
        return I(t, "smem", [r for o in ops2[1:] for r in regs(o)], regs(ops2[0]), tag)
    if mn.startswith("s_cmp"):
        return I(t, "salu", [r for o in ops2 for r in regs(o)], ["scc"], tag)
    if mn.startswith("s_") and not t.endswith(":"):
        rd = [r for o in ops2[1:] for r in regs(o)]
        if mn.startswith("s_addk"): rd += regs(ops2[0])
        return I(t, "salu", rd, regs(ops2[0]), tag)
    if mn.startswith("v_"):
        base = re.sub(r"_(e32|e64|dpp|sdwa)$", "", mn)
        kind = "trans" if base in TRANS else "valu"
        wr = regs(ops2[0]); rd = [r for o in ops2[1:] for r in regs(o)]
        if base.startswith("v_permlane") and "swap" in base:
            wr = regs(ops2[0]) + regs(ops2[1]); rd = list(wr)
        if base in ("v_add_co_u32", "v_addc_co_u32"):
            wr = wr + ["vcc"]
        if base in ("v_fmac_f32", "v_writelane_b32"):
            rd += wr
        if base.startswith("v_cndmask") and len(ops2) == 3:
            rd.append("vcc")
        i = I(t, kind, rd, wr, tag)
        return i
    if t.endswith(":") or t.startswith("."):
        i = I(t, "label", tag=tag); i.states = 0; return i
    raise ValueError("cannot parse: " + t)

def is_valu(i): return i.kind in ("valu", "trans")

def need_states(p, c):
    n = 0
    vw = {r for r in p.wr if r[0] in "va" and r != "vcc"}
    if p.kind == "mfma":
        passes = 4 if ("16x16x" in p.text and "smfmac" not in p.text) else 8
        big = {4: 8, 8: 12}[passes]
        D = set(p.D)
        if is_valu(c) and (D & (c.rd | c.wr)): n = max(n, big)
        if c.kind in ("dsw", "vst", "dma", "vld", "dsr") and (D & c.rd): n = max(n, big)
        if c.kind in ("dsr", "vld") and (D & c.wr): n = max(n, big)
        if c.kind == "mfma":
            if D & set(c.A + c.B): n = max(n, big)
            if D & set(c.C) and c.C != p.D: n = max(n, {4: 6, 8: 10}[passes])
        if is_valu(c) and (set(p.C) & c.wr): n = max(n, {4: 3, 8: 7}[passes])
    if is_valu(p):
        if c.kind == "mfma" and (vw & c.rd): n = max(n, 2)
        if p.kind == "trans" and c.kind == "valu" and (vw & c.rd): n = max(n, 1)
        if is_valu(c):
            mn = c.text.split(" ")[0]
            if ("permlane" in mn or "_dpp" in mn or "row_" in c.text or "quad_perm" in c.text) and (vw & c.rd): n = max(n, 2)
            if mn.startswith("v_readfirstlane") or mn.startswith("v_readlane"):
                if vw & c.rd: n = max(n, 1)
            if "sdwa" in p.text and (vw & c.rd): n = max(n, 1)
        sw = {r for r in p.wr if r[0] == "s" or r == "vcc"}
        if sw:
            if c.kind in ("dma", "vld", "vst") and (sw & c.rd): n = max(n, 5)
            if is_valu(c) and (sw & c.rd): n = max(n, 2)
            if c.kind == "salu" and (sw & c.rd): n = max(n, 2)
            if c.kind == "ctl" and "vcc" in sw and "vcc" in c.text: n = max(n, 5)
        if "exec" in p.wr and c.kind == "mfma": n = max(n, 4)
    if p.kind == "salu" and "m0" in p.wr and c.kind == "dma": n = max(n, 1)
    if p.kind == "vst" and "x4" in p.text and (is_valu(c) or c.kind in ("dsr", "vld")):
        data = set(regs(p.text.split(" ")[1].rstrip(",")))
        if data & c.wr: n = max(n, 2)
    if p.kind == "dsw" and ("b128" in p.text or "b64" in p.text) and is_valu(c):
        if p.rd & c.wr: n = max(n, 2)
    return n

class Stream:
    WINDOW = 24
    def __init__(self):
        self.ins = []
        self.lgkm = []
        self.vm = []
        self.nops_inserted = []
        self.strict = False
    def _hazard(self, c):
        need = 0; dist = 0
        for p in reversed(self.ins[-self.WINDOW:]):
            n = need_states(p, c)
            if n - dist > need: need = n - dist
            dist += p.states
            if dist >= 16: break
        return need
    def add(self, x, tag=None):
        i = parse(x, tag) if isinstance(x, str) else x
        if i.kind != "label":
            need = self._hazard(i)
            if need > 0:
                self.nops_inserted.append((len(self.ins), need, i.text))
                self.ins.append(parse(f"s_nop {need-1}", "autonop"))
            touched = i.rd | i.wr
            for o in self.lgkm:
                if o.kind in ("dsr", "smem") and (o.wr & touched):
                    raise RuntimeError(f"missing lgkm wait: {o.text}  ->  {i.text}")
            for o in self.vm:
                if o.kind == "vld" and (o.wr & touched):
                    raise RuntimeError(f"missing vm wait: {o.text}  ->  {i.text}")
        if i.kind in ("dsr", "dsw", "smem"): self.lgkm.append(i)
        if i.kind in ("dma", "vld", "vst"): self.vm.append(i)
        if i.text.startswith("s_waitcnt"):
            m = re.search(r"lgkmcnt\((\d+)\)", i.text)
            if m:
                n = int(m.group(1))
                if any(o.kind == "smem" for o in self.lgkm): assert n == 0, "smem outstanding needs lgkmcnt(0)"
                self.lgkm = self.lgkm[max(0, len(self.lgkm) - n):] if n else []
            m = re.search(r"vmcnt\((\d+)\)", i.text)
            if m:
                n = int(m.group(1))
                self.vm = self.vm[max(0, len(self.vm) - n):] if n else []
        self.ins.append(i)
        return i
    def lgkm_needed(self, regset):
        last = -1
        for k, o in enumerate(self.lgkm):
            if o.wr & regset: last = k
        if last < 0: return None
        if any(o.kind == "smem" for o in self.lgkm): return 0
        return min(14, len(self.lgkm) - 1 - last)
    def vm_needed(self, pred):
        last = -1
        for k, o in enumerate(self.vm):
            if pred(o): last = k
        if last < 0: return None
        return min(63, len(self.vm) - 1 - last)
    def wait_regs(self, *names):
        rs = set()
        for n in names: rs |= set(regs(n))
        n = self.lgkm_needed(rs)
        if n is not None: self.add(f"s_waitcnt lgkmcnt({n})")
        n = self.vm_needed(lambda o: o.kind == "vld" and (o.wr & rs))
        if n is not None: self.add(f"s_waitcnt vmcnt({n})")
    def text(self, lo=0, hi=None):
        out = []
        for i in self.ins[lo:hi]:
            out.append(i.text if i.kind == "label" else "  " + i.text)
        return "\n".join(out)
```

```python
import sys, argparse, math, struct, re
from asmlib import *

KNAME = "standalone__gqa_softmax__prompt_kernel"
NT = 32
MF = "v_mfma_f32_16x16x32_bf16"

S0, P0, NEGM, LS, KA, VA, DK, DV, OW, OR_, OS, Q0 = 16, 80, 144, 160, 168, 172, 180, 181, 182, 183, 184, 192
O0, VF, KF, L0, ONES = 0, 128, 192, 224, 240
def Sb(kb, qb): return S0 + (kb * 4 + qb) * 4
def Pf(buf, qb, sl): return P0 + buf * 32 + (qb * 2 + sl) * 4
def Qf(qb, s): return Q0 + (qb * 4 + s) * 4
def Ob(db, qb): return O0 + (db * 4 + qb) * 4
def Vf(db, sl): return VF + (db * 2 + sl) * 4
def Kf(buf, s): return KF + (buf * 4 + s) * 4
def K0f(kb, s): return VF + (kb * 4 + s) * 4
SQ, SK, SV, SO = 12, 16, 20, 24
SW, SOFFK, SOFFV, SCNT, SMODE, SX8000, SW4K = 28, 29, 30, 31, 32, 33, 34
SQB = 44
SC = 40
VBASE = 65536
FLAGS = 131072
QSTAGE = [3 * 16384, VBASE + 16384, VBASE + 2 * 16384, VBASE + 3 * 16384]
QBIAS = 4096

SIDX = 189
def f32bits(x): return struct.unpack("<I", struct.pack("<f", x))[0]
class Cfg: pass

def build_template(cfg):
    ones = cfg.ones
    n1 = (1 if cfg.smf else 2) * len(ones)
    G = 128 + n1
    pv0 = 64 + n1
    M = []
    for kb in range(4):
        for qb in range(4):
            order = range(4) if (qb % 2 == 0 or not cfg.bous) else range(3, -1, -1)
            for n, s in enumerate(order):
                M.append(("QK", kb, qb, s, n == 0))
    for qb in ones:
        for sl in range(1 if cfg.smf else 2):
            M.append(("ONE", qb, sl))
    for db in range(8):
        for qb in range(4):
            order = (0, 1) if (qb % 2 == 0 or not cfg.bous) else (1, 0)
            for sl in order:
                M.append(("PV", db, qb, sl))
    assert len(M) == G
    extra = cfg.extra if cfg.extra else list(range(112, 112 + n1))
    assert len(extra) == n1
    typ = []; nxt = "E"
    for g in range(G):
        if g in extra: typ.append("D")
        else:
            typ.append(nxt); nxt = "D" if nxt == "E" else "E"
    Eg = [g for g in range(G) if typ[g] == "E"]
    assert len(Eg) == 64 and typ[G - 1] == "D"
    mem = [None] * G
    for kb in range(4):
        base = 16 * (kb - 1)
        toff = 1
        if base < 0: base += G; toff = 2
        ds = [g for g in range(base + 1, base + 16) if typ[g] == "D" and g not in cfg.gpos and g not in cfg.empty][:4]
        assert ds[-1] <= base + 10
        for s in range(4):
            mem[ds[s]] = ("KR", toff, kb, s)
    gpos = cfg.gpos
    for n, g in enumerate(gpos):
        assert typ[g] == "D" and mem[g] is None, g
        mem[g] = ("DMAV", 2, n) if n < 4 else ("DMAK", cfg.kdepth, n - 4)
    gbar = G - 18
    free = [g for g in range(cfg.vstart, min(cfg.vend, G - 19)) if typ[g] == "D" and mem[g] is None and g not in cfg.empty]
    vreads = [(db, sl, u) for db in range(8) for sl in range(2) for u in range(2)]
    assert len(free) >= 32, len(free)
    vpos = {}
    for n, v in enumerate(vreads):
        g = free[(n * len(free)) // 32]
        assert g <= pv0 + 8 * v[0] - 6, (g, v)
        mem[g] = ("VR", 0) + v
        vpos.setdefault(v[0], []).append(g)
    cap = [0] * G
    for g in range(G):
        if typ[g] == "D": cap[g] = 1 if mem[g] else 2
    cap[G - 1] = 0
    for g in cfg.empty: cap[g] = 0
    if cfg.gexcl:
        for g in gpos: cap[g] = 0
    need = 32 + 16 * (4 - len(ones)) + 8
    if typ[gbar] == "D" and sum(cap) - cap[gbar] >= need: cap[gbar] = 0
    short = need - sum(cap)
    if short > 0:
        cand = [g for g in range(G) if typ[g] == "E"]
        for n in range(short):
            cap[cand[(n * len(cand)) // short]] += 1
    val = [[] for _ in range(G)]
    e0 = next(k for k, g in enumerate(Eg) if g >= cfg.lag)
    plain = []
    for k in range(64):
        idx = e0 + k
        g = Eg[idx % 64]; X = g + G * (idx // 64)
        b, r = k // 4, k % 4
        kb, qb = b // 4, b % 4
        val[g].append(("EXP", 1 - idx // 64, kb, qb, r))
        if qb not in ones: plain.append((X + 1, ("ADD", kb, qb, r)))
        if r % 2 == 1: plain.append((X + 1, ("CVT", kb, qb, r // 2)))
    used = [0] * G
    last = 0
    for ready, op in plain:
        X = max(ready, last)
        while used[X % G] >= cap[X % G]: X += 1
        used[X % G] += 1
        last = X
        kb, qb = op[1], op[2]
        assert X < G + 4 * (kb * 4 + qb), ("S overwritten", op, X)
        assert X < G + 60, ("P late", op, X)
        val[X % G].append((op[0], 1 - X // G) + op[1:])
    xk = 0
    for db in range(8):
        X = max(vpos[db]) + 1
        if xk < 4: X = max(X, 40)
        while used[X] >= cap[X]: X += 1
        assert X < G
        used[X] += 1
        s = None
        if xk < 4 and 40 <= X < G - 16: s = xk; xk += 1
        val[X].append(("XOR", 0, db, s))
    assert xk == 4
    sca = [None] * G
    for kb in range(1, 4): sca[16 * kb - 1] = ("WAITL", 16 * kb)
    sca[G - 2] = ("WAITL", G)
    for db in range(8): sca[pv0 + 8 * db - 1] = ("WAITL", pv0 + 8 * db)
    def put(g, item, step=-1):
        while sca[g % G] is not None: g += step
        sca[g % G] = item
        return g
    assert sca[gbar] is None and sca[gbar - 1] is None
    sca[gbar - 1] = ("WAITV",); sca[gbar] = ("BAR",)
    sca[G - 1] = ("BRANCH",)
    g1 = put(G - 3, ("CMP",))
    put(g1 - 1, ("CNT",))
    a = put(gpos[0] - 1, ("M0V",)); assert a >= 0
    a = put(gpos[4] - 1, ("M0K",)); assert a >= gpos[3]
    put(gpos[3] + 1, ("INCV",), +1)
    a = put(gpos[7] + 1, ("INCK",), +1); assert a < g1
    T = Cfg()
    T.G, T.pv0, T.M, T.mem, T.val, T.sca, T.typ = G, pv0, M, mem, val, sca, typ
    T.wrapped = [v for g in range(G) for v in val[g] if v[0] in ("EXP", "ADD", "CVT") and v[1] == 0]
    return T

def mfma_text(cfg, m, t):
    if m[0] == "QK":
        _, kb, qb, s, first = m
        d = R("v", Sb(kb, qb), 4)
        c = R("v", NEGM + 4 * qb, 4) if first else d
        return f"{MF} {d}, {R('a', Kf(kb % 2, s), 4)}, {R('v', Qf(qb, s), 4)}, {c}"
    if m[0] == "ONE":
        _, qb, sl = m
        d = R("a", L0 + 4 * qb, 4)
        if cfg.smf: return f"v_smfmac_f32_16x16x64_bf16 {d}, {R('a', ONES, 4)}, {R('v', Pf(t % 2, qb, 0), 8)}, v{SIDX}"
        a, b = R("a", ONES, 4), R("v", Pf(t % 2, qb, sl), 4)
        if cfg.ap: a, b = b, a
        return f"{MF} {d}, {a}, {b}, {d}"
    _, db, qb, sl = m
    d = R("a", Ob(db, qb), 4)
    a, b = R("a", Vf(db, sl), 4), R("v", Pf(t % 2, qb, sl), 4)
    if cfg.ap: a, b = b, a
    return f"{MF} {d}, {a}, {b}, {d}"

def kr_text(tt, kb, s): return f"ds_read_b128 {R('a', Kf(kb % 2, s), 4)}, v{KA + s} offset:{(tt % 2) * 16384 + kb * 1024}"
def vr_text(tt, db, sl, u): return f"ds_read_b64_tr_b16 {R('a', Vf(db, sl) + 2 * u, 2)}, v{VA + db} offset:{(tt % 2) * 16384 + (8 * sl + 4 * u) * 256}"
def dmak_text(cfg, j): return f"buffer_load_dwordx4 v{DK}, s[{SK}:{SK+3}], s{SOFFK} offen offset:{1024 * j}{cfg.pol} lds"
def dmav_text(cfg, j): return f"buffer_load_dwordx4 v{DV}, s[{SV}:{SV+3}], s{SOFFV} offen offset:{1024 * j}{cfg.pol} lds"
def sm_text(k, tt, kb, qb, r):
    x = Sb(kb, qb)
    if k == "EXP": return f"v_exp_f32 v{x + r}, v{x + r}"
    if k == "ADD":
        a = LS + 2 * qb + (r % 2)
        return f"v_add_f32 v{a}, v{a}, v{x + r}"
    d = Pf(tt % 2, qb, kb // 2) + (kb % 2) * 2 + r
    return f"v_cvt_pk_bf16_f32 v{d}, v{x + 2 * r}, v{x + 2 * r + 1}"

def emit_iter(st, cfg, T, t, forced, record):
    G = T.G
    for g in range(G):
        st.add(mfma_text(cfg, T.M[g], t))
        sc = T.sca[g]
        if cfg.itstamp and g == G - 8: st.add("s_memtime s[60:61]" if cfg.itstamp == 1 else "s_memrealtime s[60:61]")
        if cfg.itstamp and g == G - 1:
            st.add("v_writelane_b32 v188, s60, m0")
        if cfg.itstamp and g == G - 6: st.add("s_mov_b32 m0, s35")
        if cfg.itstamp and g == 2: st.add("s_add_u32 s35, s35, 1")
        if sc:
            k = sc[0]
            if k == "WAITL":
                tt, gg = (t, sc[1]) if sc[1] < G else (t + 1, 0)
                rs = set()
                n = 16 if T.M[gg][0] == "QK" else 8
                for x in range(gg, gg + n): rs |= parse(mfma_text(cfg, T.M[x], tt)).rd
                n = st.lgkm_needed(rs)
                record[(t, g)] = n
                if (t, g) in forced: n = forced[(t, g)]
                if n is not None: st.add(f"s_waitcnt lgkmcnt({n})")
            elif k == "WAITV":
                p = t + 2
                n = st.vm_needed(lambda o: o.tag in (("K", p), ("V", p - 1)))
                record[(t, g)] = n
                if (t, g) in forced: n = forced[(t, g)]
                if n is not None: st.add(f"s_waitcnt vmcnt({n})")
            elif k == "BAR":
                if not cfg.nobar: st.add("s_barrier")
            elif k == "M0V": st.add(f"s_pack_ll_b32_b16 m0, s{SOFFV}, 1")
            elif k == "M0K": st.add(f"s_pack_ll_b32_b16 m0, s{SOFFK}, 0")
            elif k == "INCV": st.add(f"s_addk_i32 s{SOFFV}, 0x4000")
            elif k == "INCK": st.add(f"s_addk_i32 s{SOFFK}, 0x4000")
            elif k == "CNT":
                if t % 2 == 0: st.add(f"s_sub_u32 s{SCNT}, s{SCNT}, 1")
            elif k == "CMP":
                if t % 2 == 0: st.add(f"s_cmp_lg_u32 s{SCNT}, 0")
            elif k == "BRANCH":
                if t % 2 == 0: st.add("s_cbranch_scc1 L_loop")
        me = T.mem[g]
        if me:
            k, tt = me[0], t + me[1]
            if k == "KR": st.add(kr_text(tt, me[2], me[3]))
            elif k == "VR": st.add(vr_text(tt, me[2], me[3], me[4]))
            elif cfg.nodma: pass
            elif k == "DMAK": st.add(dmak_text(cfg, me[2]), tag=("K", tt))
            elif k == "DMAV": st.add(dmav_text(cfg, me[2]), tag=("V", tt))
        for v in T.val[g]:
            if v[0] == "XOR":
                if t % 2 == 1: st.add(f"v_xor_b32 v{VA + v[2]}, s{SX8000}, v{VA + v[2]}")
                elif v[3] is not None: st.add(f"v_xor_b32 v{KA + v[3]}, s{SX8000}, v{KA + v[3]}")
            else:
                st.add(sm_text(v[0], t + v[1], v[2], v[3], v[4]))

def stamp(st, cfg, name):
    if not cfg.stamps: return
    if cfg.only and name not in cfg.only.split(","): return
    if not hasattr(st, "stampnames"): st.stampnames = []
    idx = len(st.stampnames); st.stampnames.append(str(name)); assert idx < 16
    st.add("s_waitcnt lgkmcnt(0)")
    st.add(f"s_memtime s[60:61]")
    st.add(f"s_memrealtime s[62:63]")
    st.add("s_waitcnt lgkmcnt(0)")
    st.add(f"s_mov_b32 s{64 + 2 * idx}, s60")
    st.add(f"s_mov_b32 s{65 + 2 * idx}, s62")

def dma_tile(st, cfg, which, t):
    A = st.add
    if which == "K":
        A(f"s_pack_ll_b32_b16 m0, s{SOFFK}, 0")
        for j in range(4): A(dmak_text(cfg, j), tag=("K", t))
        A(f"s_addk_i32 s{SOFFK}, 0x4000")
    else:
        A(f"s_pack_ll_b32_b16 m0, s{SOFFV}, 1")
        for j in range(4): A(dmav_text(cfg, j), tag=("V", t))
        A(f"s_addk_i32 s{SOFFV}, 0x4000")

def waitv(st, *tags):
    n = st.vm_needed(lambda o: o.tag in tags)
    if n is not None: st.add(f"s_waitcnt vmcnt({n})")

def xlane(st, op, x, y):
    for sw in ("v_permlane16_swap_b32", "v_permlane32_swap_b32"):
        st.add(f"v_mov_b32 v{y}, v{x}")
        st.add(f"{sw} v{x}, v{y}")
        st.add(f"{op} v{x}, v{x}, v{y}")

def softmax0(st, cfg, T, qb):
    W = set((v[0],) + tuple(v[2:]) for v in T.wrapped)
    for kb in range(4):
        for r in range(4):
            if ("EXP", kb, qb, r) not in W: st.add(sm_text("EXP", 0, kb, qb, r))
    for kb in range(4):
        for r in range(4):
            if qb not in cfg.ones and ("ADD", kb, qb, r) not in W: st.add(sm_text("ADD", 0, kb, qb, r))
        for r in range(2):
            if ("CVT", kb, qb, r) not in W: st.add(sm_text("CVT", 0, kb, qb, r))

def init_acc(st):
    A = st.add
    for i in range(128): A(f"v_accvgpr_write_b32 a{O0 + i}, 0")
    for i in range(16): A(f"v_accvgpr_write_b32 a{L0 + i}, 0")
    for i in range(8): A(f"v_mov_b32 v{LS + i}, 0")

def prologue(st, cfg, T):
    A = st.add
    A("s_cmp_ge_u32 s2, 0x100")
    A("s_cbranch_scc1 L_end")
    stamp(st, cfg, "start")
    A("s_load_dwordx8 s[4:11], s[0:1], 0")
    if cfg.stamps: A("s_load_dwordx2 s[56:57], s[0:1], %d" % (32 if cfg.dbg else 40))
    A("v_lshrrev_b32 v1, 6, v0")
    A("v_and_b32 v2, 63, v0")
    A(f"v_readfirstlane_b32 s{SW}, v1")
    A("v_and_b32 v3, 15, v2")
    A("v_lshrrev_b32 v4, 4, v2")
    if cfg.pf:
        A("s_getpc_b64 s[36:37]")
        A("L_pc:")
        A(f"v_min_u32 v5, (L_codeend-L_pc-4)/128, v0")
        A("v_lshlrev_b32 v5, 7, v5")
        A("v_mov_b32 v7, s37")
        A("v_add_co_u32 v6, vcc, s36, v5")
        A("v_addc_co_u32 v7, vcc, 0, v7, vcc")
        A("global_load_dword v185, v[6:7], off")
    A("s_bfe_u32 s50, s2, 0x20001")
    A("s_and_b32 s51, s2, 1")
    A("s_lshl_b32 s51, s51, 5")
    A("s_lshr_b32 s52, s2, 3")
    A("s_or_b32 s51, s51, s52")
    A("s_lshl_b32 s52, s50, 6")
    A("s_add_u32 s51, s51, s52")
    A("s_lshl_b32 s51, s51, 16")
    A("s_lshl_b32 s50, s50, 19")
    A(f"s_lshl_b32 s{SW4K}, s{SW}, 12")
    A(f"s_lshl_b32 s{SQB}, s{SW}, 14")
    if cfg.qmap == 0:
        for i in range(1, 4): A(f"s_add_u32 s{SQB + i}, s{SQB}, {4096 * i}")
    elif cfg.qmap == 1:
        A(f"s_lshr_b32 s53, s2, 3")
        A(f"s_add_u32 s53, s53, s{SW}")
        A(f"s_mov_b32 s54, s{SQB}")
        for i in range(4):
            A(f"s_add_u32 s55, s53, {i}")
            A(f"s_and_b32 s55, s55, 3")
            A(f"s_lshl_b32 s55, s55, 12")
            A(f"s_add_u32 s{SQB + i}, s54, s55")
    elif cfg.qmap == 2:
        for i in range(4): A(f"s_add_u32 s{SQB + i}, s{SW4K}, {16384 * i}")
    elif cfg.qmap == 3:
        A(f"s_lshr_b32 s53, s2, 3")
        for i in range(4):
            A(f"s_add_u32 s55, s53, {i}")
            A(f"s_and_b32 s55, s55, 3")
            A(f"s_lshl_b32 s55, s55, 14")
            A(f"s_add_u32 s{SQB + i}, s{SW4K}, s55")
    A(f"s_mov_b32 s{SOFFK}, s{SW4K}")
    A(f"s_mov_b32 s{SOFFV}, s{SW4K}")
    A(f"s_lshl_b32 s53, s{SW}, 2")
    A("v_add_u32 v5, s53, v4")
    A("v_xor_b32 v5, v5, v3")
    A("v_lshlrev_b32 v6, 8, v4")
    A(f"v_lshl_add_u32 v{DK}, v5, 4, v6")
    for j in range(4):
        A(f"v_add_u32 v5, {4 * j}, v4")
        A("v_xor_b32 v5, v5, v3")
        A(f"v_lshl_add_u32 v{8 + j}, v5, 4, v6")
    A("s_waitcnt lgkmcnt(0)")
    stamp(st, cfg, "kernarg")
    def srd(srd, p, off, n):
        A(f"s_add_u32 s{srd}, s{p}, s{off}")
        A(f"s_addc_u32 s{srd + 1}, s{p + 1}, 0")
        A(f"s_mov_b32 s{srd + 2}, {n}")
        A(f"s_mov_b32 s{srd + 3}, 0x20000")
    srd(SK, 6, 50, 524288)
    dma_tile(st, cfg, "K", 0)
    srd(SQ, 4, 51, 65536)
    def dmaq(qb):
        A(f"s_add_u32 m0, s{SW4K}, {QSTAGE[qb]}")
        for j in range(4):
            A(f"buffer_load_dwordx4 v{8 + j}, s[{SQ}:{SQ+3}], s{SQB + qb} offen offset:{1024 * j}{cfg.qpol} lds", tag=("Q", qb))
    def part2():
        srd(SV, 8, 50, 524288)
        srd(SO, 10, 51, 65536)
        A(f"s_and_b32 s53, s{SW}, 1")
        A("s_lshl_b32 s53, s53, 2")
        A("v_add_u32 v5, s53, v4")
        A("v_lshlrev_b32 v5, 1, v5")
        A("v_xor_b32 v5, v5, v3")
        A(f"v_lshl_add_u32 v{DV}, v5, 4, v6")
        A("v_lshrrev_b32 v5, 2, v3")
        A("v_lshlrev_b32 v5, 12, v5")
        A("v_and_b32 v6, 3, v3")
        A("v_lshl_add_u32 v5, v6, 8, v5")
        A(f"v_lshl_add_u32 v7, v3, 8, s{SW4K}")
        for s in range(4):
            A(f"v_add_u32 v6, {4 * s}, v4")
            A("v_xor_b32 v6, v6, v3")
            A(f"v_lshl_add_u32 v{KA + s}, v6, 4, v5")
            A(f"v_lshl_add_u32 v{12 + s}, v6, 4, v7")
            A(f"v_add_u32 v{12 + s}, {QSTAGE[0]}, v{12 + s}")
        A("v_lshrrev_b32 v5, 1, v4")
        A("v_xor_b32 v5, v5, v3")
        A("v_lshl_add_u32 v5, v5, 4, v7")
        A("v_and_b32 v6, 1, v4")
        A(f"v_lshl_add_u32 v{OW}, v6, 3, v5")
        A("v_xor_b32 v5, v3, v4")
        A("v_lshlrev_b32 v5, 4, v5")
        A("v_lshl_add_u32 v5, v4, 8, v5")
        A(f"v_add_u32 v{OR_}, s{SW4K}, v5")
        A(f"v_lshlrev_b32 v{OS}, 4, v2")
        A("v_lshrrev_b32 v5, 2, v3")
        A("v_and_b32 v6, 1, v4")
        A("v_lshl_add_u32 v6, v6, 2, v5")
        A("v_lshl_add_u32 v5, v4, 4, v5")
        A("v_lshlrev_b32 v5, 8, v5")
        A("v_and_b32 v7, 3, v3")
        A("v_lshl_add_u32 v5, v7, 3, v5")
        A(f"v_add_u32 v5, {VBASE}, v5")
        for db in range(8):
            A(f"v_xor_b32 v7, {db}, v6")
            A(f"v_lshl_add_u32 v{VA + db}, v7, 5, v5")
        if cfg.ap:
            A("v_lshlrev_b32 v5, 2, v4")
            A("v_sub_u32 v5, v3, v5")
            A("v_mov_b32 v6, 0x3f80")
            A("v_mov_b32 v7, 0x3f800000")
            for h in range(2):
                A(f"v_cmp_eq_u32 vcc, {2 * h}, v5")
                A(f"v_cndmask_b32 v{IDN + h}, 0, v6, vcc")
                A(f"v_cmp_eq_u32 vcc, {2 * h + 1}, v5")
                A(f"v_cndmask_b32 v{IDN + h}, v{IDN + h}, v7, vcc")
        init_acc(st)
        A("v_mov_b32 v5, 0x3f803f80")
        if cfg.zrow:
            assert not cfg.ap
            A(f"v_cmp_gt_u32 vcc, {2 if cfg.smf else 1}, v3")
            A("v_cndmask_b32 v5, 0, v5, vcc")
        if cfg.smf:
            assert not cfg.ap
            A("v_and_b32 v6, 1, v3")
            A("v_mov_b32 v7, 0xeeeeeeee")
            A(f"v_mov_b32 v{SIDX}, 0x44444444")
            A("v_cmp_eq_u32 vcc, 1, v6")
            A(f"v_cndmask_b32 v{SIDX}, v{SIDX}, v7, vcc")
        for i in range(4): A(f"v_accvgpr_write_b32 a{ONES + i}, v5")
        c = math.log2(math.e) / math.sqrt(128.0)
        A(f"s_mov_b32 s{SC}, {f32bits(c):#x}")
        A(f"s_mov_b32 s{SC + 1}, s{SC}")
        A(f"s_mov_b32 s{SC - 1}, 0xffff0000")
        A(f"s_mov_b32 s{SCNT}, 16")
        A(f"s_mov_b32 s{SMODE}, 0")
        if cfg.itstamp: A("s_mov_b32 s35, -1"); A("v_mov_b32 v188, 0")
        A(f"s_mov_b32 s{SX8000}, 0x8000")
    pend = [("K", 1), ("V", 0), ("K", 2), ("V", 1), ("K", 3)] if cfg.kdepth == 4 else [("K", 1), ("V", 0), ("V", 1), ("K", 2)]
    done_q = [0]
    def later(n):
        for _ in range(n):
            w, t = pend.pop(0)
            assert (w, t) not in (("V", 1), ("K", 3)) or done_q[0] >= 2
            dma_tile(st, cfg, w, t)
    for qb in range(cfg.qfirst): dmaq(qb)
    stamp(st, cfg, "dmaQa")
    part2()
    stamp(st, cfg, "init")
    for qb in range(cfg.qfirst, 4): dmaq(qb)
    later(cfg.sched[0])
    stamp(st, cfg, "dmaQb")
    if cfg.probe:
        waitv(st, ("K", 0)); stamp(st, cfg, "pK0")
        for qb in range(4):
            waitv(st, ("Q", qb)); stamp(st, cfg, f"pQ{qb}")
    def Rq(qb):
        waitv(st, ("Q", qb))
        stamp(st, cfg, f"Q{qb}landed")
        qoff = QSTAGE[qb] - QSTAGE[0]
        if qb == 3:
            qoff -= 16384
        for s in range(4):
            A(f"ds_read_b128 {R('v', Qf(qb, s), 4)}, v{12 + s} offset:{qoff}")
    def Aq(qb):
        for s in range(4):
            st.wait_regs(R('v', Qf(qb, s), 4))
            tb = P0 + 32 + 8 * s
            for i in range(4):
                x = Qf(qb, s) + i
                A(f"v_lshlrev_b32 v{tb + 2 * i}, 16, v{x}")
                A(f"v_and_b32 v{tb + 2 * i + 1}, s{SC - 1}, v{x}")
            for i in range(4):
                A(f"v_pk_mul_f32 v[{tb + 2 * i}:{tb + 2 * i + 1}], v[{tb + 2 * i}:{tb + 2 * i + 1}], s[{SC}:{SC + 1}]")
            for i in range(4):
                A(f"v_cvt_pk_bf16_f32 v{Qf(qb, s) + i}, v{tb + 2 * i}, v{tb + 2 * i + 1}")
        if qb == 2:
            for s in range(4): A(f"v_add_u32 v{12 + s}, 0x4000, v{12 + s}")
        done_q[0] = qb + 1
    def dma_list(n):
        L = []
        for _ in range(n):
            w, t = pend.pop(0)
            assert (w, t) not in (("V", 1), ("K", 3)) or done_q[0] >= 2
            so = SOFFK if w == "K" else SOFFV
            L.append(("s", f"s_pack_ll_b32_b16 m0, s{so}, {0 if w == 'K' else 1}", None))
            for j in range(4): L.append(("m", (dmak_text if w == "K" else dmav_text)(cfg, j), (w, t)))
            L.append(("s", f"s_addk_i32 s{so}, 0x4000", None))
        return L
    def Bq(qb, early, dmas):
        x = Sb(0, qb)
        mx = [f"v_max3_f32 v1, v{x}, v{x + 1}, v{x + 2}", f"v_max_f32 v1, v1, v{x + 3}"]
        for sw in ("v_permlane16_swap_b32", "v_permlane32_swap_b32"):
            mx += ["v_mov_b32 v5, v1", "-", f"{sw} v1, v5", "v_max_f32 v1, v1, v5"]
        mx += [f"v_sub_f32 v{NEGM + 4 * qb + i}, 0, v1" for i in range(4)]
        i = 0
        for kb in range(4):
            for s in range(4):
                d = R("v", Sb(kb, qb), 4)
                st.wait_regs(R('a', K0f(kb, s), 4))
                A(f"{MF} {d}, {R('a', K0f(kb, s), 4)}, {R('v', Qf(qb, s), 4)}, {'0' if s == 0 else d}")
                if i >= cfg.mxstart:
                    for _ in range(2):
                        if mx:
                            y = mx.pop(0)
                            if y == "-": break
                            A(y)
                elif dmas:
                    while dmas and dmas[0][0] == "s": A(dmas.pop(0)[1])
                    if dmas: _, y, tg = dmas.pop(0); A(y, tag=tg)
                elif early:
                    y = early.pop(0); A(y)
                    if not y.startswith("v_exp") and early and not early[0].startswith("v_exp"): A(early.pop(0))
                i += 1
        for _, y, tg in dmas: A(y, tag=tg)
        for y in mx:
            if y != "-": A(y)
        for y in early: A(y)
    def Eq(qb):
        tmp = Stream()
        x = [Sb(kb, qb) + r for kb in range(4) for r in range(4)]
        L = [f"v_pk_add_f32 v[{x[i]}:{x[i] + 1}], v[{x[i]}:{x[i] + 1}], v[{NEGM + 4 * qb}:{NEGM + 4 * qb + 1}]" for i in range(0, 16, 2)]
        softmax0(tmp, cfg, T, qb)
        return L + [i.text for i in tmp.ins if i.tag != "autonop"]
    def sync1():
        waitv(st, ("K", 1), ("V", 0))
        A("s_barrier")
        for s in range(4): A(kr_text(1, 0, s))
    Rq(0)
    waitv(st, ("K", 0))
    A("s_barrier")
    stamp(st, cfg, "B0")
    for kb in range(4):
        for s in range(4):
            A(f"ds_read_b128 {R('a', K0f(kb, s), 4)}, v{KA + s} offset:{kb * 1024}")
    Aq(0); Bq(0, [], dma_list(cfg.sched[1]))
    for y in Eq(0): A(y)
    Rq(1); Aq(1); Bq(1, [], dma_list(cfg.sched[2]))
    for y in Eq(1): A(y)
    for _, y, tg in dma_list(cfg.sched[3]): A(y, tag=tg)
    Rq(2); Aq(2); Bq(2, [], dma_list(cfg.sched[4]))
    e2 = Eq(2)
    Rq(3)
    for _ in range(cfg.e2first): A(e2.pop(0))
    Aq(3); Bq(3, e2, dma_list(len(pend)))
    sync1()
    for y in Eq(3): A(y)
    A("s_waitcnt lgkmcnt(0)")
    stamp(st, cfg, "mainstart")
    A("s_branch L_entry")

IDN = 186
def rl(cfg, qb, i): return NEGM + 4 * qb + (i if cfg.ap else 0)

def tail(st, cfg, T):
    A = st.add
    t = NT - 1
    if cfg.twice:
        A("s_mov_b32 s35, 2")
        A("L_twice:")
        A("s_waitcnt vmcnt(0)")
        A("s_barrier")
    stamp(st, cfg, "loopend")
    vr = [vr_text(t, db, sl, u) for db in range(8) for sl in range(2) for u in range(2)]
    wr = [sm_text(v[0], t, v[2], v[3], v[4]) for v in T.wrapped]
    def pv(qb):
        return [mfma_text(cfg, ("PV", db, qb, sl), t) for db in range(8) for sl in ((0, 1) if db % 2 == 0 else (1, 0))]
    def emit(x):
        i = parse(x)
        if i.kind == "vst" and (cfg.nostore == 1):
            n = st.lgkm_needed(i.rd)
            if n is not None: A(f"s_waitcnt lgkmcnt({n})")
            return
        n = st.lgkm_needed(i.rd | i.wr)
        if n is not None: A(f"s_waitcnt lgkmcnt({n})")
        A(x)
    def lpre(qb):
        L = []
        if qb in cfg.ones:
            for i in range(4 if cfg.ap else 1): L.append(f"v_accvgpr_read_b32 v{rl(cfg, qb, i)}, a{L0 + 4 * qb + i}")
            x = rl(cfg, qb, 0)
            if cfg.smf:
                L.append(f"v_accvgpr_read_b32 v{x + 1}, a{L0 + 4 * qb + 1}")
                L.append(f"v_add_f32 v{x}, v{x}, v{x + 1}")
            if cfg.zrow:
                for sw in ("v_permlane16_swap_b32", "v_permlane32_swap_b32"):
                    L.append(f"v_mov_b32 v{x + 1}, v{x}")
                    L.append(f"{sw} v{x}, v{x + 1}")
                    L.append(f"v_add_f32 v{x}, v{x}, v{x + 1}")
        else:
            assert not cfg.ap
            x = rl(cfg, qb, 0)
            L.append(f"v_add_f32 v{x}, v{LS + 2 * qb}, v{LS + 2 * qb + 1}")
            for sw in ("v_permlane16_swap_b32", "v_permlane32_swap_b32"):
                L.append(f"v_mov_b32 v{x + 1}, v{x}")
                L.append(f"{sw} v{x}, v{x + 1}")
                L.append(f"v_add_f32 v{x}, v{x}, v{x + 1}")
        for i in range(4 if cfg.ap else 1): L.append(f"v_rcp_f32 v{rl(cfg, qb, i)}, v{rl(cfg, qb, i)}")
        return L
    def epi(qb, packed):
        L = []
        tb = S0 + (qb % 2) * 32
        pk = P0 + ((t + 1) % 2) * 32 + (qb % 2) * 16
        def fin(db):
            x = tb + 4 * db
            return [f"v_cvt_pk_bf16_f32 v{pk + 2 * db + i}, v{x + 2 * i}, v{x + 2 * i + 1}" for i in range(2)] + \
                   [f"ds_write_b64 v{VA + db}, v[{pk + 2 * db}:{pk + 2 * db + 1}] offset:{qb * 16384}"]
        for db in range(8):
            x = tb + 4 * db
            for i in range(4): L.append(f"v_accvgpr_read_b32 v{x + i}, a{Ob(db, qb) + i}")
            if packed:
                for i in (0, 2):
                    r = rl(cfg, qb, i)
                    L.append(f"v_pk_mul_f32 v[{x + i}:{x + i + 1}], v[{x + i}:{x + i + 1}], v[{r}:{r + 1}]" + ("" if cfg.ap else " op_sel_hi:[1,0]"))
            else:
                for i in range(4): L.append(f"v_mul_f32 v{x + i}, v{x + i}, v{rl(cfg, qb, i)}")
            if cfg.ap:
                for i in range(2): L.append(f"v_cvt_pk_bf16_f32 v{pk + 2 * db + i}, v{x + 2 * i}, v{x + 2 * i + 1}")
                if db > 0: L += fin(db - 1)
                L.append(f"v_mfma_f32_16x16x16_bf16 v[{x}:{x + 3}], v[{pk + 2 * db}:{pk + 2 * db + 1}], v[{IDN}:{IDN + 1}], 0")
            else:
                L += fin(db)
        if cfg.ap: L += fin(7)
        if packed and cfg.wgrp > 1:
            W = [x for x in L if x.startswith("ds_write")]; V = [x for x in L if not x.startswith("ds_write")]
            per = len(V) // 8; L = []
            for k in range(0, 8, cfg.wgrp): L += V[k * per:(k + cfg.wgrp) * per] + W[k:k + cfg.wgrp]
        for n in range(4): L.append(f"ds_read_b128 v[{tb + 4 * n}:{tb + 4 * n + 3}], v{KA + n} offset:{qb * 16384 + n * 1024}")
        St = [f"buffer_store_dwordx4 v[{tb + 4 * n}:{tb + 4 * n + 3}], v{OS}, s[{SO}:{SO+3}], s{SQB + qb} offen offset:{n * 1024}{cfg.opol}" for n in range(4)]
        return L, St
    addr = [f"v_xor_b32 v{VA + db}, {32 * db}, v{OW}" for db in range(8)] + [f"v_xor_b32 v{KA + n}, {64 * n}, v{OR_}" for n in range(4)]
    for _ in range(8): A(vr.pop(0))
    for x in wr: A(x)
    fill = []
    mf = [mfma_text(cfg, ("ONE", qb, sl), t) for qb in cfg.ones for sl in range(1 if cfg.smf else 2)] + pv(0)
    n1 = len(mf) - 16
    rest = lpre(0) + addr + ["s_waitcnt vmcnt(0)"]
    for i, m in enumerate(mf):
        emit(m)
        if vr:
            A(vr.pop(0))
            if vr and i >= n1 - 2: A(vr.pop(0))
        else:
            for _ in range(2):
                if rest: emit(rest.pop(0))
    prev = []
    for qb in range(4):
        L, St = epi(qb, qb == 3 and not cfg.ap)
        L = rest + L; rest = []
        for n, x in enumerate(prev): L.insert(cfg.stdelay + n * (cfg.ststep + 1), x)
        prev = St
        if qb < 3:
            L = L[:-7] + lpre(qb + 1) + L[-7:]
            mf = pv(qb + 1)
            ismem = lambda x: x.startswith("ds_") or x.startswith("buffer_")
            pos = [i for i, x in enumerate(L) if ismem(x) and not (i and (ismem(L[i - 1]) or "mfma" in L[i - 1]))]
            while len(pos) < 16:
                e = [0] + pos
                runs = [(e[k + 1] - e[k], k) for k in range(len(pos))]
                ln, k = max(runs)
                pos.append(e[k] + (ln + 1) // 2 if k else 0); pos = sorted(set(pos))
            assert len(pos) == 16
            for n, m in enumerate(mf): L.insert(pos[n] + n, m)
        stamp(st, cfg, f"stg{qb}")
        for x in L: emit(x)
    stamp(st, cfg, "stg4")
    for x in prev: emit(x)

def finish(st, cfg, T):
    A = st.add
    stamp(st, cfg, "stored")
    if cfg.twice:
        A("s_sub_u32 s35, s35, 1")
        A("s_cmp_lg_u32 s35, 0")
        A("s_cbranch_scc1 L_twice")
    if cfg.fallback:
        A(f"s_cmp_lg_u32 s{SMODE}, 0")
        A("s_cbranch_scc1 L_done")
        A(f"s_mov_b32 s36, {f32bits(2.0 ** -40):#x}")
        rr = sorted(set(rl(cfg, qb, i) for qb in range(4) for i in range(4)))
        A(f"v_min_f32 v3, v{rr[0]}, v{rr[1]}")
        for i in range(2, len(rr), 2): A(f"v_min3_f32 v3, v3, v{rr[i]}, v{rr[i + 1]}")
        A("v_cmp_nle_f32 vcc, s36, v3")
        A("s_cmp_lg_u64 vcc, 0")
        A("s_cselect_b32 s37, 1, 0")
        A("v_mov_b32 v1, s37")
        A(f"s_lshl_b32 s38, s{SW}, 2")
        A(f"s_add_u32 s38, s38, {FLAGS}")
        A("v_mov_b32 v3, s38")
        A("ds_write_b32 v3, v1")
        A("s_waitcnt lgkmcnt(0)")
        A("s_barrier")
        A(f"v_mov_b32 v3, {FLAGS}")
        A("ds_read_b128 v[4:7], v3")
        A("s_waitcnt lgkmcnt(0)")
        A("v_or_b32 v4, v4, v5")
        A("v_or3_b32 v4, v4, v6, v7")
        A("v_readfirstlane_b32 s37, v4")
        A("s_cmp_lg_u32 s37, 0")
        A("s_cbranch_scc1 L_fallback")
        A("L_done:")
    if cfg.stamps:
        A("s_waitcnt vmcnt(0)")
        stamp(st, cfg, "drained")
        if cfg.dbg:
            nm = st.stampnames
            def sr(n, w): return 64 + 2 * nm.index(n) + w
            A("s_mov_b32 s8, s56"); A("s_mov_b32 s9, s57"); A("s_mov_b32 s10, 0x100"); A("s_mov_b32 s11, 0x20000")
            A(f"s_not_b32 s36, s{sr('start', 1)}")
            A(f"s_mov_b32 s37, s{sr('drained', 1)}")
            A(f"s_sub_u32 s38, s{sr('loopend', 0)}, s{sr('mainstart', 0)}")
            A(f"s_sub_u32 s39, s{sr('loopend', 1)}, s{sr('mainstart', 1)}")
            A(f"s_not_b32 s40, s39")
            A(f"s_mov_b32 s41, s{sr('mainstart', 1)}")
            A(f"s_mov_b32 s42, s{sr('loopend', 1)}")
            A("s_mov_b64 exec, 1")
            A("v_mov_b32 v1, 0")
            for k in range(7):
                A(f"v_mov_b32 v4, s{36 + k}")
                st.ins.append(I(f"buffer_atomic_umax v4, v1, s[8:11], 0 offen offset:{4 * k}", "ctl"))
                A("s_waitcnt vmcnt(0)")
            A("s_endpgm")
        A("s_mov_b32 s8, s56"); A("s_mov_b32 s9, s57"); A("s_mov_b32 s10, 0x100000"); A("s_mov_b32 s11, 0x20000")
        A("s_lshl_b32 s3, s2, 2"); A(f"s_add_u32 s3, s3, s{SW}"); A("s_lshl_b32 s3, s3, 7")
        A("v_mov_b32 v1, s3")
        for k in range((len(st.stampnames) + 1) // 2):
            for i in range(4): A(f"v_mov_b32 v{4 + i}, s{64 + 4 * k + i}")
            A(f"buffer_store_dwordx4 v[4:7], v1, s[8:11], 0 offen offset:{16 * k}")
            A("s_nop 1")
    if cfg.itstamp:
        A("s_lshl_b32 s3, s3, 1")
        A("s_add_u32 s3, s3, 0x40000")
        A("v_and_b32 v1, 63, v0")
        A("v_lshl_add_u32 v1, v1, 2, s3")
        A("buffer_store_dword v188, v1, s[8:11], 0 offen")
    A("L_end:")
    A("s_endpgm")
    A("L_codeend:")

def fallback(cfg, T):
    st = Stream(); A = st.add
    A("L_fallback:")
    A("s_waitcnt vmcnt(0) lgkmcnt(0)")
    A(f"s_mov_b32 s{SMODE}, 1")
    A("v_and_b32 v2, 63, v0")
    A("v_and_b32 v3, 15, v2")
    A("v_lshrrev_b32 v4, 4, v2")
    A("v_lshrrev_b32 v5, 2, v3")
    A("v_lshlrev_b32 v5, 12, v5")
    A("v_and_b32 v6, 3, v3")
    A("v_lshl_add_u32 v5, v6, 8, v5")
    for s in range(4):
        A(f"v_add_u32 v6, {4 * s}, v4")
        A("v_xor_b32 v6, v6, v3")
        A(f"v_lshl_add_u32 v{KA + s}, v6, 4, v5")
    A("v_lshrrev_b32 v5, 2, v3")
    A("v_and_b32 v6, 1, v4")
    A("v_lshl_add_u32 v6, v6, 2, v5")
    A("v_lshl_add_u32 v5, v4, 4, v5")
    A("v_lshlrev_b32 v5, 8, v5")
    A("v_and_b32 v7, 3, v3")
    A("v_lshl_add_u32 v5, v7, 3, v5")
    A(f"v_add_u32 v5, {VBASE}, v5")
    for db in range(8):
        A(f"v_xor_b32 v7, {db}, v6")
        A(f"v_lshl_add_u32 v{VA + db}, v7, 5, v5")
    for qb in range(4): A(f"v_mov_b32 v{8 + qb}, 0xff800000")
    A(f"s_mov_b32 s{SOFFK}, s{SW4K}")
    A(f"s_mov_b32 s{SCNT}, {NT}")
    A("L_fb1:")
    A("s_barrier")
    A(f"s_mov_b32 m0, s{SW4K}")
    for j in range(4): A(dmak_text(cfg, j))
    A(f"s_addk_i32 s{SOFFK}, 0x4000")
    A("s_waitcnt vmcnt(0)")
    A("s_barrier")
    for kb in range(4):
        for s in range(4):
            A(f"ds_read_b128 {R('a', K0f(kb, s), 4)}, v{KA + s} offset:{kb * 1024}")
    A("s_waitcnt lgkmcnt(0)")
    for qb in range(4):
        for kb in range(4):
            for s in range(4):
                d = R("v", Sb(kb, qb), 4)
                A(f"{MF} {d}, {R('a', K0f(kb, s), 4)}, {R('v', Qf(qb, s), 4)}, {'0' if s == 0 else d}")
    A("s_nop 7")
    for qb in range(4):
        x = [Sb(kb, qb) + r for kb in range(4) for r in range(4)]
        for i in range(0, 16, 2): A(f"v_max3_f32 v{8 + qb}, v{8 + qb}, v{x[i]}, v{x[i + 1]}")
    A(f"s_sub_u32 s{SCNT}, s{SCNT}, 1")
    A(f"s_cmp_lg_u32 s{SCNT}, 0")
    A("s_cbranch_scc1 L_fb1")
    for qb in range(4):
        xlane(st, "v_max_f32", 8 + qb, 5)
        for i in range(4): A(f"v_sub_f32 v{NEGM + 4 * qb + i}, 0, v{8 + qb}")
    init_acc(st)
    A(f"s_mov_b32 s{SOFFK}, s{SW4K}")
    A(f"s_mov_b32 s{SOFFV}, s{SW4K}")
    A(f"s_mov_b32 s{SCNT}, 16")
    A("s_barrier")
    for w, t in (("K", 0), ("K", 1), ("V", 0), ("K", 2), ("V", 1), ("K", 3))[:cfg.kdepth + 2]: dma_tile(st, cfg, w, t)
    A("s_waitcnt vmcnt(0)")
    A("s_barrier")
    for kb in range(4):
        for s in range(4):
            A(f"ds_read_b128 {R('a', K0f(kb, s), 4)}, v{KA + s} offset:{kb * 1024}")
    A("s_waitcnt lgkmcnt(0)")
    for qb in range(4):
        for kb in range(4):
            for s in range(4):
                d = R("v", Sb(kb, qb), 4)
                c = R("v", NEGM + 4 * qb, 4) if s == 0 else d
                A(f"{MF} {d}, {R('a', K0f(kb, s), 4)}, {R('v', Qf(qb, s), 4)}, {c}")
    A("s_nop 7")
    for qb in range(4): softmax0(st, cfg, T, qb)
    A("s_barrier")
    for s in range(4): A(kr_text(1, 0, s))
    A("s_waitcnt lgkmcnt(0)")
    A("s_nop 7")
    A("s_branch L_entry")
    return st

def flat(cfg, T, forced):
    st = Stream(); rec = {}; marks = {}
    prologue(st, cfg, T)
    for t in range(0, NT - 1):
        marks[t] = len(st.ins)
        emit_iter(st, cfg, T, t, forced, rec)
    marks[NT - 1] = len(st.ins)
    tail(st, cfg, T)
    finish(st, cfg, T)
    return st, rec, marks

def generate(cfg):
    T = build_template(cfg)
    st, rec, marks = flat(cfg, T, {})
    forced = {}; cls = {}
    for (t, g), n in rec.items(): cls.setdefault((t % 2, g), []).append(n)
    for (t, g), n in rec.items():
        v = [x for x in cls[(t % 2, g)] if x is not None]
        forced[(t, g)] = min(v) if v else None
    st, rec, marks = flat(cfg, T, forced)
    its = [st.text(marks[t], marks[t + 1]) for t in range(NT - 1)]
    for t in range(2, NT - 1): assert its[t] == its[t - 2], f"loop not periodic at {t}"
    nl = [x for x in st.nops_inserted if marks[1] <= x[0] < marks[3]]
    sys.stderr.write(f"G={T.G} loop body instrs={marks[3]-marks[1]} nops in loop: {nl}; total auto nops {len(st.nops_inserted)}\n")
    out = []
    out.append(open("standalone__gqa_softmax__prompt.s.ref").read().split("; Override")[0].rstrip())
    if cfg.stamps: out.append("; STAMPS " + " ".join(st.stampnames))
    out.append(f"; @launch grid=(256,1,1) block=(256,1,1) lds={cfg.lds}")
    out.append('.amdgcn_target "amdgcn-amd-amdhsa--gfx950"\n.text')
    out.append(f".globl {KNAME}\n.p2align 8\n.type {KNAME},@function\n{KNAME}:")
    out.append(st.text(0, marks[0]))
    out.append(".p2align 6")
    out.append("L_loop:")
    out.append(its[1])
    out.append("L_entry:")
    out.append(its[0])
    out.append(st.text(marks[NT - 1]))
    if cfg.fallback: out.append(fallback(cfg, T).text())
    out.append(f'''.section .rodata,"a"
.p2align 6
.amdhsa_kernel {KNAME}
  .amdhsa_next_free_vgpr 512
  .amdhsa_next_free_sgpr 102
  .amdhsa_accum_offset 256
  .amdhsa_group_segment_fixed_size 0
  .amdhsa_kernarg_size 48
  .amdhsa_user_sgpr_count 2
  .amdhsa_user_sgpr_kernarg_segment_ptr 1
  .amdhsa_system_sgpr_workgroup_id_x 1
.end_amdhsa_kernel''')
    return "\n".join(out) + "\n", T

if __name__ == "__main__":
    ap = argparse.ArgumentParser()
    ap.add_argument("-o", default="/dev/stdout")
    ap.add_argument("--ones", default="0,1,2,3")
    for n, d in (("ap", 0), ("bous", 1), ("lag", 8), ("stamps", 0), ("vstart", 9), ("vend", 200), ("show", 0), ("nobar", 0),
                 ("nodma", 0), ("pf", 0), ("qfirst", 2), ("hid", 8), ("twice", 0), ("kdepth", 4), ("wgrp", 4), ("mxstart", 7), ("e2first", 17), ("smf", 0), ("zrow", 0), ("tailgap", 12), ("gexcl", 0), ("grp", 1), ("nostore", 0), ("dbg", 0), ("itstamp", 0), ("probe", 0), ("qmap", 0), ("stdelay", 20), ("ststep", 8), ("fallback", 1)):
        ap.add_argument("--" + n, type=int, default=d)
    ap.add_argument("--gpos", default="11,27,43,57,71,85,99,109")
    ap.add_argument("--only", default="")
    ap.add_argument("--extra", default="")
    ap.add_argument("--empty", default="")
    ap.add_argument("--sched", default="0,1,1,3,0")
    ap.add_argument("--pol", default="")
    ap.add_argument("--qpol", default="")
    ap.add_argument("--opol", default="")
    a = ap.parse_args()
    cfg = Cfg()
    cfg.__dict__.update(vars(a))
    cfg.ones = [int(x) for x in a.ones.split(",") if x != ""]
    cfg.gpos = [int(x) for x in a.gpos.split(",")]
    cfg.extra = [int(x) for x in a.extra.split(",") if x != ""]
    cfg.empty = [int(x) for x in a.empty.split(",") if x != ""]
    cfg.sched = [int(x) for x in a.sched.split(",")]
    for n in ("pol", "qpol", "opol"):
        v = getattr(cfg, n).replace("+", " ")
        setattr(cfg, n, " " + v if v else "")
    cfg.lds = 131072 + 64
    txt, T = generate(cfg)
    open(a.o, "w").write(txt)
    if a.show:
        for g in range(T.G):
            sys.stderr.write(f"{g:3d} {T.typ[g]} {T.M[g]} | {T.sca[g]} | {T.mem[g]} | {T.val[g]}\n")
```

```python
import sys, argparse, math, struct, re
from asmlib import *

KNAME = "standalone__gqa_softmax__prompt_kernel"
NT = 32
MF = "v_mfma_f32_16x16x32_bf16"

S0, P0, NEGM, LS, KA, VA, DK, DV, OW, OR_, OS, Q0 = 16, 80, 144, 160, 168, 172, 180, 181, 182, 183, 184, 192
O0, VF, KF, L0, ONES = 0, 128, 192, 224, 240
def Sb(kb, qb): return S0 + (kb * 4 + qb) * 4
def Pf(buf, qb, sl): return P0 + buf * 32 + (qb * 2 + sl) * 4
def Qf(qb, s): return Q0 + (qb * 4 + s) * 4
def Ob(db, qb): return O0 + (db * 4 + qb) * 4
def Vf(db, sl): return VF + (db * 2 + sl) * 4
def Kf(buf, s): return KF + (buf * 4 + s) * 4
def K0f(kb, s): return VF + (kb * 4 + s) * 4
SQ, SK, SV, SO = 12, 16, 20, 24
SW, SOFFK, SOFFV, SCNT, SMODE, SX8000, SW4K = 28, 29, 30, 31, 32, 33, 34
SQB = 44
SC = 40
VBASE = 65536
FLAGS = 131072
QSTAGE = [3 * 16384, VBASE + 16384, VBASE + 2 * 16384, VBASE + 3 * 16384]
QBIAS = 4096

SIDX = 189
def f32bits(x): return struct.unpack("<I", struct.pack("<f", x))[0]
class Cfg: pass

def build_template(cfg):
    ones = cfg.ones
    n1 = (1 if cfg.smf else 2) * len(ones)
    G = 128 + n1
    pv0 = 64 + n1
    M = []
    for kb in range(4):
        for qb in range(4):
            order = range(4) if (qb % 2 == 0 or not cfg.bous) else (range(3, -1, -1) if cfg.bous == 1 else (2, 3, 0, 1))
            for n, s in enumerate(order):
                M.append(("QK", kb, qb, s, n == 0))
    for qb in ones:
        for sl in range(1 if cfg.smf else 2):
            M.append(("ONE", qb, sl))
    for db in range(8):
        for qb in range(4):
            order = (0, 1) if (qb % 2 == 0 or not cfg.pvb) else (1, 0)
            for sl in order:
                M.append(("PV", db, qb, sl))
    assert len(M) == G
    if cfg.pat:
        F = set(range(64, pv0)) | {G - 18, G - 1} | set(cfg.empty)
        typ = []; nxt = "E"
        for g in range(G):
            if g in F: typ.append("D"); nxt = "E"
            else:
                typ.append(nxt); nxt = "D" if nxt == "E" else "E"
        ne = typ.count("E")
        cand = [g for g in cfg.flip]
        while ne < 64:
            g = cand.pop(0); assert typ[g] == "D" and g not in F; typ[g] = "E"; ne += 1
        while ne > 64:
            g = cand.pop(0); assert typ[g] == "E"; typ[g] = "D"; ne -= 1
    else:
        extra = cfg.extra if cfg.extra else list(range(112, 112 + n1))
        assert len(extra) == n1
        typ = []; nxt = "E"
        for g in range(G):
            if g in extra: typ.append("D")
            else:
                typ.append(nxt); nxt = "D" if nxt == "E" else "E"
    Eg = [g for g in range(G) if typ[g] == "E"]
    assert len(Eg) == 64 and typ[G - 1] == "D"
    mem = [None] * G
    for kb in range(4):
        base = 16 * (kb - 1)
        toff = 1
        if base < 0: base += G; toff = 2
        ds = [g for g in range(base + 1, base + 16) if typ[g] == "D" and g not in cfg.gpos and g not in cfg.empty][:4]
        assert ds[-1] <= base + 10
        for s in range(4):
            mem[ds[s]] = ("KR", toff, kb, s)
    gpos = cfg.gpos
    for n, g in enumerate(gpos):
        assert typ[g] == "D" and mem[g] is None, g
        mem[g] = ("DMAV", 2, n) if n < 4 else ("DMAK", cfg.kdepth, n - 4)
    gbar = G - 18
    free = [g for g in range(cfg.vstart, min(cfg.vend, G - 19)) if typ[g] == "D" and mem[g] is None and g not in cfg.empty]
    vreads = [(db, sl, u) for db in range(8) for sl in range(2) for u in range(2)]
    assert len(free) >= 32, len(free)
    vpos = {}
    for n, v in enumerate(vreads):
        g = free[(n * len(free)) // 32]
        assert g <= pv0 + 8 * v[0] - 6, (g, v)
        mem[g] = ("VR", 0) + v
        vpos.setdefault(v[0], []).append(g)
    cap = [0] * G
    for g in range(G):
        if typ[g] == "D": cap[g] = 1 if mem[g] else 2
    cap[G - 1] = 0
    if cfg.pat:
        for g in range(64, pv0): cap[g] -= 1
    for g in cfg.empty: cap[g] = 0
    if cfg.gexcl:
        for g in gpos: cap[g] = 0
    need = 32 + 16 * (4 - len(ones)) + 8
    if typ[gbar] == "D" and sum(cap) - cap[gbar] >= need: cap[gbar] = 0
    short = need - sum(cap)
    if short > 0:
        cand = [g for g in range(G) if typ[g] == "E"]
        for n in range(short):
            cap[cand[(n * len(cand)) // short]] += 1
    val = [[] for _ in range(G)]
    e0 = next(k for k, g in enumerate(Eg) if g >= cfg.lag)
    plain = []
    for k in range(64):
        idx = e0 + k
        g = Eg[idx % 64]; X = g + G * (idx // 64)
        b, r = k // 4, k % 4
        kb, qb = b // 4, b % 4
        val[g].append(("EXP", 1 - idx // 64, kb, qb, r))
        if qb not in ones: plain.append((X + 1, ("ADD", kb, qb, r)))
        if r % 2 == 1: plain.append((X + 1, ("CVT", kb, qb, r // 2)))
    used = [0] * G
    last = 0
    for ready, op in plain:
        X = max(ready, last)
        while used[X % G] >= cap[X % G]: X += 1
        used[X % G] += 1
        last = X
        kb, qb = op[1], op[2]
        assert X < G + 4 * (kb * 4 + qb), ("S overwritten", op, X)
        assert X < G + 60, ("P late", op, X)
        val[X % G].append((op[0], 1 - X // G) + op[1:])
    xk = 0
    for db in range(8):
        X = max(vpos[db]) + 1
        if xk < 4: X = max(X, 40)
        while used[X] >= cap[X]: X += 1
        assert X < G
        used[X] += 1
        s = None
        if xk < 4 and 40 <= X < G - 16: s = xk; xk += 1
        val[X].append(("XOR", 0, db, s))
    assert xk == 4
    sca = [None] * G
    for kb in range(1, 4): sca[16 * kb - 1] = ("WAITL", 16 * kb)
    sca[G - 2] = ("WAITL", G)
    for db in range(8): sca[pv0 + 8 * db - 1] = ("WAITL", pv0 + 8 * db)
    def put(g, item, step=-1):
        while sca[g % G] is not None: g += step
        sca[g % G] = item
        return g
    assert sca[gbar] is None and sca[gbar - 1] is None
    sca[gbar - 1] = ("WAITV",); sca[gbar] = ("BAR",)
    sca[G - 1] = ("BRANCH",)
    g1 = put(G - 3, ("CMP",))
    put(g1 - 1, ("CNT",))
    a = put(gpos[0] - 1, ("M0V",)); assert a >= 0
    a = put(gpos[4] - 1, ("M0K",)); assert a >= gpos[3]
    put(gpos[3] + 1, ("INCV",), +1)
    a = put(gpos[7] + 1, ("INCK",), +1); assert a < g1
    T = Cfg()
    T.G, T.pv0, T.M, T.mem, T.val, T.sca, T.typ = G, pv0, M, mem, val, sca, typ
    T.wrapped = [v for g in range(G) for v in val[g] if v[0] in ("EXP", "ADD", "CVT") and v[1] == 0]
    return T

def mfma_text(cfg, m, t):
    if m[0] == "QK":
        _, kb, qb, s, first = m
        d = R("v", Sb(kb, qb), 4)
        c = R("v", NEGM + 4 * qb, 4) if first else d
        return f"{MF} {d}, {R('a', Kf(kb % 2, s), 4)}, {R('v', Qf(qb, s), 4)}, {c}"
    if m[0] == "ONE":
        _, qb, sl = m
        d = R("a", L0 + 4 * qb, 4)
        if cfg.smf: return f"v_smfmac_f32_16x16x64_bf16 {d}, {R('a', ONES, 4)}, {R('v', Pf(t % 2, qb, 0), 8)}, v{SIDX}"
        a, b = R("a", ONES, 4), R("v", Pf(t % 2, qb, sl), 4)
        if cfg.ap: a, b = b, a
        return f"{MF} {d}, {a}, {b}, {d}"
    _, db, qb, sl = m
    d = R("a", Ob(db, qb), 4)
    a, b = R("a", Vf(db, sl), 4), R("v", Pf(t % 2, qb, sl), 4)
    if cfg.ap: a, b = b, a
    return f"{MF} {d}, {a}, {b}, {d}"

def kr_text(tt, kb, s): return f"ds_read_b128 {R('a', Kf(kb % 2, s), 4)}, v{KA + s} offset:{(tt % 2) * 16384 + kb * 1024}"
def vr_text(tt, db, sl, u): return f"ds_read_b64_tr_b16 {R('a', Vf(db, sl) + 2 * u, 2)}, v{VA + db} offset:{(tt % 2) * 16384 + (8 * sl + 4 * u) * 256}"
def dmak_text(cfg, j): return f"buffer_load_dwordx4 v{DK}, s[{SK}:{SK+3}], s{SOFFK} offen offset:{1024 * j}{cfg.pol} lds"
def dmav_text(cfg, j): return f"buffer_load_dwordx4 v{DV}, s[{SV}:{SV+3}], s{SOFFV} offen offset:{1024 * j}{cfg.pol} lds"
def sm_text(k, tt, kb, qb, r):
    x = Sb(kb, qb)
    if k == "EXP": return f"v_exp_f32 v{x + r}, v{x + r}"
    if k == "ADD":
        a = LS + 2 * qb + (r % 2)
        return f"v_add_f32 v{a}, v{a}, v{x + r}"
    d = Pf(tt % 2, qb, kb // 2) + (kb % 2) * 2 + r
    return f"v_cvt_pk_bf16_f32 v{d}, v{x + 2 * r}, v{x + 2 * r + 1}"

def emit_iter(st, cfg, T, t, forced, record):
    G = T.G
    for g in range(G):
        st.add(mfma_text(cfg, T.M[g], t))
        sc = T.sca[g]
        if cfg.itstamp and g == G - 8: st.add("s_memtime s[60:61]" if cfg.itstamp == 1 else "s_memrealtime s[60:61]")
        if cfg.itstamp and g == G - 1:
            st.add("v_writelane_b32 v188, s60, m0")
        if cfg.itstamp and g == G - 6: st.add("s_mov_b32 m0, s35")
        if cfg.itstamp and g == 2: st.add("s_add_u32 s35, s35, 1")
        if sc:
            k = sc[0]
            if k == "WAITL":
                tt, gg = (t, sc[1]) if sc[1] < G else (t + 1, 0)
                rs = set()
                n = 16 if T.M[gg][0] == "QK" else 8
                for x in range(gg, gg + n): rs |= parse(mfma_text(cfg, T.M[x], tt)).rd
                n = st.lgkm_needed(rs)
                record[(t, g)] = n
                if (t, g) in forced: n = forced[(t, g)]
                if n is not None: st.add(f"s_waitcnt lgkmcnt({n})")
            elif k == "WAITV":
                p = t + 2
                n = st.vm_needed(lambda o: o.tag in (("K", p), ("V", p - 1)))
                record[(t, g)] = n
                if (t, g) in forced: n = forced[(t, g)]
                if n is not None: st.add(f"s_waitcnt vmcnt({n})")
            elif k == "BAR":
                if not cfg.nobar: st.add("s_barrier")
            elif k == "M0V": st.add(f"s_pack_ll_b32_b16 m0, s{SOFFV}, 1")
            elif k == "M0K": st.add(f"s_pack_ll_b32_b16 m0, s{SOFFK}, 0")
            elif k == "INCV": st.add(f"s_addk_i32 s{SOFFV}, 0x4000")
            elif k == "INCK": st.add(f"s_addk_i32 s{SOFFK}, 0x4000")
            elif k == "CNT":
                if t % 2 == cfg.bpar: st.add(f"s_sub_u32 s{SCNT}, s{SCNT}, 1")
            elif k == "CMP":
                if t % 2 == cfg.bpar: st.add(f"s_cmp_lg_u32 s{SCNT}, 0")
            elif k == "BRANCH":
                if t % 2 == cfg.bpar: st.add("s_cbranch_scc1 L_loop")
        me = T.mem[g]
        if me:
            k, tt = me[0], t + me[1]
            if k == "KR": st.add(kr_text(tt, me[2], me[3]))
            elif k == "VR": st.add(vr_text(tt, me[2], me[3], me[4]))
            elif cfg.nodma: pass
            elif k == "DMAK": st.add(dmak_text(cfg, me[2]), tag=("K", tt))
            elif k == "DMAV": st.add(dmav_text(cfg, me[2]), tag=("V", tt))
        for v in T.val[g]:
            if v[0] == "XOR":
                if t % 2 == 1: st.add(f"v_xor_b32 v{VA + v[2]}, s{SX8000}, v{VA + v[2]}")
                elif v[3] is not None: st.add(f"v_xor_b32 v{KA + v[3]}, s{SX8000}, v{KA + v[3]}")
            else:
                st.add(sm_text(v[0], t + v[1], v[2], v[3], v[4]))

def stamp(st, cfg, name):
    if not cfg.stamps: return
    if cfg.only and name not in cfg.only.split(","): return
    if not hasattr(st, "stampnames"): st.stampnames = []
    idx = len(st.stampnames); st.stampnames.append(str(name)); assert idx < 16
    st.add("s_waitcnt lgkmcnt(0)")
    st.add(f"s_memtime s[60:61]")
    st.add(f"s_memrealtime s[62:63]")
    st.add("s_waitcnt lgkmcnt(0)")
    st.add(f"s_mov_b32 s{64 + 2 * idx}, s60")
    st.add(f"s_mov_b32 s{65 + 2 * idx}, s62")

def dma_tile(st, cfg, which, t):
    A = st.add
    if which == "K":
        A(f"s_pack_ll_b32_b16 m0, s{SOFFK}, 0")
        for j in range(4): A(dmak_text(cfg, j), tag=("K", t))
        A(f"s_addk_i32 s{SOFFK}, 0x4000")
    else:
        A(f"s_pack_ll_b32_b16 m0, s{SOFFV}, 1")
        for j in range(4): A(dmav_text(cfg, j), tag=("V", t))
        A(f"s_addk_i32 s{SOFFV}, 0x4000")

def waitv(st, *tags):
    n = st.vm_needed(lambda o: o.tag in tags)
    if n is not None: st.add(f"s_waitcnt vmcnt({n})")

def xlane(st, op, x, y):
    for sw in ("v_permlane16_swap_b32", "v_permlane32_swap_b32"):
        st.add(f"v_mov_b32 v{y}, v{x}")
        st.add(f"{sw} v{x}, v{y}")
        st.add(f"{op} v{x}, v{x}, v{y}")

def softmax0(st, cfg, T, qb):
    W = set((v[0],) + tuple(v[2:]) for v in T.wrapped)
    for kb in range(4):
        for r in range(4):
            if ("EXP", kb, qb, r) not in W: st.add(sm_text("EXP", 0, kb, qb, r))
    for kb in range(4):
        for r in range(4):
            if qb not in cfg.ones and ("ADD", kb, qb, r) not in W: st.add(sm_text("ADD", 0, kb, qb, r))
        for r in range(2):
            if ("CVT", kb, qb, r) not in W: st.add(sm_text("CVT", 0, kb, qb, r))

def init_acc(st, cfg):
    A = st.add
    for i in range(128): A(f"v_accvgpr_write_b32 a{O0 + i}, 0")
    for i in range(16): A(f"v_accvgpr_write_b32 a{L0 + i}, 0")
    if len(cfg.ones) < 4:
        for i in range(8): A(f"v_mov_b32 v{LS + i}, 0")

def prologue(st, cfg, T):
    A = st.add
    A("s_cmp_ge_u32 s2, 0x100")
    A("s_cbranch_scc1 L_end")
    stamp(st, cfg, "start")
    A("s_load_dwordx8 s[4:11], s[0:1], 0")
    if cfg.stamps: A("s_load_dwordx2 s[56:57], s[0:1], %d" % (32 if cfg.dbg else 40))
    A("v_lshrrev_b32 v1, 6, v0")
    A("v_and_b32 v2, 63, v0")
    A(f"v_readfirstlane_b32 s{SW}, v1")
    A("v_and_b32 v3, 15, v2")
    A("v_lshrrev_b32 v4, 4, v2")
    if cfg.pf:
        A("s_getpc_b64 s[36:37]")
        A("L_pc:")
        A(f"v_min_u32 v5, (L_codeend-L_pc-4)/128, v0")
        A("v_lshlrev_b32 v5, 7, v5")
        A("v_mov_b32 v7, s37")
        A("v_add_co_u32 v6, vcc, s36, v5")
        A("v_addc_co_u32 v7, vcc, 0, v7, vcc")
        A("global_load_dword v185, v[6:7], off")
    A("s_bfe_u32 s50, s2, 0x20001")
    A("s_and_b32 s51, s2, 1")
    A("s_lshl_b32 s51, s51, 5")
    A("s_lshr_b32 s52, s2, 3")
    A("s_or_b32 s51, s51, s52")
    A("s_lshl_b32 s52, s50, 6")
    A("s_add_u32 s51, s51, s52")
    A("s_lshl_b32 s51, s51, 16")
    A("s_lshl_b32 s50, s50, 19")
    A(f"s_lshl_b32 s{SW4K}, s{SW}, 12")
    A(f"s_lshl_b32 s{SQB}, s{SW}, 14")
    if cfg.qmap == 0:
        for i in range(1, 4): A(f"s_add_u32 s{SQB + i}, s{SQB}, {4096 * i}")
    elif cfg.qmap == 1:
        A(f"s_lshr_b32 s53, s2, 3")
        A(f"s_add_u32 s53, s53, s{SW}")
        A(f"s_mov_b32 s54, s{SQB}")
        for i in range(4):
            A(f"s_add_u32 s55, s53, {i}")
            A(f"s_and_b32 s55, s55, 3")
            A(f"s_lshl_b32 s55, s55, 12")
            A(f"s_add_u32 s{SQB + i}, s54, s55")
    elif cfg.qmap == 2:
        for i in range(4): A(f"s_add_u32 s{SQB + i}, s{SW4K}, {16384 * i}")
    elif cfg.qmap == 3:
        A(f"s_lshr_b32 s53, s2, 3")
        for i in range(4):
            A(f"s_add_u32 s55, s53, {i}")
            A(f"s_and_b32 s55, s55, 3")
            A(f"s_lshl_b32 s55, s55, 14")
            A(f"s_add_u32 s{SQB + i}, s{SW4K}, s55")
    A(f"s_mov_b32 s{SOFFK}, s{SW4K}")
    A(f"s_mov_b32 s{SOFFV}, s{SW4K}")
    A(f"s_lshl_b32 s53, s{SW}, 2")
    A("v_add_u32 v5, s53, v4")
    A("v_xor_b32 v5, v5, v3")
    A("v_lshlrev_b32 v6, 8, v4")
    A(f"v_lshl_add_u32 v{DK}, v5, 4, v6")
    for j in range(4):
        A(f"v_add_u32 v5, {4 * j}, v4")
        A("v_xor_b32 v5, v5, v3")
        A(f"v_lshl_add_u32 v{8 + j}, v5, 4, v6")
    A("s_waitcnt lgkmcnt(0)")
    stamp(st, cfg, "kernarg")
    def srd(srd, p, off, n):
        A(f"s_add_u32 s{srd}, s{p}, s{off}")
        A(f"s_addc_u32 s{srd + 1}, s{p + 1}, 0")
        A(f"s_mov_b32 s{srd + 2}, {n}")
        A(f"s_mov_b32 s{srd + 3}, 0x20000")
    srd(SK, 6, 50, 524288)
    dma_tile(st, cfg, "K", 0)
    srd(SQ, 4, 51, 65536)
    def dmaq(qb):
        A(f"s_add_u32 m0, s{SW4K}, {QSTAGE[qb]}")
        for j in range(4):
            A(f"buffer_load_dwordx4 v{8 + j}, s[{SQ}:{SQ+3}], s{SQB + qb} offen offset:{1024 * j}{cfg.qpol} lds", tag=("Q", qb))
    def part2():
        srd(SV, 8, 50, 524288)
        srd(SO, 10, 51, 65536)
        A(f"s_and_b32 s53, s{SW}, 1")
        A("s_lshl_b32 s53, s53, 2")
        A("v_add_u32 v5, s53, v4")
        A("v_lshlrev_b32 v5, 1, v5")
        A("v_xor_b32 v5, v5, v3")
        A(f"v_lshl_add_u32 v{DV}, v5, 4, v6")
        A("v_lshrrev_b32 v5, 2, v3")
        A("v_lshlrev_b32 v5, 12, v5")
        A("v_and_b32 v6, 3, v3")
        A("v_lshl_add_u32 v5, v6, 8, v5")
        A(f"v_lshl_add_u32 v7, v3, 8, s{SW4K}")
        for s in range(4):
            A(f"v_add_u32 v6, {4 * s}, v4")
            A("v_xor_b32 v6, v6, v3")
            A(f"v_lshl_add_u32 v{KA + s}, v6, 4, v5")
            A(f"v_lshl_add_u32 v{12 + s}, v6, 4, v7")
            A(f"v_add_u32 v{12 + s}, {QSTAGE[0]}, v{12 + s}")
        A("v_lshrrev_b32 v5, 1, v4")
        A("v_xor_b32 v5, v5, v3")
        A("v_lshl_add_u32 v5, v5, 4, v7")
        A("v_and_b32 v6, 1, v4")
        A(f"v_lshl_add_u32 v{OW}, v6, 3, v5")
        A("v_xor_b32 v5, v3, v4")
        A("v_lshlrev_b32 v5, 4, v5")
        A("v_lshl_add_u32 v5, v4, 8, v5")
        A(f"v_add_u32 v{OR_}, s{SW4K}, v5")
        if cfg.pkt >= 2:
            for db in range(8): A(f"v_xor_b32 v{WA + db}, {32 * db}, v{OW}")
            for k in (3, 2, 0, 1): A(f"v_xor_b32 v{RA[k]}, {64 * k}, v{OR_}")
        A(f"v_lshlrev_b32 v{OS}, 4, v2")
        A("v_lshrrev_b32 v5, 2, v3")
        A("v_and_b32 v6, 1, v4")
        A("v_lshl_add_u32 v6, v6, 2, v5")
        A("v_lshl_add_u32 v5, v4, 4, v5")
        A("v_lshlrev_b32 v5, 8, v5")
        A("v_and_b32 v7, 3, v3")
        A("v_lshl_add_u32 v5, v7, 3, v5")
        A(f"v_add_u32 v5, {VBASE}, v5")
        for db in range(8):
            A(f"v_xor_b32 v7, {db}, v6")
            A(f"v_lshl_add_u32 v{VA + db}, v7, 5, v5")
        if cfg.ap:
            A("v_lshlrev_b32 v5, 2, v4")
            A("v_sub_u32 v5, v3, v5")
            A("v_mov_b32 v6, 0x3f80")
            A("v_mov_b32 v7, 0x3f800000")
            for h in range(2):
                A(f"v_cmp_eq_u32 vcc, {2 * h}, v5")
                A(f"v_cndmask_b32 v{IDN + h}, 0, v6, vcc")
                A(f"v_cmp_eq_u32 vcc, {2 * h + 1}, v5")
                A(f"v_cndmask_b32 v{IDN + h}, v{IDN + h}, v7, vcc")
        init_acc(st, cfg)
        A("v_mov_b32 v5, 0x3f803f80")
        if cfg.zrow:
            assert not cfg.ap
            A(f"v_cmp_gt_u32 vcc, {2 if cfg.smf else 1}, v3")
            A("v_cndmask_b32 v5, 0, v5, vcc")
        if cfg.smf:
            assert not cfg.ap
            A("v_and_b32 v6, 1, v3")
            A("v_mov_b32 v7, 0xeeeeeeee")
            A(f"v_mov_b32 v{SIDX}, 0x44444444")
            A("v_cmp_eq_u32 vcc, 1, v6")
            A(f"v_cndmask_b32 v{SIDX}, v{SIDX}, v7, vcc")
        for i in range(4): A(f"v_accvgpr_write_b32 a{ONES + i}, v5")
        c = math.log2(math.e) / math.sqrt(128.0)
        A(f"s_mov_b32 s{SC}, {f32bits(c):#x}")
        A(f"s_mov_b32 s{SC + 1}, s{SC}")
        A(f"s_mov_b32 s{SC - 1}, 0xffff0000")
        A(f"s_mov_b32 s{SCNT}, {cfg.trips}")
        A(f"s_mov_b32 s{SMODE}, 0")
        if cfg.itstamp: A("s_mov_b32 s35, -1"); A("v_mov_b32 v188, 0")
        A(f"s_mov_b32 s{SX8000}, 0x8000")
    pend = [("K", 1), ("V", 0), ("K", 2), ("V", 1), ("K", 3)] if cfg.kdepth == 4 else [("K", 1), ("V", 0), ("V", 1), ("K", 2)]
    done_q = [0]
    def later(n):
        for _ in range(n):
            w, t = pend.pop(0)
            assert (w, t) not in (("V", 1), ("K", 3)) or done_q[0] >= 2
            dma_tile(st, cfg, w, t)
    for qb in range(cfg.qfirst): dmaq(qb)
    stamp(st, cfg, "dmaQa")
    part2()
    stamp(st, cfg, "init")
    for qb in range(cfg.qfirst, 4): dmaq(qb)
    later(cfg.sched[0])
    stamp(st, cfg, "dmaQb")
    if cfg.probe:
        waitv(st, ("K", 0)); stamp(st, cfg, "pK0")
        for qb in range(4):
            waitv(st, ("Q", qb)); stamp(st, cfg, f"pQ{qb}")
    def Rq(qb):
        waitv(st, ("Q", qb))
        stamp(st, cfg, f"Q{qb}landed")
        qoff = QSTAGE[qb] - QSTAGE[0]
        if qb == 3:
            qoff -= 16384
        for s in range(4):
            A(f"ds_read_b128 {R('v', Qf(qb, s), 4)}, v{12 + s} offset:{qoff}")
    def Aq(qb):
        for s in range(4):
            st.wait_regs(R('v', Qf(qb, s), 4))
            tb = P0 + 32 + 8 * s
            for i in range(4):
                x = Qf(qb, s) + i
                A(f"v_lshlrev_b32 v{tb + 2 * i}, 16, v{x}")
                A(f"v_and_b32 v{tb + 2 * i + 1}, s{SC - 1}, v{x}")
            for i in range(4):
                A(f"v_pk_mul_f32 v[{tb + 2 * i}:{tb + 2 * i + 1}], v[{tb + 2 * i}:{tb + 2 * i + 1}], s[{SC}:{SC + 1}]")
            for i in range(4):
                A(f"v_cvt_pk_bf16_f32 v{Qf(qb, s) + i}, v{tb + 2 * i}, v{tb + 2 * i + 1}")
        if qb == 2:
            for s in range(4): A(f"v_add_u32 v{12 + s}, 0x4000, v{12 + s}")
        done_q[0] = qb + 1
    def dma_list(n):
        L = []
        for _ in range(n):
            w, t = pend.pop(0)
            assert (w, t) not in (("V", 1), ("K", 3)) or done_q[0] >= 2
            so = SOFFK if w == "K" else SOFFV
            L.append(("s", f"s_pack_ll_b32_b16 m0, s{so}, {0 if w == 'K' else 1}", None))
            for j in range(4): L.append(("m", (dmak_text if w == "K" else dmav_text)(cfg, j), (w, t)))
            L.append(("s", f"s_addk_i32 s{so}, 0x4000", None))
        return L
    def Bq(qb, early, dmas):
        x = Sb(0, qb)
        mx = [f"v_max3_f32 v1, v{x}, v{x + 1}, v{x + 2}", f"v_max_f32 v1, v1, v{x + 3}"]
        for sw in ("v_permlane16_swap_b32", "v_permlane32_swap_b32"):
            mx += ["v_mov_b32 v5, v1", "-", f"{sw} v1, v5", "v_max_f32 v1, v1, v5"]
        mx += [f"v_sub_f32 v{NEGM + 4 * qb + i}, 0, v1" for i in range(4)]
        i = 0
        for kb in range(4):
            for s in range(4):
                d = R("v", Sb(kb, qb), 4)
                st.wait_regs(R('a', K0f(kb, s), 4))
                A(f"{MF} {d}, {R('a', K0f(kb, s), 4)}, {R('v', Qf(qb, s), 4)}, {'0' if s == 0 else d}")
                if i >= cfg.mxstart:
                    for _ in range(2):
                        if mx:
                            y = mx.pop(0)
                            if y == "-": break
                            A(y)
                elif dmas:
                    while dmas and dmas[0][0] == "s": A(dmas.pop(0)[1])
                    if dmas: _, y, tg = dmas.pop(0); A(y, tag=tg)
                elif early:
                    y = early.pop(0); A(y)
                    if not y.startswith("v_exp") and early and not early[0].startswith("v_exp"): A(early.pop(0))
                i += 1
        for _, y, tg in dmas: A(y, tag=tg)
        for y in mx:
            if y != "-": A(y)
        for y in early: A(y)
    def Eq(qb):
        tmp = Stream()
        x = [Sb(kb, qb) + r for kb in range(4) for r in range(4)]
        L = [f"v_pk_add_f32 v[{x[i]}:{x[i] + 1}], v[{x[i]}:{x[i] + 1}], v[{NEGM + 4 * qb}:{NEGM + 4 * qb + 1}]" for i in range(0, 16, 2)]
        softmax0(tmp, cfg, T, qb)
        return L + [i.text for i in tmp.ins if i.tag != "autonop"]
    def sync1():
        waitv(st, ("K", 1), ("V", 0))
        A("s_barrier")
        for s in range(4): A(kr_text(1, 0, s))
    Rq(0)
    waitv(st, ("K", 0))
    A("s_barrier")
    stamp(st, cfg, "B0")
    for kb in range(4):
        for s in range(4):
            A(f"ds_read_b128 {R('a', K0f(kb, s), 4)}, v{KA + s} offset:{kb * 1024}")
    Aq(0); Bq(0, [], dma_list(cfg.sched[1]))
    for y in Eq(0): A(y)
    Rq(1); Aq(1); Bq(1, [], dma_list(cfg.sched[2]))
    for y in Eq(1): A(y)
    for _, y, tg in dma_list(cfg.sched[3]): A(y, tag=tg)
    Rq(2); Aq(2); Bq(2, [], dma_list(cfg.sched[4]))
    e2 = Eq(2)
    Rq(3)
    for _ in range(cfg.e2first): A(e2.pop(0))
    Aq(3); Bq(3, e2, dma_list(len(pend)))
    sync1()
    for y in Eq(3): A(y)
    A("s_waitcnt lgkmcnt(0)")
    stamp(st, cfg, "mainstart")
    A("s_branch L_entry")

IDN = 186
def rl(cfg, qb, i): return NEGM + 4 * qb + (i if cfg.ap else 0)

def tail(st, cfg, T):
    A = st.add
    t = NT - 1
    if cfg.twice:
        A("s_mov_b32 s35, 2")
        A("L_twice:")
        A("s_waitcnt vmcnt(0)")
        A("s_barrier")
    stamp(st, cfg, "loopend")
    vr = [vr_text(t, db, sl, u) for db in range(8) for sl in range(2) for u in range(2)]
    wr = [sm_text(v[0], t, v[2], v[3], v[4]) for v in T.wrapped]
    def pv(qb):
        return [mfma_text(cfg, ("PV", db, qb, sl), t) for db in range(8) for sl in ((0, 1) if db % 2 == 0 else (1, 0))]
    def emit(x):
        i = parse(x)
        if i.kind == "vst" and (cfg.nostore == 1):
            n = st.lgkm_needed(i.rd)
            if n is not None: A(f"s_waitcnt lgkmcnt({n})")
            return
        n = st.lgkm_needed(i.rd | i.wr)
        if n is not None: A(f"s_waitcnt lgkmcnt({n})")
        A(x)
    def lpre(qb):
        L = []
        if qb in cfg.ones:
            for i in range(4 if cfg.ap else 1): L.append(f"v_accvgpr_read_b32 v{rl(cfg, qb, i)}, a{L0 + 4 * qb + i}")
            x = rl(cfg, qb, 0)
            if cfg.smf:
                L.append(f"v_accvgpr_read_b32 v{x + 1}, a{L0 + 4 * qb + 1}")
                L.append(f"v_add_f32 v{x}, v{x}, v{x + 1}")
            if cfg.zrow:
                for sw in ("v_permlane16_swap_b32", "v_permlane32_swap_b32"):
                    L.append(f"v_mov_b32 v{x + 1}, v{x}")
                    L.append(f"{sw} v{x}, v{x + 1}")
                    L.append(f"v_add_f32 v{x}, v{x}, v{x + 1}")
        else:
            assert not cfg.ap
            x = rl(cfg, qb, 0)
            L.append(f"v_add_f32 v{x}, v{LS + 2 * qb}, v{LS + 2 * qb + 1}")
            for sw in ("v_permlane16_swap_b32", "v_permlane32_swap_b32"):
                L.append(f"v_mov_b32 v{x + 1}, v{x}")
                L.append(f"{sw} v{x}, v{x + 1}")
                L.append(f"v_add_f32 v{x}, v{x}, v{x + 1}")
        for i in range(4 if cfg.ap else 1): L.append(f"v_rcp_f32 v{rl(cfg, qb, i)}, v{rl(cfg, qb, i)}")
        return L
    def epi(qb, packed, last):
        L = []
        tb = S0 + (qb % 2) * 32
        pk = P0 + ((t + 1) % 2) * 32 + (qb % 2) * 16
        def fin(db):
            x = tb + 4 * db
            return [f"v_cvt_pk_bf16_f32 v{pk + 2 * db + i}, v{x + 2 * i}, v{x + 2 * i + 1}" for i in range(2)] + \
                   [f"ds_write_b64 v{VA + db}, v[{pk + 2 * db}:{pk + 2 * db + 1}] offset:{qb * 16384}"]
        for db in range(8):
            x = tb + 4 * db
            for i in range(4): L.append(f"v_accvgpr_read_b32 v{x + i}, a{Ob(db, qb) + i}")
            if packed:
                for i in (0, 2):
                    r = rl(cfg, qb, i)
                    L.append(f"v_pk_mul_f32 v[{x + i}:{x + i + 1}], v[{x + i}:{x + i + 1}], v[{r}:{r + 1}]" + ("" if cfg.ap else " op_sel_hi:[1,0]"))
            else:
                for i in range(4): L.append(f"v_mul_f32 v{x + i}, v{x + i}, v{rl(cfg, qb, i)}")
            if cfg.ap:
                for i in range(2): L.append(f"v_cvt_pk_bf16_f32 v{pk + 2 * db + i}, v{x + 2 * i}, v{x + 2 * i + 1}")
                if db > 0: L += fin(db - 1)
                L.append(f"v_mfma_f32_16x16x16_bf16 v[{x}:{x + 3}], v[{pk + 2 * db}:{pk + 2 * db + 1}], v[{IDN}:{IDN + 1}], 0")
            else:
                L += fin(db)
        if cfg.ap: L += fin(7)
        if last and packed and cfg.wgrp > 1:
            W = [x for x in L if x.startswith("ds_write")]; V = [x for x in L if not x.startswith("ds_write")]
            per = len(V) // 8; L = []
            for k in range(0, 8, cfg.wgrp): L += V[k * per:(k + cfg.wgrp) * per] + W[k:k + cfg.wgrp]
        for n in range(4): L.append(f"ds_read_b128 v[{tb + 4 * n}:{tb + 4 * n + 3}], v{KA + n} offset:{qb * 16384 + n * 1024}")
        St = [f"buffer_store_dwordx4 v[{tb + 4 * n}:{tb + 4 * n + 3}], v{OS}, s[{SO}:{SO+3}], s{SQB + qb} offen offset:{n * 1024}{cfg.opol}" for n in range(4)]
        return L, St
    addr = [f"v_xor_b32 v{VA + db}, {32 * db}, v{OW}" for db in range(8)] + [f"v_xor_b32 v{KA + n}, {64 * n}, v{OR_}" for n in range(4)]
    for _ in range(8): A(vr.pop(0))
    for x in wr: A(x)
    fill = []
    mf = [mfma_text(cfg, ("ONE", qb, sl), t) for qb in cfg.ones for sl in range(1 if cfg.smf else 2)] + pv(0)
    n1 = len(mf) - 16
    rest = lpre(0) + addr + ["s_waitcnt vmcnt(0)"]
    for i, m in enumerate(mf):
        emit(m)
        if vr:
            A(vr.pop(0))
            if vr and i >= n1 - 2: A(vr.pop(0))
        else:
            for _ in range(2):
                if rest: emit(rest.pop(0))
    prev = []
    for qb in range(4):
        L, St = epi(qb, (qb == 3 or cfg.pkt) and not cfg.ap, qb == 3)
        L = rest + L; rest = []
        for n, x in enumerate(prev): L.insert(cfg.stdelay + n * (cfg.ststep + 1), x)
        prev = St
        if qb < 3:
            L = L[:-7] + lpre(qb + 1) + L[-7:]
            mf = pv(qb + 1)
            ismem = lambda x: x.startswith("ds_") or x.startswith("buffer_")
            if cfg.pkt:
                stores = [x for x in L if x.startswith("buffer_")]
                L2 = []; k = 0; nw = 0
                for x in L:
                    if x.startswith("buffer_"): continue
                    if x.startswith("ds_write"):
                        L2 += [mf[k], x, mf[k + 1]]; k += 2; nw += 1
                        if stores and nw >= 2 and nw % 2 == 0 or (stores and nw == 7): L2.append(stores.pop(0))
                    else: L2.append(x)
                assert not stores and k == 16
                L = L2; mf = []
            pos = [i for i, x in enumerate(L) if ismem(x) and not (i and (ismem(L[i - 1]) or "mfma" in L[i - 1]))]
            while len(pos) < 16 and mf:
                e = [0] + pos
                runs = [(e[k + 1] - e[k], k) for k in range(len(pos))]
                ln, k = max(runs)
                pos.append(e[k] + (ln + 1) // 2 if k else 0); pos = sorted(set(pos))
            for n, m in enumerate(mf): L.insert(pos[n] + n, m)
        stamp(st, cfg, f"stg{qb}")
        for x in L: emit(x)
    stamp(st, cfg, "stg4")
    for x in prev: emit(x)

WA = LS
RA = [182, 183, 190, 191]
def tail2(st, cfg, T):
    A = st.add
    t = NT - 1
    assert cfg.smf and not cfg.ap and len(cfg.ones) == 4
    stamp(st, cfg, "loopend")
    vr = [vr_text(t, db, sl, u) for db in range(8) for sl in range(2) for u in range(2)]
    wr = [sm_text(v[0], t, v[2], v[3], v[4]) for v in T.wrapped]
    assert all(v[3] >= 2 for v in T.wrapped)
    def emit(x):
        i = parse(x)
        n = st.lgkm_needed(i.rd | i.wr)
        if n is not None: A(f"s_waitcnt lgkmcnt({n})")
        if i.kind == "vst" and cfg.nostore: return
        A(x)
    def pv(n):
        qb, db = n // 8, n % 8
        return [mfma_text(cfg, ("PV", db, qb, sl), t) for sl in ((0, 1) if db % 2 == 0 else (1, 0))]
    def one(qb): return mfma_text(cfg, ("ONE", qb, 0), t)
    def lpre(qb):
        x = rl(cfg, qb, 0)
        L = [f"v_accvgpr_read_b32 v{x}, a{L0 + 4 * qb}", f"v_accvgpr_read_b32 v{x + 1}, a{L0 + 4 * qb + 1}", f"v_add_f32 v{x}, v{x}, v{x + 1}"]
        if cfg.zrow:
            for sw in ("v_permlane16_swap_b32", "v_permlane32_swap_b32"):
                L += [f"v_mov_b32 v{x + 1}, v{x}", f"{sw} v{x}, v{x + 1}", f"v_add_f32 v{x}, v{x}, v{x + 1}"]
        return L + [f"v_rcp_f32 v{x}, v{x}"]
    LAG = cfg.tlag
    for _ in range(4): A(vr.pop(0))
    emit(one(0))
    for _ in range(4): A(vr.pop(0))
    emit(one(1))
    for _ in range(4): A(vr.pop(0))
    A("s_waitcnt vmcnt(0)")
    for x in wr: A(x)
    for x in lpre(0): emit(x)
    for n in range(LAG):
        m = pv(n)
        emit(m[0]); A(vr.pop(0)); A(vr.pop(0)); emit(m[1]); A(vr.pop(0)); A(vr.pop(0))
    emit(one(2));
    for x in lpre(1): emit(x)
    emit(one(3))
    stores = []
    for n in range(32):
        qb, db = n // 8, n % 8
        tb = S0 + (qb % 2) * 32
        pk = P0 + ((t + 1) % 2) * 32 + (qb % 2) * 16
        x = tb + 4 * db; r = rl(cfg, qb, 0)
        for i in range(4): emit(f"v_accvgpr_read_b32 v{x + i}, a{Ob(db, qb) + i}")
        if db == 4 and qb in (1, 2):
            for y in lpre(qb + 1): emit(y)
        if cfg.fallback and cfg.early and n == 21:
            rr = [rl(cfg, q, 0) for q in range(4)]
            A(f"s_mov_b32 s36, {f32bits(2.0 ** -40):#x}")
            A(f"v_min_f32 v3, v{rr[0]}, v{rr[1]}")
            A(f"s_lshl_b32 s38, s{SW}, 2")
            A(f"v_min3_f32 v3, v3, v{rr[2]}, v{rr[3]}")
            A(f"s_add_u32 s38, s38, {FLAGS}")
            A("v_cmp_nle_f32 vcc, s36, v3")
            A(f"v_mov_b32 v2, {FLAGS}")
            A("v_mov_b32 v3, s38")
        if cfg.fallback and cfg.early and n == 22:
            A("s_cmp_lg_u64 vcc, 0")
            A("s_cselect_b32 s37, 1, 0")
            A("v_mov_b32 v1, s37")
        for i in (0, 2): emit(f"v_pk_mul_f32 v[{x + i}:{x + i + 1}], v[{x + i}:{x + i + 1}], v[{r}:{r + 1}] op_sel_hi:[1,0]")
        for i in range(2): emit(f"v_cvt_pk_bf16_f32 v{pk + 2 * db + i}, v{x + 2 * i}, v{x + 2 * i + 1}")
        if cfg.fallback and cfg.early and n == 29:
            emit("v_or_b32 v4, v4, v5")
            emit("v_or3_b32 v4, v4, v6, v7")
        if cfg.fallback and cfg.early and n == 30:
            A("v_readfirstlane_b32 s37, v4")
        m = pv(n + LAG) if n + LAG < 32 else []
        W = f"ds_write_b64 v{WA + db}, v[{pk + 2 * db}:{pk + 2 * db + 1}] offset:{qb * 16384}"
        if m: emit(m[0])
        if m or n == 31:
            if not m:
                for k in range(32 - LAG, 31): emit(f"ds_write_b64 v{WA + k % 8}, v[{pk + 2 * (k % 8)}:{pk + 2 * (k % 8) + 1}] offset:{qb * 16384}")
            emit(W)
        if m: emit(m[1])
        if cfg.fallback and cfg.early:
            if n == 22: A("ds_write_b32 v3, v1"); flagw = st.ins[-1]
            if n == 25:
                k = len(st.lgkm) - 1 - st.lgkm.index(flagw) if flagw in st.lgkm else None
                if k is not None: A(f"s_waitcnt lgkmcnt({min(k, 14)})")
                A("s_barrier")
                A("ds_read_b128 v[4:7], v2")
        for _ in range(4):
            if vr: A(vr.pop(0))
        if db == 7:
            for k in range(4): emit(f"ds_read_b128 v[{tb + 4 * k}:{tb + 4 * k + 3}], v{RA[k]} offset:{qb * 16384 + k * 1024}")
            stores = [f"buffer_store_dwordx4 v[{tb + 4 * k}:{tb + 4 * k + 3}], v{OS}, s[{SO}:{SO+3}], s{SQB + qb} offen offset:{k * 1024}{cfg.opol}" for k in range(4)]
        elif stores and db >= cfg.st0 and m: emit(stores.pop(0))
    for x in stores: emit(x)

def tail3(st, cfg, T):
    A = st.add
    t0, t1 = NT - 2, NT - 1
    assert cfg.smf and not cfg.ap and len(cfg.ones) == 4 and cfg.early
    stamp(st, cfg, "loopend")
    def V1(db, sl): return Q0 + (db * 2 + sl) * 4
    def vr0(db): return [vr_text(t0, db, sl, u) for sl in range(2) for u in range(2)]
    def vr1(db): return [f"ds_read_b64_tr_b16 {R('v', V1(db, sl) + 2 * u, 2)}, v{VA + db} offset:{(t1 % 2) * 16384 + (8 * sl + 4 * u) * 256}"
                         for sl in range(2) for u in range(2)]
    def emit(x):
        i = parse(x)
        n = st.lgkm_needed(i.rd | i.wr)
        if n is not None: A(f"s_waitcnt lgkmcnt({n})")
        if i.kind == "vst" and cfg.nostore: return
        A(x)
    def sm1(qb):
        E, C = [], []
        for kb in range(4):
            for r in range(4): E.append(sm_text("EXP", t1, kb, qb, r))
            for r in range(2): C.append(sm_text("CVT", t1, kb, qb, r))
        return E, C
    wrE = [(0, sm_text(v[0], t0, v[2], v[3], v[4])) for v in T.wrapped if v[0] == "EXP"]
    wrC = [sm_text(v[0], t0, v[2], v[3], v[4]) for v in T.wrapped if v[0] == "CVT"]
    E0, C0 = sm1(0)
    EL = wrE + [(16 * (k // 4) + 8, x) for k, x in enumerate(E0)]
    done = set()
    CL = wrC + C0
    def cready(x):
        i = parse(x)
        return not any(parse(e).wr & i.rd for _, e in EL)
    KD = {16 * (kb - 1) + 1 + 2 * s: kr_text(t1, kb, s) for kb in range(1, 4) for s in range(4)}
    D0 = [x for db in range(8) for x in vr0(db)]
    D1 = [x for db in range(8) for x in vr1(db)]
    lastE = None
    for g in range(64):
        A(mfma_text(cfg, T.M[g], t0))
        if g in (15, 31, 47):
            rs = set()
            for x in range(g + 1, g + 17): rs |= parse(mfma_text(cfg, T.M[x], t0)).rd
            n = st.lgkm_needed(rs)
            if n is not None: A(f"s_waitcnt lgkmcnt({n})")
        if g == 49: A("s_waitcnt vmcnt(0)")
        if g == 50: A("s_barrier")
        if g in KD: A(KD[g])
        elif EL and EL[0][0] <= g and g != 50:
            A(EL.pop(0)[1]); continue
        elif g >= 52: A(D1.pop(0))
        elif g != 50: A(D0.pop(0))
        if CL and cready(CL[0]) and g != 50: A(CL.pop(0))
    assert not EL
    for x in CL: A(x)
    stamp(st, cfg, "f1")
    def need(db):
        L = []
        for D in (D0, D1):
            while D and f"v{VA + db} " in D[0]: L.append(D.pop(0))
        return L
    def pv(n):
        qb, db = n // 8, n % 8
        d = R("a", Ob(db, qb), 4)
        a = [mfma_text(cfg, ("PV", db, qb, sl), t0) for sl in range(2)]
        b = [f"{MF} {d}, {R('v', V1(db, sl), 4)}, {R('v', Pf(t1 % 2, qb, sl), 4)}, {d}" for sl in range(2)]
        L = a + b
        return L if db % 2 == 0 else L[::-1]
    def ones(qb): return [mfma_text(cfg, ("ONE", qb, 0), t) for t in (t0, t1)]
    def lpre(qb):
        x = rl(cfg, qb, 0)
        return [f"v_accvgpr_read_b32 v{x}, a{L0 + 4 * qb}", f"v_accvgpr_read_b32 v{x + 1}, a{L0 + 4 * qb + 1}",
                f"v_add_f32 v{x}, v{x}, v{x + 1}", f"v_rcp_f32 v{x}, v{x}"]
    XT = lambda n: 4 + 4 * (n % 2)
    PT = lambda n: 12 + 2 * (n % 2)
    def W(n): return f"ds_write_b64 v{WA + n % 8}, v[{PT(n)}:{PT(n) + 1}] offset:{(n // 8) * 16384}"
    def body(n, plain):
        qb, db = n // 8, n % 8
        x = XT(n); r = rl(cfg, qb, 0)
        return ([f"v_accvgpr_read_b32 v{x + i}, a{Ob(db, qb) + i}" for i in range(4)],
                ([f"v_mul_f32 v{x + i}, v{x + i}, v{r}" for i in range(4)] if plain else
                 [f"v_pk_mul_f32 v[{x + i}:{x + i + 1}], v[{x + i}:{x + i + 1}], v[{r}:{r + 1}] op_sel_hi:[1,0]" for i in (0, 2)]) +
                [f"v_cvt_pk_bf16_f32 v{PT(n) + i}, v{x + 2 * i}, v{x + 2 * i + 1}" for i in range(2)])
    def Rd(qb): return [f"ds_read_b128 v[{Sb(k, qb)}:{Sb(k, qb) + 3}], v{RA[k]} offset:{qb * 16384 + k * 1024}" for k in range(4)]
    def St(qb): return [f"buffer_store_dwordx4 v[{Sb(k, qb)}:{Sb(k, qb) + 3}], v{OS}, s[{SO}:{SO+3}], s{SQB + qb} offen offset:{k * 1024}{cfg.opol}" for k in range(4)]
    o = ones(0)
    pre = need(0) + need(1) + need(2)
    emit(o[0])
    for x in pre[:2]: A(x)
    emit(o[1])
    for x in pre[2:]: A(x)
    stores = []; E, C = [], []
    for q in (1, 2, 3):
        e, c = sm1(q); E += e; C += c
    onesq = 1; lq = []
    WL = 2 + cfg.deep
    pend_cvt = []
    for n in range(31 + WL):
        qb, db = n // 8, n % 8
        m = pv(n) if n < 32 else [None] * 4
        if n < 32: assert qb < onesq, "softmax of this q block not finished"
        nd = need(db + 3) if qb == 0 and db + 3 < 8 else []
        def M(k):
            if m[k]: emit(m[k])
        def X(cnt):
            for _ in range(cnt):
                if E: A(E.pop(0))
        plain = (not E) and n < 32 and n > 0
        rd, rest = body(n - 1, plain) if 0 < n <= 32 else ([], [])
        if cfg.deep:
            mul, cv = rest[:-2], rest[-2:]
            rest = pend_cvt + mul; pend_cvt = cv
        M(0)
        if n >= WL: emit(W(n - WL))
        if n >= WL and (n - WL) % 8 == 7:
            for x in Rd(qb - 1): emit(x)
            stores = St(qb - 1)
        elif stores and db >= cfg.st3 + cfg.deep: emit(stores.pop(0))
        M(1)
        for x in nd[:4]: A(x)
        if plain:
            emit(rd.pop(0)); emit(rd.pop(0))
        X(1)
        M(2)
        for x in nd[4:]: A(x)
        if plain:
            emit(rd.pop(0)); emit(rd.pop(0))
        X(1)
        M(3)
        if cfg.fallback and n == 27: A("ds_write_b32 v3, v1"); flagw = st.ins[-1]
        if cfg.fallback and n == 29:
            if flagw in st.lgkm: A(f"s_waitcnt lgkmcnt({min(14, len(st.lgkm) - 1 - st.lgkm.index(flagw))})")
            A("s_barrier")
            A(f"ds_read_b128 v[{KA}:{KA + 3}], v2")
        if n == 0:
            X(cfg.ne)
            lq = lpre(0)
        for x in rd: emit(x)
        while C and not any(parse(e).wr & parse(C[0]).rd for e in E): A(C.pop(0))
        for x in lq: emit(x)
        lq = []
        if cfg.fallback and n == 26:
            rr = [rl(cfg, q, 0) for q in range(4)]
            A(f"s_mov_b32 s36, {f32bits(2.0 ** -40):#x}")
            A(f"v_min_f32 v3, v{rr[0]}, v{rr[1]}")
            A(f"s_lshl_b32 s38, s{SW}, 2")
            A(f"v_min3_f32 v3, v3, v{rr[2]}, v{rr[3]}")
            A(f"s_add_u32 s38, s38, {FLAGS}")
            A("v_cmp_nle_f32 vcc, s36, v3")
            A(f"v_mov_b32 v2, {FLAGS}")
            A("v_mov_b32 v3, s38")
        if onesq < 4 and len(C) <= 8 * (3 - onesq):
            o = ones(onesq)
            pkk = [x for x in rest if "pk_mul" in x]; oth = [x for x in rest if "pk_mul" not in x]
            for x in pkk + oth[:-2]: emit(x)
            emit(o[0]); emit(oth[-2]); emit(o[1]); emit(oth[-1])
            lq = lpre(onesq); onesq += 1
        else:
            for x in rest: emit(x)
        if cfg.fallback and n == 26:
            A("s_cmp_lg_u64 vcc, 0")
            A("s_cselect_b32 s37, 1, 0")
            A("v_mov_b32 v1, s37")
        if cfg.fallback and n == 31:
            emit(f"v_or_b32 v{KA}, v{KA}, v{KA + 1}")
            emit(f"v_or3_b32 v{KA}, v{KA}, v{KA + 2}, v{KA + 3}")
        if cfg.fallback and n == 32: A(f"v_readfirstlane_b32 s37, v{KA}")
        if n in (8, 16, 24): stamp(st, cfg, f"b{n}")
    assert not stores and not D0 and not D1 and not pend_cvt
    emit(W(31))
    for x in Rd(3): emit(x)
    for x in St(3): emit(x)

def finish(st, cfg, T):
    A = st.add
    stamp(st, cfg, "stored")
    if cfg.twice:
        A("s_sub_u32 s35, s35, 1")
        A("s_cmp_lg_u32 s35, 0")
        A("s_cbranch_scc1 L_twice")
    if cfg.fallback and cfg.early:
        A(f"s_cmp_gt_u32 s37, s{SMODE}")
        A("s_cbranch_scc1 L_fallback")
    elif cfg.fallback:
        A(f"s_cmp_lg_u32 s{SMODE}, 0")
        A("s_cbranch_scc1 L_done")
        A(f"s_mov_b32 s36, {f32bits(2.0 ** -40):#x}")
        rr = sorted(set(rl(cfg, qb, i) for qb in range(4) for i in range(4)))
        A(f"v_min_f32 v3, v{rr[0]}, v{rr[1]}")
        for i in range(2, len(rr), 2): A(f"v_min3_f32 v3, v3, v{rr[i]}, v{rr[i + 1]}")
        A("v_cmp_nle_f32 vcc, s36, v3")
        A("s_cmp_lg_u64 vcc, 0")
        A("s_cselect_b32 s37, 1, 0")
        A("v_mov_b32 v1, s37")
        A(f"s_lshl_b32 s38, s{SW}, 2")
        A(f"s_add_u32 s38, s38, {FLAGS}")
        A("v_mov_b32 v3, s38")
        A("ds_write_b32 v3, v1")
        A("s_waitcnt lgkmcnt(0)")
        A("s_barrier")
        A(f"v_mov_b32 v3, {FLAGS}")
        A("ds_read_b128 v[4:7], v3")
        A("s_waitcnt lgkmcnt(0)")
        A("v_or_b32 v4, v4, v5")
        A("v_or3_b32 v4, v4, v6, v7")
        A("v_readfirstlane_b32 s37, v4")
        A("s_cmp_lg_u32 s37, 0")
        A("s_cbranch_scc1 L_fallback")
        A("L_done:")
    if cfg.stamps:
        A("s_waitcnt vmcnt(0)")
        stamp(st, cfg, "drained")
        if cfg.dbg:
            nm = st.stampnames
            def sr(n, w): return 64 + 2 * nm.index(n) + w
            A("s_mov_b32 s8, s56"); A("s_mov_b32 s9, s57"); A("s_mov_b32 s10, 0x100"); A("s_mov_b32 s11, 0x20000")
            A(f"s_not_b32 s36, s{sr('start', 1)}")
            A(f"s_mov_b32 s37, s{sr('drained', 1)}")
            A(f"s_sub_u32 s38, s{sr('loopend', 0)}, s{sr('mainstart', 0)}")
            A(f"s_sub_u32 s39, s{sr('loopend', 1)}, s{sr('mainstart', 1)}")
            A(f"s_not_b32 s40, s39")
            A(f"s_mov_b32 s41, s{sr('mainstart', 1)}")
            A(f"s_mov_b32 s42, s{sr('loopend', 1)}")
            A("s_mov_b64 exec, 1")
            A("v_mov_b32 v1, 0")
            for k in range(7):
                A(f"v_mov_b32 v4, s{36 + k}")
                st.ins.append(I(f"buffer_atomic_umax v4, v1, s[8:11], 0 offen offset:{4 * k}", "ctl"))
                A("s_waitcnt vmcnt(0)")
            A("s_endpgm")
        A("s_mov_b32 s8, s56"); A("s_mov_b32 s9, s57"); A("s_mov_b32 s10, 0x100000"); A("s_mov_b32 s11, 0x20000")
        A("s_lshl_b32 s3, s2, 2"); A(f"s_add_u32 s3, s3, s{SW}"); A("s_lshl_b32 s3, s3, 7")
        A("v_mov_b32 v1, s3")
        for k in range((len(st.stampnames) + 1) // 2):
            for i in range(4): A(f"v_mov_b32 v{4 + i}, s{64 + 4 * k + i}")
            A(f"buffer_store_dwordx4 v[4:7], v1, s[8:11], 0 offen offset:{16 * k}")
            A("s_nop 1")
    if cfg.itstamp:
        A("s_lshl_b32 s3, s3, 1")
        A("s_add_u32 s3, s3, 0x40000")
        A("v_and_b32 v1, 63, v0")
        A("v_lshl_add_u32 v1, v1, 2, s3")
        A("buffer_store_dword v188, v1, s[8:11], 0 offen")
    A("L_end:")
    A("s_endpgm")
    A("L_codeend:")

def fallback(cfg, T):
    st = Stream(); A = st.add
    A("L_fallback:")
    A("s_waitcnt vmcnt(0) lgkmcnt(0)")
    A(f"s_mov_b32 s{SMODE}, 1")
    A("v_and_b32 v2, 63, v0")
    A("v_and_b32 v3, 15, v2")
    A("v_lshrrev_b32 v4, 4, v2")
    A("v_lshrrev_b32 v5, 2, v3")
    A("v_lshlrev_b32 v5, 12, v5")
    A("v_and_b32 v6, 3, v3")
    A("v_lshl_add_u32 v5, v6, 8, v5")
    for s in range(4):
        A(f"v_add_u32 v6, {4 * s}, v4")
        A("v_xor_b32 v6, v6, v3")
        A(f"v_lshl_add_u32 v{KA + s}, v6, 4, v5")
    A("v_lshrrev_b32 v5, 2, v3")
    A("v_and_b32 v6, 1, v4")
    A("v_lshl_add_u32 v6, v6, 2, v5")
    A("v_lshl_add_u32 v5, v4, 4, v5")
    A("v_lshlrev_b32 v5, 8, v5")
    A("v_and_b32 v7, 3, v3")
    A("v_lshl_add_u32 v5, v7, 3, v5")
    A(f"v_add_u32 v5, {VBASE}, v5")
    for db in range(8):
        A(f"v_xor_b32 v7, {db}, v6")
        A(f"v_lshl_add_u32 v{VA + db}, v7, 5, v5")
    if cfg.pkt == 3:
        A("v_lshlrev_b32 v5, 8, v3")
        A("v_lshl_add_u32 v5, v4, 4, v5")
        for qb in range(4):
            for s in range(4):
                A(f"buffer_load_dwordx4 {R('v', Qf(qb, s), 4)}, v5, s[{SQ}:{SQ+3}], s{SQB + qb} offen offset:{64 * s}")
        A("s_waitcnt vmcnt(0)")
        for x in range(Q0, Q0 + 64):
            A(f"v_lshlrev_b32 v6, 16, v{x}")
            A(f"v_and_b32 v7, s{SC - 1}, v{x}")
            A(f"v_pk_mul_f32 v[6:7], v[6:7], s[{SC}:{SC + 1}]")
            A(f"v_cvt_pk_bf16_f32 v{x}, v6, v7")
    for qb in range(4): A(f"v_mov_b32 v{8 + qb}, 0xff800000")
    A(f"s_mov_b32 s{SOFFK}, s{SW4K}")
    A(f"s_mov_b32 s{SCNT}, {NT}")
    A("L_fb1:")
    A("s_barrier")
    A(f"s_mov_b32 m0, s{SW4K}")
    for j in range(4): A(dmak_text(cfg, j))
    A(f"s_addk_i32 s{SOFFK}, 0x4000")
    A("s_waitcnt vmcnt(0)")
    A("s_barrier")
    for kb in range(4):
        for s in range(4):
            A(f"ds_read_b128 {R('a', K0f(kb, s), 4)}, v{KA + s} offset:{kb * 1024}")
    A("s_waitcnt lgkmcnt(0)")
    for qb in range(4):
        for kb in range(4):
            for s in range(4):
                d = R("v", Sb(kb, qb), 4)
                A(f"{MF} {d}, {R('a', K0f(kb, s), 4)}, {R('v', Qf(qb, s), 4)}, {'0' if s == 0 else d}")
    A("s_nop 7")
    for qb in range(4):
        x = [Sb(kb, qb) + r for kb in range(4) for r in range(4)]
        for i in range(0, 16, 2): A(f"v_max3_f32 v{8 + qb}, v{8 + qb}, v{x[i]}, v{x[i + 1]}")
    A(f"s_sub_u32 s{SCNT}, s{SCNT}, 1")
    A(f"s_cmp_lg_u32 s{SCNT}, 0")
    A("s_cbranch_scc1 L_fb1")
    for qb in range(4):
        xlane(st, "v_max_f32", 8 + qb, 5)
        for i in range(4): A(f"v_sub_f32 v{NEGM + 4 * qb + i}, 0, v{8 + qb}")
    init_acc(st, cfg)
    A(f"s_mov_b32 s{SOFFK}, s{SW4K}")
    A(f"s_mov_b32 s{SOFFV}, s{SW4K}")
    A(f"s_mov_b32 s{SCNT}, {cfg.trips}")
    A("s_barrier")
    for w, t in (("K", 0), ("K", 1), ("V", 0), ("K", 2), ("V", 1), ("K", 3))[:cfg.kdepth + 2]: dma_tile(st, cfg, w, t)
    A("s_waitcnt vmcnt(0)")
    A("s_barrier")
    for kb in range(4):
        for s in range(4):
            A(f"ds_read_b128 {R('a', K0f(kb, s), 4)}, v{KA + s} offset:{kb * 1024}")
    A("s_waitcnt lgkmcnt(0)")
    for qb in range(4):
        for kb in range(4):
            for s in range(4):
                d = R("v", Sb(kb, qb), 4)
                c = R("v", NEGM + 4 * qb, 4) if s == 0 else d
                A(f"{MF} {d}, {R('a', K0f(kb, s), 4)}, {R('v', Qf(qb, s), 4)}, {c}")
    A("s_nop 7")
    for qb in range(4): softmax0(st, cfg, T, qb)
    A("s_barrier")
    for s in range(4): A(kr_text(1, 0, s))
    A("s_waitcnt lgkmcnt(0)")
    A("s_nop 7")
    A("s_branch L_entry")
    return st

def flat(cfg, T, forced):
    st = Stream(); rec = {}; marks = {}
    prologue(st, cfg, T)
    NL = cfg.NL
    for t in range(0, NL):
        marks[t] = len(st.ins)
        emit_iter(st, cfg, T, t, forced, rec)
    marks[NL] = len(st.ins)
    {3: tail3, 2: tail2}.get(cfg.pkt, tail)(st, cfg, T)
    finish(st, cfg, T)
    return st, rec, marks

def generate(cfg):
    cfg.NL = NT - 2 if cfg.pkt == 3 else NT - 1
    cfg.bpar = 1 if cfg.pkt == 3 else 0
    cfg.trips = 15 if cfg.pkt == 3 else 16
    T = build_template(cfg)
    st, rec, marks = flat(cfg, T, {})
    forced = {}; cls = {}
    for (t, g), n in rec.items(): cls.setdefault((t % 2, g), []).append(n)
    for (t, g), n in rec.items():
        v = [x for x in cls[(t % 2, g)] if x is not None]
        forced[(t, g)] = min(v) if v else None
    st, rec, marks = flat(cfg, T, forced)
    its = [st.text(marks[t], marks[t + 1]) for t in range(cfg.NL)]
    for t in range(2, cfg.NL): assert its[t] == its[t - 2], f"loop not periodic at {t}"
    nl = [x for x in st.nops_inserted if marks[1] <= x[0] < marks[3]]
    sys.stderr.write(f"G={T.G} loop body instrs={marks[3]-marks[1]} nops in loop: {nl}; total auto nops {len(st.nops_inserted)}\n")
    out = []
    out.append(open("standalone__gqa_softmax__prompt.s.ref").read().split("; Override")[0].rstrip())
    if cfg.stamps: out.append("; STAMPS " + " ".join(st.stampnames))
    out.append(f"; @launch grid=(256,1,1) block=(256,1,1) lds={cfg.lds}")
    out.append('.amdgcn_target "amdgcn-amd-amdhsa--gfx950"\n.text')
    out.append(f".globl {KNAME}\n.p2align 8\n.type {KNAME},@function\n{KNAME}:")
    out.append(st.text(0, marks[0]))
    out.append(".p2align 6")
    out.append("L_loop:")
    if cfg.bpar == 0: out.append(its[1])
    out.append("L_entry:")
    out.append(its[0])
    if cfg.bpar == 1: out.append(its[1])
    out.append(st.text(marks[cfg.NL]))
    if cfg.fallback: out.append(fallback(cfg, T).text())
    out.append(f'''.section .rodata,"a"
.p2align 6
.amdhsa_kernel {KNAME}
  .amdhsa_next_free_vgpr 512
  .amdhsa_next_free_sgpr 102
  .amdhsa_accum_offset 256
  .amdhsa_group_segment_fixed_size 0
  .amdhsa_kernarg_size 48
  .amdhsa_user_sgpr_count 2
  .amdhsa_user_sgpr_kernarg_segment_ptr 1
  .amdhsa_system_sgpr_workgroup_id_x 1
.end_amdhsa_kernel''')
    return "\n".join(out) + "\n", T

if __name__ == "__main__":
    ap = argparse.ArgumentParser()
    ap.add_argument("-o", default="/dev/stdout")
    ap.add_argument("--ones", default="0,1,2,3")
    for n, d in (("ap", 0), ("bous", 1), ("lag", 8), ("stamps", 0), ("vstart", 9), ("vend", 200), ("show", 0), ("nobar", 0),
                 ("nodma", 0), ("pf", 0), ("qfirst", 2), ("hid", 8), ("deep", 0), ("ne", 2), ("st3", 3), ("early", 0), ("tlag", 2), ("st0", 1), ("pat", 0), ("pkt", 0), ("pvb", 1), ("twice", 0), ("kdepth", 4), ("wgrp", 4), ("mxstart", 7), ("e2first", 17), ("smf", 0), ("zrow", 0), ("tailgap", 12), ("gexcl", 0), ("grp", 1), ("nostore", 0), ("dbg", 0), ("itstamp", 0), ("probe", 0), ("qmap", 0), ("stdelay", 20), ("ststep", 8), ("fallback", 1)):
        ap.add_argument("--" + n, type=int, default=d)
    ap.add_argument("--gpos", default="11,27,43,57,71,85,99,109")
    ap.add_argument("--only", default="")
    ap.add_argument("--flip", default="")
    ap.add_argument("--extra", default="")
    ap.add_argument("--empty", default="")
    ap.add_argument("--sched", default="0,1,1,3,0")
    ap.add_argument("--pol", default="")
    ap.add_argument("--qpol", default="")
    ap.add_argument("--opol", default="")
    a = ap.parse_args()
    cfg = Cfg()
    cfg.__dict__.update(vars(a))
    cfg.ones = [int(x) for x in a.ones.split(",") if x != ""]
    cfg.gpos = [int(x) for x in a.gpos.split(",")]
    cfg.extra = [int(x) for x in a.extra.split(",") if x != ""]
    cfg.flip = [int(x) for x in a.flip.split(",") if x != ""]
    cfg.empty = [int(x) for x in a.empty.split(",") if x != ""]
    cfg.sched = [int(x) for x in a.sched.split(",")]
    for n in ("pol", "qpol", "opol"):
        v = getattr(cfg, n).replace("+", " ")
        setattr(cfg, n, " " + v if v else "")
    cfg.lds = 131072 + 64
    txt, T = generate(cfg)
    open(a.o, "w").write(txt)
    if a.show:
        for g in range(T.G):
            sys.stderr.write(f"{g:3d} {T.typ[g]} {T.M[g]} | {T.sca[g]} | {T.mem[g]} | {T.val[g]}\n")
```

```python
from asmlib import parse, is_valu

class Node:
    __slots__ = ("i", "text", "tag", "rd", "wr", "pred", "succ", "prio", "idx", "issue", "slot", "rel", "done")

def cost(n):
    k = n.i.kind; mn = n.text.split()[0]
    if k == "mfma": return 8
    if k == "trans": return 8
    if k in ("dsw",): return 12 if "b64" in mn else 8
    if k == "vst": return 24
    return 4

def lat(p, c):
    kp, kc = p.i.kind, c.i.kind
    raw = p.wr & c.rd
    if kp == "mfma":
        D = set(p.i.D)
        if kc == "mfma":
            if D & set(c.i.A + c.i.B): return 40
            return 16
        if D & (c.rd | c.wr): return 40
        if is_valu(c.i) and set(p.i.C) & c.wr: return 16
        return 4
    if kp == "dsr" and (p.wr & (c.rd | c.wr)): return 140
    if is_valu(p.i):
        base = 8 if kp == "trans" else 4
        if raw:
            if kc == "mfma": return base + 8
            if "permlane" in c.text: return base + 8
            if kp == "trans": return base + 4
        return base
    if kp == "salu" and "m0" in p.wr and kc == "dma": return 8
    if kp == "dma" and kc == "dma": return 64
    return 4

import random
_cache = {}
def schedule(items, tries=300, mfma_bias=0):
    key = repr(items)
    if key in _cache: return _cache[key]
    best = None
    rnd = random.Random(1)
    for k in range(tries):
        bias = rnd.choice([0, 50, 100, 200, 400, 1000]) if k else mfma_bias
        noise = rnd.choice([0, 10, 30, 80, 200]) if k else 0
        dsb = rnd.choice([0, 100, 400]) if k else 0
        pkb = rnd.choice([0, 100, 400]) if k else 0
        out, t = schedule1(items, bias, noise, dsb, pkb, rnd)
        if best is None or t < best[1]: best = (out, t)
    _cache[key] = best
    return best

def schedule1(items, mfma_bias, noise, dsb, pkb, rnd):
    N = []
    for k, it in enumerate(items):
        text, tag, xr, xw, rel = (list(it) + [0])[:5] if not isinstance(it, str) else (it, None, (), (), 0)
        n = Node(); n.i = parse("s_barrier" if text.startswith("@") else text); n.text = text; n.tag = tag; n.rel = rel
        n.rd = set(n.i.rd) | set(xr or ()); n.wr = set(n.i.wr) | set(xw or ())
        if n.i.kind == "salu" and not text.startswith(("s_mov", "s_pack")): n.wr.add("scc")
        n.pred = []; n.succ = []; n.idx = k; N.append(n)
    lastw = {}; readers = {}
    for n in N:
        deps = set()
        for r in n.rd:
            if r in lastw: deps.add(lastw[r])
        for r in n.wr:
            if r in lastw: deps.add(lastw[r])
            for x in readers.get(r, ()): deps.add(x)
        deps.discard(n)
        for d in deps: n.pred.append(d); d.succ.append(n)
        for r in n.rd: readers.setdefault(r, []).append(n)
        for r in n.wr: lastw[r] = n; readers[r] = []
    for n in reversed(N):
        n.prio = cost(n) + max([lat(n, s) - cost(n) + s.prio for s in n.succ] or [0])
    for n in N:
        n.prio += rnd.uniform(0, noise)
        if n.i.kind in ("dsr", "dma", "dsw", "vst"): n.prio += dsb
        if "v_pk_" in n.text: n.prio += pkb
    t = 0; lastm = -100; mhold = -100; lastv = -100; ldsfree = 0; lastd = -100
    left = {n: len(n.pred) for n in N}
    ready = [n for n in N if not n.pred]
    out = []
    def start(n):
        s = max(t, n.rel)
        for p in n.pred:
            if p.i.kind == "dsr" and (p.wr & (n.rd | n.wr)): s = max(s, p.done)
            else: s = max(s, p.issue + lat(p, n))
        k = n.i.kind
        if k == "mfma": s = max(s, lastm + 16, lastd + 4)
        elif is_valu(n.i):
            s = max(s, mhold)
            if "v_pk_" in n.text: s = max(s, lastm + 28)
        elif k in ("dsr", "dsw", "dma", "vst", "vld"): s = max(s, mhold, lastv + 8)
        return s
    while ready:
        best = None
        floor = max(t, mhold)
        for n in ready:
            s = start(n)
            eff = s if n.i.kind in ("salu", "ctl", "nop") else max(s, floor) if n.i.kind != "mfma" else s
            key = (max(eff, floor) if n.i.kind not in ("salu", "ctl") else eff, -(n.prio + (mfma_bias if n.i.kind == "mfma" else 0)), n.idx)
            if best is None or key < best[0]: best = (key, n, s)
        _, n, s = best
        n.issue = s; k = n.i.kind
        if k in ("dsr", "dsw"):
            ldsfree = max(ldsfree, s) + (16 if "b128" in n.text else 24 if k == "dsw" else 8)
            n.done = ldsfree + 110
        if k == "mfma":
            lastm = s; mhold = s + (12 if "smfmac" in n.text else 8); t = s + 4
        else:
            t = s + cost(n)
            if is_valu(n.i): lastv = t
            if k in ("dsr", "dsw", "dma", "vst"): lastd = t
        out.append((n.text, n.tag))
        ready.remove(n)
        for c in n.succ:
            left[c] -= 1
            if left[c] == 0: ready.append(c)
    assert len(out) == len(N)
    return out, max(t, lastm + 16)
```

```python
import sys, argparse, math, struct, re
from asmlib import *
from lsched import schedule

KNAME = "standalone__gqa_softmax__prompt_kernel"
NT = 32
MF = "v_mfma_f32_16x16x32_bf16"

S0, P0, NEGM, LS, KA, VA, DK, DV, OW, OR_, OS, Q0 = 16, 80, 144, 160, 168, 172, 180, 181, 182, 183, 184, 192
O0, VF, KF, L0, ONES = 0, 128, 192, 224, 240
def Sb(kb, qb): return S0 + (kb * 4 + qb) * 4
def Pf(buf, qb, sl): return P0 + buf * 32 + (qb * 2 + sl) * 4
def Qf(qb, s): return Q0 + (qb * 4 + s) * 4
def Ob(db, qb): return O0 + (db * 4 + qb) * 4
def Vf(db, sl): return VF + (db * 2 + sl) * 4
def Kf(buf, s): return KF + (buf * 4 + s) * 4
def K0f(kb, s): return VF + (kb * 4 + s) * 4
SQ, SK, SV, SO = 12, 16, 20, 24
SW, SOFFK, SOFFV, SCNT, SMODE, SX8000, SW4K = 28, 29, 30, 31, 32, 33, 34
SQB = 44
SC = 40
VBASE = 65536
FLAGS = 131072
QSTAGE = [3 * 16384, VBASE + 16384, VBASE + 2 * 16384, VBASE + 3 * 16384]
QBIAS = 4096

SIDX = 189
PERM = [0]
SNC = 43
SVER = 48
S256 = 35
def f32bits(x): return struct.unpack("<I", struct.pack("<f", x))[0]
class Cfg: pass

def build_template(cfg):
    ones = cfg.ones
    n1 = (1 if cfg.smf else 2) * len(ones)
    G = 128 + n1
    pv0 = 64 + n1
    M = []
    for kb in range(4):
        for qb in range(4):
            order = range(4) if (qb % 2 == 0 or not cfg.bous) else (range(3, -1, -1) if cfg.bous == 1 else (2, 3, 0, 1))
            for n, s in enumerate(order):
                M.append(("QK", kb, qb, s, n == 0))
    for qb in ones:
        for sl in range(1 if cfg.smf else 2):
            M.append(("ONE", qb, sl))
    for db in range(8):
        for qb in range(4):
            order = (0, 1) if (qb % 2 == 0 or not cfg.pvb) else (1, 0)
            for sl in order:
                M.append(("PV", db, qb, sl))
    assert len(M) == G
    if cfg.pat:
        F = set(range(64, pv0)) | {G - 18, G - 1} | set(cfg.empty)
        typ = []; nxt = "E"
        for g in range(G):
            if g in F: typ.append("D"); nxt = "E"
            else:
                typ.append(nxt); nxt = "D" if nxt == "E" else "E"
        ne = typ.count("E")
        cand = [g for g in cfg.flip]
        while ne < 64:
            g = cand.pop(0); assert typ[g] == "D" and g not in F; typ[g] = "E"; ne += 1
        while ne > 64:
            g = cand.pop(0); assert typ[g] == "E"; typ[g] = "D"; ne -= 1
    else:
        extra = cfg.extra if cfg.extra else list(range(112, 112 + n1))
        assert len(extra) == n1
        typ = []; nxt = "E"
        for g in range(G):
            if g in extra: typ.append("D")
            else:
                typ.append(nxt); nxt = "D" if nxt == "E" else "E"
    Eg = [g for g in range(G) if typ[g] == "E"]
    assert len(Eg) == 64 and typ[G - 1] == "D"
    mem = [None] * G
    for kb in range(4):
        base = 16 * (kb - 1)
        toff = 1
        if base < 0: base += G; toff = 2
        ds = [g for g in range(base + 1, base + 16) if typ[g] == "D" and g not in cfg.gpos and g not in cfg.empty][:4]
        assert ds[-1] <= base + 10
        for s in range(4):
            mem[ds[s]] = ("KR", toff, kb, s)
    gpos = cfg.gpos
    for n, g in enumerate(gpos):
        assert typ[g] == "D" and mem[g] is None, g
        mem[g] = ("DMAV", 2, n) if n < 4 else ("DMAK", cfg.kdepth, n - 4)
    gbar = G - 18
    free = [g for g in range(cfg.vstart, min(cfg.vend, G - 19)) if typ[g] == "D" and mem[g] is None and g not in cfg.empty]
    vreads = [(db, sl, u) for db in range(8) for sl in range(2) for u in range(2)]
    assert len(free) >= 32, len(free)
    vpos = {}
    for n, v in enumerate(vreads):
        g = free[(n * len(free)) // 32]
        assert g <= pv0 + 8 * v[0] - 6, (g, v)
        mem[g] = ("VR", 0) + v
        vpos.setdefault(v[0], []).append(g)
    cap = [0] * G
    for g in range(G):
        if typ[g] == "D": cap[g] = 1 if mem[g] else 2
    cap[G - 1] = 0
    if cfg.pat:
        for g in range(64, pv0): cap[g] -= 1
    for g in cfg.empty: cap[g] = 0
    if cfg.gexcl:
        for g in gpos: cap[g] = 0
    need = 32 + 16 * (4 - len(ones)) + 8
    if typ[gbar] == "D" and sum(cap) - cap[gbar] >= need: cap[gbar] = 0
    short = need - sum(cap)
    if short > 0:
        cand = [g for g in range(G) if typ[g] == "E"]
        for n in range(short):
            cap[cand[(n * len(cand)) // short]] += 1
    val = [[] for _ in range(G)]
    e0 = next(k for k, g in enumerate(Eg) if g >= cfg.lag)
    plain = []
    for k in range(64):
        idx = e0 + k
        g = Eg[idx % 64]; X = g + G * (idx // 64)
        b, r = k // 4, k % 4
        kb, qb = b // 4, b % 4
        val[g].append(("EXP", 1 - idx // 64, kb, qb, r))
        if qb not in ones: plain.append((X + 1, ("ADD", kb, qb, r)))
        if r % 2 == 1: plain.append((X + 1, ("CVT", kb, qb, r // 2)))
    used = [0] * G
    last = 0
    for ready, op in plain:
        X = max(ready, last)
        while used[X % G] >= cap[X % G]: X += 1
        used[X % G] += 1
        last = X
        kb, qb = op[1], op[2]
        assert X < G + 4 * (kb * 4 + qb), ("S overwritten", op, X)
        assert X < G + 60, ("P late", op, X)
        val[X % G].append((op[0], 1 - X // G) + op[1:])
    xk = 0
    for db in range(8):
        X = max(vpos[db]) + 1
        if xk < 4: X = max(X, 40)
        while used[X] >= cap[X]: X += 1
        assert X < G
        used[X] += 1
        s = None
        if xk < 4 and 40 <= X < G - 16: s = xk; xk += 1
        val[X].append(("XOR", 0, db, s))
    assert xk == 4
    sca = [None] * G
    for kb in range(1, 4): sca[16 * kb - 1] = ("WAITL", 16 * kb)
    sca[G - 2] = ("WAITL", G)
    for db in range(8): sca[pv0 + 8 * db - 1] = ("WAITL", pv0 + 8 * db)
    def put(g, item, step=-1):
        while sca[g % G] is not None: g += step
        sca[g % G] = item
        return g
    assert sca[gbar] is None and sca[gbar - 1] is None
    sca[gbar - 1] = ("WAITV",); sca[gbar] = ("BAR",)
    sca[G - 1] = ("BRANCH",)
    g1 = put(G - 3, ("CMP",))
    put(g1 - 1, ("CNT",))
    a = put(gpos[0] - 1, ("M0V",)); assert a >= 0
    a = put(gpos[4] - 1, ("M0K",)); assert a >= gpos[3]
    put(gpos[3] + 1, ("INCV",), +1)
    a = put(gpos[7] + 1, ("INCK",), +1); assert a < g1
    T = Cfg()
    T.G, T.pv0, T.M, T.mem, T.val, T.sca, T.typ = G, pv0, M, mem, val, sca, typ
    T.wrapped = [v for g in range(G) for v in val[g] if v[0] in ("EXP", "ADD", "CVT") and v[1] == 0]
    return T

def mfma_text(cfg, m, t):
    if m[0] == "QK":
        _, kb, qb, s, first = m
        d = R("v", Sb(kb, qb), 4)
        c = R("v", NEGM + 4 * qb, 4) if first else d
        return f"{MF} {d}, {R('a', Kf(kb % 2, s), 4)}, {R('v', Qf(qb, s), 4)}, {c}"
    if m[0] == "ONE":
        _, qb, sl = m
        d = R("a", L0 + 4 * qb, 4)
        if cfg.smf: return f"v_smfmac_f32_16x16x64_bf16 {d}, {R('a', ONES, 4)}, {R('v', Pf(t % 2, qb, 0), 8)}, v{SIDX}"
        a, b = R("a", ONES, 4), R("v", Pf(t % 2, qb, sl), 4)
        if cfg.ap: a, b = b, a
        return f"{MF} {d}, {a}, {b}, {d}"
    _, db, qb, sl = m
    d = R("a", Ob(db, qb), 4)
    a, b = R("a", Vf(db, sl), 4), R("v", Pf(t % 2, qb, sl), 4)
    if cfg.ap or cfg.apl: a, b = b, a
    return f"{MF} {d}, {a}, {b}, {d}"

def kr_text(tt, kb, s): return f"ds_read_b128 {R('a', Kf(kb % 2, s), 4)}, v{KA + s} offset:{(tt % 2) * 16384 + kb * 1024}"
def vr_text(tt, db, sl, u): return f"ds_read_b64_tr_b16 {R('a', Vf(db, sl) + 2 * u, 2)}, v{VA + db} offset:{(tt % 2) * 16384 + (8 * sl + 4 * u) * 256}"
def dmak_text(cfg, j): return f"buffer_load_dwordx4 v{DK}, s[{SK}:{SK+3}], s{SOFFK} offen offset:{1024 * j}{cfg.pol} lds"
def dmav_text(cfg, j): return f"buffer_load_dwordx4 v{DV}, s[{SV}:{SV+3}], s{SOFFV} offen offset:{1024 * j}{cfg.pol} lds"
def sm_text(k, tt, kb, qb, r):
    x = Sb(kb, qb)
    if k == "EXP": return f"v_exp_f32 v{x + r}, v{x + r}"
    if k == "ADD":
        a = LS + 2 * qb + (r % 2)
        return f"v_add_f32 v{a}, v{a}, v{x + r}"
    d = Pf(tt % 2, qb, kb // 2) + (kb % 2) * 2 + r
    if PERM[0]: return f"v_perm_b32 v{d}, v{x + 2 * r + 1}, v{x + 2 * r}, s42"
    return f"v_cvt_pk_bf16_f32 v{d}, v{x + 2 * r}, v{x + 2 * r + 1}"

def emit_iter(st, cfg, T, t, forced, record):
    G = T.G
    for g in range(G):
        st.add(mfma_text(cfg, T.M[g], t))
        sc = T.sca[g]
        if cfg.itstamp and g == G - 8: st.add("s_memtime s[60:61]" if cfg.itstamp == 1 else "s_memrealtime s[60:61]")
        if cfg.itstamp and g == G - 1:
            st.add("v_writelane_b32 v188, s60, m0")
        if cfg.itstamp and g == G - 6: st.add("s_mov_b32 m0, s35")
        if cfg.itstamp and g == 2: st.add("s_add_u32 s35, s35, 1")
        if sc:
            k = sc[0]
            if k == "WAITL":
                tt, gg = (t, sc[1]) if sc[1] < G else (t + 1, 0)
                rs = set()
                n = 16 if T.M[gg][0] == "QK" else 8
                for x in range(gg, gg + n): rs |= parse(mfma_text(cfg, T.M[x], tt)).rd
                n = st.lgkm_needed(rs)
                record[(t, g)] = n
                if (t, g) in forced: n = forced[(t, g)]
                if n is not None: st.add(f"s_waitcnt lgkmcnt({n})")
            elif k == "WAITV":
                p = t + 2
                n = st.vm_needed(lambda o: o.tag in (("K", p), ("V", p - 1)))
                record[(t, g)] = n
                if (t, g) in forced: n = forced[(t, g)]
                if n is not None: st.add(f"s_waitcnt vmcnt({n})")
            elif k == "BAR":
                if not cfg.nobar: st.add("s_barrier")
            elif k == "M0V": st.add(f"s_pack_ll_b32_b16 m0, s{SOFFV}, 1")
            elif k == "M0K": st.add(f"s_pack_ll_b32_b16 m0, s{SOFFK}, 0")
            elif k == "INCV": st.add(f"s_addk_i32 s{SOFFV}, 0x4000")
            elif k == "INCK": st.add(f"s_addk_i32 s{SOFFK}, 0x4000")
            elif k == "CNT":
                if t % 2 == cfg.bpar: st.add(f"s_sub_u32 s{SCNT}, s{SCNT}, 1")
            elif k == "CMP":
                if t % 2 == cfg.bpar: st.add(f"s_cmp_lg_u32 s{SCNT}, 0")
            elif k == "BRANCH":
                if t % 2 == cfg.bpar: st.add("s_cbranch_scc1 L_loop")
        me = T.mem[g]
        if me:
            k, tt = me[0], t + me[1]
            if k in cfg.skip.split(","): pass
            elif k == "KR": st.add(kr_text(tt, me[2], me[3]))
            elif k == "VR": st.add(vr_text(tt, me[2], me[3], me[4]))
            elif cfg.nodma: pass
            elif k == "DMAK": st.add(dmak_text(cfg, me[2]), tag=("K", tt))
            elif k == "DMAV": st.add(dmav_text(cfg, me[2]), tag=("V", tt))
        for v in T.val[g]:
            if v[0] == "XOR":
                if t % 2 == 1: st.add(f"v_xor_b32 v{VA + v[2]}, s{SX8000}, v{VA + v[2]}")
                elif v[3] is not None: st.add(f"v_xor_b32 v{KA + v[3]}, s{SX8000}, v{KA + v[3]}")
            elif v[0] in cfg.skip.split(","): pass
            else:
                st.add(sm_text(v[0], t + v[1], v[2], v[3], v[4]))

def stamp(st, cfg, name):
    if not cfg.stamps: return
    if cfg.only and name not in cfg.only.split(","): return
    if not hasattr(st, "stampnames"): st.stampnames = []
    idx = len(st.stampnames); st.stampnames.append(str(name)); assert idx < 14
    st.add("s_waitcnt lgkmcnt(0)")
    st.add(f"s_memtime s[60:61]")
    st.add(f"s_memrealtime s[62:63]")
    st.add("s_waitcnt lgkmcnt(0)")
    st.add(f"s_mov_b32 s{64 + 2 * idx}, s60")
    st.add(f"s_mov_b32 s{65 + 2 * idx}, s62")

def dma_tile(st, cfg, which, t):
    A = st.add
    if which == "K":
        A(f"s_pack_ll_b32_b16 m0, s{SOFFK}, 0")
        for j in range(4): A(dmak_text(cfg, j), tag=("K", t))
        A(f"s_addk_i32 s{SOFFK}, 0x4000")
    else:
        A(f"s_pack_ll_b32_b16 m0, s{SOFFV}, 1")
        for j in range(4): A(dmav_text(cfg, j), tag=("V", t))
        A(f"s_addk_i32 s{SOFFV}, 0x4000")

def waitv(st, *tags):
    n = st.vm_needed(lambda o: o.tag in tags)
    if n is not None: st.add(f"s_waitcnt vmcnt({n})")

def xlane(st, op, x, y):
    for sw in ("v_permlane16_swap_b32", "v_permlane32_swap_b32"):
        st.add(f"v_mov_b32 v{y}, v{x}")
        st.add(f"{sw} v{x}, v{y}")
        st.add(f"{op} v{x}, v{x}, v{y}")

def softmax0(st, cfg, T, qb):
    W = set((v[0],) + tuple(v[2:]) for v in T.wrapped)
    for kb in range(4):
        for r in range(4):
            if ("EXP", kb, qb, r) not in W: st.add(sm_text("EXP", 0, kb, qb, r))
    for kb in range(4):
        for r in range(4):
            if qb not in cfg.ones and ("ADD", kb, qb, r) not in W: st.add(sm_text("ADD", 0, kb, qb, r))
        for r in range(2):
            if ("CVT", kb, qb, r) not in W: st.add(sm_text("CVT", 0, kb, qb, r))

def init_acc(st, cfg, zero=False):
    A = st.add
    if cfg.ooff and zero:
        A(f"s_mov_b32 s{SNC}, 0")
    if cfg.ooff and not zero: pass
    else:
        for i in range(128): A(f"v_accvgpr_write_b32 a{O0 + i}, 0")
    for i in range(16): A(f"v_accvgpr_write_b32 a{L0 + i}, 0")
    if len(cfg.ones) < 4:
        for i in range(8): A(f"v_mov_b32 v{LS + i}, 0")

def prologue(st, cfg, T):
    A = st.add
    A("s_cmp_ge_u32 s2, 0x100")
    A("s_cbranch_scc1 L_end")
    stamp(st, cfg, "start")
    A("s_load_dwordx8 s[4:11], s[0:1], 0")
    if cfg.stamps: A("s_load_dwordx2 s[56:57], s[0:1], %d" % (32 if cfg.dbg else 40))
    A("v_lshrrev_b32 v1, 6, v0")
    A("v_and_b32 v2, 63, v0")
    A(f"v_readfirstlane_b32 s{SW}, v1")
    A("v_and_b32 v3, 15, v2")
    A("v_lshrrev_b32 v4, 4, v2")
    def prefetch(lo, hi, idx):
        A(f"v_min_u32 v186, ({hi}-{lo}-4)/128, {idx}")
        A("v_lshlrev_b32 v186, 7, v186")
        if lo != "L_pc": A(f"v_add_u32 v186, {lo}-L_pc, v186")
        A("v_mov_b32 v187, s37")
        A("v_add_co_u32 v186, vcc, s36, v186")
        A("v_addc_co_u32 v187, vcc, 0, v187, vcc")
        A("global_load_dword v185, v[186:187], off", tag=("PF", 0))
    if cfg.pf:
        A("s_getpc_b64 s[36:37]")
        A("L_pc:")
        if cfg.pf == 1: prefetch("L_pc", "L_codeend", "v0")
        else:
            A("v_lshrrev_b32 v5, 2, v0")
            prefetch("L_pc", "L_entry", "v5")
    A("s_bfe_u32 s50, s2, 0x20001")
    A("s_and_b32 s51, s2, 1")
    A("s_lshl_b32 s51, s51, 5")
    A("s_lshr_b32 s52, s2, 3")
    A("s_or_b32 s51, s51, s52")
    A("s_lshl_b32 s52, s50, 6")
    A("s_add_u32 s51, s51, s52")
    A("s_lshl_b32 s51, s51, 16")
    A("s_lshl_b32 s50, s50, 19")
    A(f"s_lshl_b32 s{SW4K}, s{SW}, 12")
    A(f"s_lshl_b32 s{SQB}, s{SW}, 14")
    if cfg.qmap == 0:
        for i in range(1, 4): A(f"s_add_u32 s{SQB + i}, s{SQB}, {4096 * i}")
    elif cfg.qmap == 1:
        A(f"s_lshr_b32 s53, s2, 3")
        A(f"s_add_u32 s53, s53, s{SW}")
        A(f"s_mov_b32 s54, s{SQB}")
        for i in range(4):
            A(f"s_add_u32 s55, s53, {i}")
            A(f"s_and_b32 s55, s55, 3")
            A(f"s_lshl_b32 s55, s55, 12")
            A(f"s_add_u32 s{SQB + i}, s54, s55")
    elif cfg.qmap == 2:
        for i in range(4): A(f"s_add_u32 s{SQB + i}, s{SW4K}, {16384 * i}")
    elif cfg.qmap == 3:
        A(f"s_lshr_b32 s53, s2, 3")
        for i in range(4):
            A(f"s_add_u32 s55, s53, {i}")
            A(f"s_and_b32 s55, s55, 3")
            A(f"s_lshl_b32 s55, s55, 14")
            A(f"s_add_u32 s{SQB + i}, s{SW4K}, s55")
    A(f"s_mov_b32 s{SOFFK}, s{SW4K}")
    A(f"s_mov_b32 s{SOFFV}, s{SW4K}")
    A(f"s_lshl_b32 s53, s{SW}, 2")
    A("v_add_u32 v5, s53, v4")
    A("v_xor_b32 v5, v5, v3")
    A("v_lshlrev_b32 v6, 8, v4")
    A(f"v_lshl_add_u32 v{DK}, v5, 4, v6")
    for j in range(4):
        A(f"v_add_u32 v5, {4 * j}, v4")
        A("v_xor_b32 v5, v5, v3")
        A(f"v_lshl_add_u32 v{8 + j}, v5, 4, v6")
    A("s_waitcnt lgkmcnt(0)")
    stamp(st, cfg, "kernarg")
    def srd(srd, p, off, n):
        A(f"s_add_u32 s{srd}, s{p}, s{off}")
        A(f"s_addc_u32 s{srd + 1}, s{p + 1}, 0")
        A(f"s_mov_b32 s{srd + 2}, {n}")
        A(f"s_mov_b32 s{srd + 3}, 0x20000")
    if cfg.ooff: A("s_load_dwordx8 s[92:99], s[8:9], s50")
    srd(SK, 6, 50, 524288)
    dma_tile(st, cfg, "K", 0)
    srd(SQ, 4, 51, 65536)
    def dmaq(qb):
        A(f"s_add_u32 m0, s{SW4K}, {QSTAGE[qb]}")
        for j in range(4):
            A(f"buffer_load_dwordx4 v{8 + j}, s[{SQ}:{SQ+3}], s{SQB + qb} offen offset:{1024 * j}{cfg.qpol} lds", tag=("Q", qb))
    def part2():
        srd(SV, 8, 50, 524288)
        srd(SO, 10, 51, 65536)
        A(f"s_and_b32 s53, s{SW}, 1")
        A("s_lshl_b32 s53, s53, 2")
        A("v_add_u32 v5, s53, v4")
        A("v_lshlrev_b32 v5, 1, v5")
        A("v_xor_b32 v5, v5, v3")
        A(f"v_lshl_add_u32 v{DV}, v5, 4, v6")
        A("v_lshrrev_b32 v5, 2, v3")
        A("v_lshlrev_b32 v5, 12, v5")
        A("v_and_b32 v6, 3, v3")
        A("v_lshl_add_u32 v5, v6, 8, v5")
        A(f"v_lshl_add_u32 v7, v3, 8, s{SW4K}")
        for s in range(4):
            A(f"v_add_u32 v6, {4 * s}, v4")
            A("v_xor_b32 v6, v6, v3")
            A(f"v_lshl_add_u32 v{KA + s}, v6, 4, v5")
            A(f"v_lshl_add_u32 v{12 + s}, v6, 4, v7")
            A(f"v_add_u32 v{12 + s}, {QSTAGE[0]}, v{12 + s}")
        A("v_lshrrev_b32 v5, 1, v4")
        A("v_xor_b32 v5, v5, v3")
        A("v_lshl_add_u32 v5, v5, 4, v7")
        A("v_and_b32 v6, 1, v4")
        if cfg.wfix:
            A("v_lshrrev_b32 v1, 3, v3")
            A("v_xor_b32 v6, v6, v1")
        A(f"v_lshl_add_u32 v{OW}, v6, 3, v5")
        A("v_xor_b32 v5, v3, v4")
        A("v_lshlrev_b32 v5, 4, v5")
        A("v_lshl_add_u32 v5, v4, 8, v5")
        A(f"v_add_u32 v{OR_}, s{SW4K}, v5")
        if cfg.pkt >= 2:
            for db in range(8): A(f"v_xor_b32 v{WA + db}, {32 * db}, v{OW}")
            for k in (3, 2, 0, 1): A(f"v_xor_b32 v{RA[k]}, {64 * k}, v{OR_}")
        A(f"v_lshlrev_b32 v{OS}, 4, v2")
        if cfg.sperm:
            A("v_and_b32 v5, 3, v2")
            A("v_lshrrev_b32 v6, 2, v2")
            A("v_lshlrev_b32 v6, 4, v6")
            A(f"v_lshl_add_u32 v{OS}, v5, 8, v6")
        A("v_lshrrev_b32 v5, 2, v3")
        A("v_and_b32 v6, 1, v4")
        A("v_lshl_add_u32 v6, v6, 2, v5")
        A("v_lshl_add_u32 v5, v4, 4, v5")
        A("v_lshlrev_b32 v5, 8, v5")
        A("v_and_b32 v7, 3, v3")
        A("v_lshl_add_u32 v5, v7, 3, v5")
        A(f"v_add_u32 v5, {VBASE}, v5")
        for db in range(8):
            A(f"v_xor_b32 v7, {db}, v6")
            A(f"v_lshl_add_u32 v{VA + db}, v7, 5, v5")
        if cfg.ap:
            A("v_lshlrev_b32 v5, 2, v4")
            A("v_sub_u32 v5, v3, v5")
            A("v_mov_b32 v6, 0x3f80")
            A("v_mov_b32 v7, 0x3f800000")
            for h in range(2):
                A(f"v_cmp_eq_u32 vcc, {2 * h}, v5")
                A(f"v_cndmask_b32 v{IDN + h}, 0, v6, vcc")
                A(f"v_cmp_eq_u32 vcc, {2 * h + 1}, v5")
                A(f"v_cndmask_b32 v{IDN + h}, v{IDN + h}, v7, vcc")
        if cfg.head:
            for i in range(16): A(f"v_accvgpr_write_b32 a{L0 + i}, 0")
        else: init_acc(st, cfg)
        A("v_mov_b32 v5, 0x3f803f80")
        if cfg.zrow:
            assert not cfg.ap
            A(f"v_cmp_gt_u32 vcc, {2 if cfg.smf else 1}, v3")
            A("v_cndmask_b32 v5, 0, v5, vcc")
        if cfg.smf:
            assert not cfg.ap
            A("v_and_b32 v6, 1, v3")
            A("v_mov_b32 v7, 0xeeeeeeee")
            A(f"v_mov_b32 v{SIDX}, 0x44444444")
            A("v_cmp_eq_u32 vcc, 1, v6")
            A(f"v_cndmask_b32 v{SIDX}, v{SIDX}, v7, vcc")
        for i in range(4): A(f"v_accvgpr_write_b32 a{ONES + i}, v5")
        c = math.log2(math.e) / math.sqrt(128.0)
        A(f"s_mov_b32 s{SC}, {f32bits(c):#x}")
        A(f"s_mov_b32 s{SC + 1}, s{SC}")
        A(f"s_mov_b32 s{SC - 1}, 0xffff0000")
        A(f"s_mov_b32 s{SCNT}, {cfg.trips}")
        A(f"s_mov_b32 s{SMODE}, 0")
        if cfg.wv == 4: A(f"s_mov_b32 s{SVER}, s{SW}")
        elif cfg.wv == 2: A(f"s_and_b32 s{SVER}, s{SW}, 1" if cfg.wsel else f"s_lshr_b32 s{SVER}, s{SW}, 1")
        if cfg.ooff: A(f"s_mov_b32 s{S256}, 0x44800000")
        if cfg.perm: A("s_mov_b32 s42, 0x07060302")
        if cfg.itstamp: A("s_mov_b32 s35, -1"); A("v_mov_b32 v188, 0")
        A(f"s_mov_b32 s{SX8000}, 0x8000")
    def oinit1():
        A("s_waitcnt lgkmcnt(0)")
        A("s_mov_b32 s52, 0")
        for i in range(8):
            A(f"s_lshl_b32 s53, s{92 + i}, 16")
            A(f"s_and_b32 s53, s53, 0x7f800000")
            A(f"s_and_b32 s54, s{92 + i}, 0x7f800000")
            A("s_max_u32 s52, s52, s53")
            A("s_max_u32 s52, s52, s54")
        A(f"s_add_u32 s52, s52, {(int(cfg.boff) + cfg.ooff) << 23:#x}")
        A("s_min_u32 s52, s52, 0x70000000")
        A("s_or_b32 s52, s52, 0x400000")
        A(f"s_or_b32 s{SNC}, s52, 0x80000000")
    def oinit2():
        A("v_mov_b32 v6, s52")
        for i in range(128): A(f"v_accvgpr_write_b32 a{O0 + i}, v6")
    pend = [("K", 1), ("V", 0), ("K", 2), ("V", 1), ("K", 3)] if cfg.kdepth == 4 else [("K", 1), ("V", 0), ("V", 1), ("K", 2)]
    done_q = [0]
    def later(n):
        for _ in range(n):
            w, t = pend.pop(0)
            assert (w, t) not in (("V", 1), ("K", 3)) or done_q[0] >= 2
            dma_tile(st, cfg, w, t)
    for qb in range(cfg.qfirst): dmaq(qb)
    stamp(st, cfg, "dmaQa")
    part2()
    stamp(st, cfg, "init")
    if cfg.head:
        for x in cfg.hord:
            if x == "K": dma_tile(st, cfg, "K", 1)
            elif x == "V": dma_tile(st, cfg, "V", 0)
            else: dmaq(int(x))
    else:
        for qb in range(cfg.qfirst, 4):
            if cfg.ooff and cfg.oiw == qb + 1: oinit1(); oinit2()
            dmaq(qb)
        later(cfg.sched[0])
    if cfg.pf == 2:
        st.vm = [o for o in st.vm]
        for o in st.vm:
            if o.tag == ("PF", 0): o.wr = set()
        prefetch("L_entry", "L_codeend", "v0")
    stamp(st, cfg, "dmaQb")
    if cfg.probe:
        waitv(st, ("K", 0)); stamp(st, cfg, "pK0")
        for qb in range(4):
            waitv(st, ("Q", qb)); stamp(st, cfg, f"pQ{qb}")
    def Rq(qb):
        waitv(st, ("Q", qb))
        stamp(st, cfg, f"Q{qb}landed")
        qoff = QSTAGE[qb] - QSTAGE[0]
        if qb == 3:
            qoff -= 16384
        for s in range(4):
            A(f"ds_read_b128 {R('v', Qf(qb, s), 4)}, v{12 + s} offset:{qoff}")
    def Aq(qb):
        for s in range(4):
            st.wait_regs(R('v', Qf(qb, s), 4))
            tb = P0 + 32 + 8 * s
            for i in range(4):
                x = Qf(qb, s) + i
                A(f"v_lshlrev_b32 v{tb + 2 * i}, 16, v{x}")
                A(f"v_and_b32 v{tb + 2 * i + 1}, s{SC - 1}, v{x}")
            for i in range(4):
                A(f"v_pk_mul_f32 v[{tb + 2 * i}:{tb + 2 * i + 1}], v[{tb + 2 * i}:{tb + 2 * i + 1}], s[{SC}:{SC + 1}]")
            for i in range(4):
                A(f"v_cvt_pk_bf16_f32 v{Qf(qb, s) + i}, v{tb + 2 * i}, v{tb + 2 * i + 1}")
        if qb == 2:
            for s in range(4): A(f"v_add_u32 v{12 + s}, 0x4000, v{12 + s}")
        done_q[0] = qb + 1
    def dma_list(n):
        L = []
        for _ in range(n):
            w, t = pend.pop(0)
            assert (w, t) not in (("V", 1), ("K", 3)) or done_q[0] >= 2
            so = SOFFK if w == "K" else SOFFV
            L.append(("s", f"s_pack_ll_b32_b16 m0, s{so}, {0 if w == 'K' else 1}", None))
            for j in range(4): L.append(("m", (dmak_text if w == "K" else dmav_text)(cfg, j), (w, t)))
            L.append(("s", f"s_addk_i32 s{so}, 0x4000", None))
        return L
    def Bq(qb, early, dmas):
        x = Sb(0, qb)
        mx = [f"v_max3_f32 v1, v{x}, v{x + 1}, v{x + 2}", f"v_max_f32 v1, v1, v{x + 3}"]
        for sw in ("v_permlane16_swap_b32", "v_permlane32_swap_b32"):
            mx += ["v_mov_b32 v5, v1", "-", f"{sw} v1, v5", "v_max_f32 v1, v1, v5"]
        mx += [f"v_sub_f32 v{NEGM + 4 * qb + i}, {f32bits(float(cfg.boff)):#x}, v1" for i in range(4)]
        i = 0
        for kb in range(4):
            for s in range(4):
                d = R("v", Sb(kb, qb), 4)
                st.wait_regs(R('a', K0f(kb, s), 4))
                A(f"{MF} {d}, {R('a', K0f(kb, s), 4)}, {R('v', Qf(qb, s), 4)}, {'0' if s == 0 else d}")
                if i >= cfg.mxstart:
                    for _ in range(2):
                        if mx:
                            y = mx.pop(0)
                            if y == "-": break
                            A(y)
                elif dmas:
                    while dmas and dmas[0][0] == "s": A(dmas.pop(0)[1])
                    if dmas: _, y, tg = dmas.pop(0); A(y, tag=tg)
                elif early:
                    y = early.pop(0); A(y)
                    if not y.startswith("v_exp") and early and not early[0].startswith("v_exp"): A(early.pop(0))
                i += 1
        for _, y, tg in dmas: A(y, tag=tg)
        for y in mx:
            if y != "-": A(y)
        for y in early: A(y)
    def Eq(qb):
        tmp = Stream()
        x = [Sb(kb, qb) + r for kb in range(4) for r in range(4)]
        L = [f"v_pk_add_f32 v[{x[i]}:{x[i] + 1}], v[{x[i]}:{x[i] + 1}], v[{NEGM + 4 * qb}:{NEGM + 4 * qb + 1}]" for i in range(0, 16, 2)]
        softmax0(tmp, cfg, T, qb)
        return L + [i.text for i in tmp.ins if i.tag != "autonop"]
    def sync1():
        waitv(st, ("K", 1), ("V", 0))
        A("s_barrier")
        for s in range(4): A(kr_text(1, 0, s))
    if cfg.head or cfg.lite:
        head_phase(st, cfg, T, Rq)
        return
    if cfg.ooff and cfg.oiw < 3:
        oinit1()
        if cfg.oiw == 0: oinit2()
    Rq(0)
    waitv(st, ("K", 0))
    A("s_barrier")
    stamp(st, cfg, "B0")
    for kb in range(4):
        for s in range(4):
            A(f"ds_read_b128 {R('a', K0f(kb, s), 4)}, v{KA + s} offset:{kb * 1024}")
    Aq(0); Bq(0, [], dma_list(cfg.sched[1]))
    for y in Eq(0): A(y)
    if cfg.pf == 3: prefetch("L_entry", "L_codeend", "v0")
    if cfg.ooff and cfg.oiw == 1: oinit2()
    Rq(1); Aq(1); Bq(1, [], dma_list(cfg.sched[2]))
    for y in Eq(1): A(y)
    if cfg.pf == 4: prefetch("L_entry", "L_codeend", "v0")
    for _, y, tg in dma_list(cfg.sched[3]): A(y, tag=tg)
    if cfg.ooff and cfg.oiw == 2: oinit2()
    Rq(2); Aq(2); Bq(2, [], dma_list(cfg.sched[4]))
    e2 = Eq(2)
    Rq(3)
    for _ in range(cfg.e2first): A(e2.pop(0))
    Aq(3); Bq(3, e2, dma_list(len(pend)))
    sync1()
    if cfg.otouch: A(f"buffer_load_dword v185, v{OS}, s[{SO}:{SO+3}], s{SQB} offen nt", tag=("T", 0))
    for y in Eq(3): A(y)
    A("s_waitcnt lgkmcnt(0)")
    stamp(st, cfg, "mainstart")
    A("s_branch L_entry")

def head_phase(st, cfg, T, Rq):
    A = st.add
    def K0b(kb, s):
        f = kb * 4 + s
        if cfg.lite: return R('a', K0f(kb, s), 4)
        return R('a', KF + 4 * f, 4) if f < 8 else R('a', Ob(f - 8, 3), 4)
    def K1b(kb, s, late):
        f = kb * 4 + s
        if f < 8: return R('a', Ob(f, 2), 4)
        f -= 8
        return R('v', Sb(f // 2, (0 if late else 2) + f % 2), 4)
    Wr = set((v[0],) + tuple(v[2:]) for v in T.wrapped)
    def scale(qb):
        L = []
        for s in range(4):
            tb = Pf(1, 2, 0) + 8 * (s % 2) if not cfg.lite else P0 + 32 + 8 * s
            for i in range(4):
                x = Qf(qb, s) + i
                L.append(f"v_lshlrev_b32 v{tb + 2 * i}, 16, v{x}")
                L.append((f"v_and_b32 v{tb + 2 * i + 1}, s{SC - 1}, v{x}", None, (), (f"qd{qb}_{s}",) if i == 3 else ()))
            for i in range(4): L.append(f"v_pk_mul_f32 v[{tb + 2 * i}:{tb + 2 * i + 1}], v[{tb + 2 * i}:{tb + 2 * i + 1}], s[{SC}:{SC + 1}]")
            for i in range(4): L.append(f"v_cvt_pk_bf16_f32 v{Qf(qb, s) + i}, v{tb + 2 * i}, v{tb + 2 * i + 1}")
        return L
    def qk0(qb):
        L = []
        for kb in range(4):
            for s in range(4):
                d = R("v", Sb(kb, qb), 4)
                L.append(f"{MF} {d}, {K0b(kb, s)}, {R('v', Qf(qb, s), 4)}, {'0' if s == 0 else d}")
        x = Sb(0, qb); a, b = (1, 5) if qb % 2 == 0 else (6, 7)
        L += [f"v_max3_f32 v{a}, v{x}, v{x + 1}, v{x + 2}", f"v_max_f32 v{a}, v{a}, v{x + 3}"]
        for sw in ("v_permlane16_swap_b32", "v_permlane32_swap_b32"):
            L += [f"v_mov_b32 v{b}, v{a}", f"{sw} v{a}, v{b}", f"v_max_f32 v{a}, v{a}, v{b}"]
        L += [f"v_sub_f32 v{NEGM + 4 * qb + i}, 0, v{a}" for i in range(4)]
        return L
    def sm(tt, qb):
        L = []
        for kb in range(4):
            x = Sb(kb, qb)
            if tt == 0:
                if cfg.hpk: L += [f"v_pk_add_f32 v[{x + i}:{x + i + 1}], v[{x + i}:{x + i + 1}], v[{NEGM + 4 * qb}:{NEGM + 4 * qb + 1}]" for i in (0, 2)]
                else: L += [f"v_add_f32 v{x + i}, v{x + i}, v{NEGM + 4 * qb}" for i in range(4)]
            for r in range(4):
                if (tt == 0 and not cfg.lite) or ("EXP", kb, qb, r) not in Wr: L.append(sm_text("EXP", tt, kb, qb, r))
            for r in range(2):
                if (tt == 0 and not cfg.lite) or ("CVT", kb, qb, r) not in Wr: L.append(sm_text("CVT", tt, kb, qb, r))
        return L
    def qk1(qb):
        L = []
        for kb in range(4):
            for s in range(4):
                d = R("v", Sb(kb, qb), 4)
                L.append(f"{MF} {d}, {K1b(kb, s, qb >= 2)}, {R('v', Qf(qb, s), 4)}, {R('v', NEGM + 4 * qb, 4) if s == 0 else d}")
        return L
    def pv0(qb):
        L = [mfma_text(cfg, ("ONE", qb, 0), 0)]
        for db in range(8):
            d = R("a", Ob(db, qb), 4)
            for sl in range(2):
                L.append(f"{MF} {d}, {R('a', Vf(db, sl), 4)}, {R('v', Pf(0, qb, sl), 4)}, {'0' if sl == 0 else d}")
        return L
    def dma(w, t, after=()):
        so = SOFFK if w == "K" else SOFFV
        L = [f"s_pack_ll_b32_b16 m0, s{so}, {0 if w == 'K' else 1}"]
        for j in range(4): L.append(((dmak_text if w == "K" else dmav_text)(cfg, j), (w, t), ("vmq",) + tuple(after), ("vmq",)))
        L.append(f"s_addk_i32 s{so}, 0x4000")
        return L
    def run(items, name):
        out, tend = schedule(items, mfma_bias=cfg.mbias)
        sys.stderr.write(f"  head region {name}: {len(out)} instrs, model {tend} cycles\n")
        for x, tg in out:
            i = parse(x)
            n = st.lgkm_needed(i.rd | i.wr)
            if n is not None: A(f"s_waitcnt lgkmcnt({n})")
            A(x, tag=tg)
    def dq(qb):
        L = [f"s_add_u32 m0, s{SW4K}, {QSTAGE[qb]}"]
        for j in range(4):
            L.append((f"buffer_load_dwordx4 v{8 + j}, s[{SQ}:{SQ+3}], s{SQB + qb} offen offset:{1024 * j}{cfg.qpol} lds", ("Q", qb), ("vmq",), ("vmq",)))
        return L
    def lst(spec):
        L = []
        for x in spec:
            L += dma("K", 1) if x == "K" else dma("V", 0) if x == "V" else dq(int(x))
        return L
    def now(L):
        for x in L:
            if isinstance(x, str): A(x)
            else: A(x[0], tag=x[1])
    k0r = [f"ds_read_b128 {K0b(kb, s)}, v{KA + s} offset:{kb * 1024}" for kb in range(4) for s in range(4)]
    k1r = lambda late, fr: [f"ds_read_b128 {K1b(f // 4, f % 4, late)}, v{KA + f % 4} offset:{16384 + (f // 4) * 1024}" for f in fr]
    v0r = [vr_text(0, db, sl, u) for db in range(8) for sl in range(2) for u in range(2)]
    qd = lambda qb: tuple(f"qd{qb}_{s}" for s in range(4))
    rel = dict(zip(("B0", "Q1", "B1", "Q2", "Q3", "B2", "D2", "D3", "D4", "D5", "DV", "BV", "Q0"), cfg.rel + [0] * 5))
    def dep(L, rd=(), wr=(), rl_=0):
        out = []
        for x in L:
            if isinstance(x, str): x = (x, None, (), ())
            out.append((x[0], x[1], tuple(x[2]) + tuple(rd), tuple(x[3]) + tuple(wr), rl_))
        return out
    def rq(qb):
        qoff = QSTAGE[qb] - QSTAGE[0] - (16384 if qb == 3 else 0)
        L = [(f"@W Q{qb}", None, (f"iss_Q{qb}",), (f"q{qb}",), rel.get(f"Q{qb}", 0))]
        L += dep([f"ds_read_b128 {R('v', Qf(qb, s), 4)}, v{12 + s} offset:{qoff}" for s in range(4)], rd=(f"q{qb}",))
        if qb == 2: L += [f"v_add_u32 v{12 + s}, 0x4000, v{12 + s}" for s in range(4)]
        return L
    def bar(name, tiles, rd=()):
        return [(f"@B {tiles}", None, tuple(f"iss_{x}" for x in tiles.split(",")) + tuple(rd), (name,), rel[name])]
    def iss(L, name, r, after=()):
        L = dep(L, rl_=r)
        L = [(x[0], x[1], x[2] + (tuple(after) if x[1] else ()), x[3] + ((f"iss_{name}",) if x[1] else ()), x[4]) for x in L]
        return L
    xk = [f"v_xor_b32 v{KA + s}, s{SX8000}, v{KA + s}" for s in range(4)]
    toks = []
    def tok(L):
        out = []
        for x in L:
            toks.append(f"tok{len(toks)}"); out.append((x[0], x[1], x[2], x[3] + (toks[-1],), x[4]))
        return out
    P = []
    if cfg.b0first: P += bar("B0", "K0") + rq(0) + tok(dep(k0r, rd=("B0",)))
    else: P += rq(0) + bar("B0", "K0") + tok(dep(k0r, rd=("B0",)))
    late = [x for x in cfg.hlate]
    for x in late:
        if x == "V": P += iss(dma("V", 0), "V0", rel["DV"], after=("q0",))
        else: P += iss(dq(int(x)), f"Q{x}", rel[f"D{x}"], after=("q0",))
    P += scale(0) + qk0(0) + sm(0, 0) + rq(1) + scale(1) + qk0(1)
    if "V" in late:
        P += bar("B1", "K1") + tok(dep(k1r(False, range(16)), rd=("B1",)))
        P += bar("BV", "V0") + tok(dep(v0r, rd=("BV",)))
    else:
        P += bar("B1", "K1,V0") + tok(dep(k1r(False, range(16)) + v0r, rd=("B1",)))
    P += sm(0, 1) + qk1(0) + qk1(1) + pv0(0) + sm(1, 0) + pv0(1) + sm(1, 1) + tok(dep(k1r(True, range(8, 16)), rd=("B1",)))
    P += iss(dma("V", 1), "V1", rel["D4"], after=qd(1)) + iss(dma("K", 2), "K2", rel["D4"])
    P += rq(2) + scale(2) + qk0(2) + rq(3) + xk
    P += iss(dma("V", 2), "V2", rel["D5"], after=qd(2)) + iss(dma("K", 3), "K3", rel["D5"], after=qd(0))
    P += sm(0, 2) + scale(3) + qk0(3) + qk1(2) + sm(0, 3) + qk1(3) + sm(1, 2) + pv0(2)
    P += bar("B2", "K2,V1", rd=tuple(toks))
    P += dep([kr_text(2, 0, s) for s in range(4)], rd=("B2",))
    P += sm(1, 3) + pv0(3)
    P += [("@E", None, tuple(f"a{KF + i}" for i in range(16)) + tuple(f"v{Sb(3, 3) + i}" for i in range(4)), (), 0)]
    if cfg.lite:
        toks.clear()
        P = rq(0) + bar("B0", "K0") + tok(dep(k0r, rd=("B0",)))
        P += iss(dma("K", 1), "K1", rel["D2"], after=("q0",)) + iss(dma("V", 0), "V0", rel["D3"])
        for qb in range(4):
            if qb: P += rq(qb)
            P += scale(qb) + qk0(qb) + sm(0, qb)
            if qb == 1: P += iss(dma("V", 1), "V1", rel["D4"], after=qd(1)) + iss(dma("K", 2), "K2", rel["D5"])
        P += bar("B1", "K1,V0", rd=tuple(toks))
        P += dep([kr_text(1, 0, s) for s in range(4)], rd=("B1",))
        P += [("@E", None, tuple(f"a{KF + i}" for i in range(16)) + tuple(f"v{Sb(3, 3) + i}" for i in range(4)), (), 0)]
    out, tend = schedule(P, tries=cfg.tries)
    sys.stderr.write(f"  head: {len(out)} instrs, model {tend} cycles\n")
    for x, tg in out:
        if x == "@E": continue
        if x.startswith("@"):
            tiles = [(y[0], int(y[1:])) for y in x.split()[1].split(",")]
            waitv(st, *tiles)
            if x.startswith("@B"):
                if "K2" in x or (cfg.lite and "K1" in x):
                    pend_ = set(r for y in k0r + k1r(True, range(16)) + k1r(False, range(16)) + v0r for r in parse(y).wr)
                    n = st.lgkm_needed(pend_)
                    if n is not None: A(f"s_waitcnt lgkmcnt({n})")
                A("s_barrier")
            stamp(st, cfg, x.split()[1].replace(",", ""))
            continue
        i = parse(x)
        n = st.lgkm_needed(i.rd | i.wr)
        if n is not None: A(f"s_waitcnt lgkmcnt({n})")
        A(x, tag=tg)
    A("s_waitcnt lgkmcnt(0)")
    stamp(st, cfg, "mainstart")
    if cfg.enop >= 0: A(f"s_nop {cfg.enop}")
    A("s_branch L_odd" if cfg.head else "s_branch L_entry")

IDN = 186
def rl(cfg, qb, i): return NEGM + 4 * qb + (i if cfg.ap else 0)

def tail(st, cfg, T):
    A = st.add
    t = NT - 1
    if cfg.twice:
        A("s_mov_b32 s35, 2")
        A("L_twice:")
        A("s_waitcnt vmcnt(0)")
        A("s_barrier")
    stamp(st, cfg, "loopend")
    vr = [vr_text(t, db, sl, u) for db in range(8) for sl in range(2) for u in range(2)]
    wr = [sm_text(v[0], t, v[2], v[3], v[4]) for v in T.wrapped]
    def pv(qb):
        return [mfma_text(cfg, ("PV", db, qb, sl), t) for db in range(8) for sl in ((0, 1) if db % 2 == 0 else (1, 0))]
    def emit(x):
        i = parse(x)
        if i.kind == "vst" and (cfg.nostore == 1):
            n = st.lgkm_needed(i.rd)
            if n is not None: A(f"s_waitcnt lgkmcnt({n})")
            return
        n = st.lgkm_needed(i.rd | i.wr)
        if n is not None: A(f"s_waitcnt lgkmcnt({n})")
        A(x)
    def lpre(qb):
        L = []
        if qb in cfg.ones:
            for i in range(4 if cfg.ap else 1): L.append(f"v_accvgpr_read_b32 v{rl(cfg, qb, i)}, a{L0 + 4 * qb + i}")
            x = rl(cfg, qb, 0)
            if cfg.smf:
                L.append(f"v_accvgpr_read_b32 v{x + 1}, a{L0 + 4 * qb + 1}")
                L.append(f"v_add_f32 v{x}, v{x}, v{x + 1}")
            if cfg.zrow:
                for sw in ("v_permlane16_swap_b32", "v_permlane32_swap_b32"):
                    L.append(f"v_mov_b32 v{x + 1}, v{x}")
                    L.append(f"{sw} v{x}, v{x + 1}")
                    L.append(f"v_add_f32 v{x}, v{x}, v{x + 1}")
        else:
            assert not cfg.ap
            x = rl(cfg, qb, 0)
            L.append(f"v_add_f32 v{x}, v{LS + 2 * qb}, v{LS + 2 * qb + 1}")
            for sw in ("v_permlane16_swap_b32", "v_permlane32_swap_b32"):
                L.append(f"v_mov_b32 v{x + 1}, v{x}")
                L.append(f"{sw} v{x}, v{x + 1}")
                L.append(f"v_add_f32 v{x}, v{x}, v{x + 1}")
        for i in range(4 if cfg.ap else 1): L.append(f"v_rcp_f32 v{rl(cfg, qb, i)}, v{rl(cfg, qb, i)}")
        return L
    def epi(qb, packed, last):
        L = []
        tb = S0 + (qb % 2) * 32
        pk = P0 + ((t + 1) % 2) * 32 + (qb % 2) * 16
        def fin(db):
            x = tb + 4 * db
            return [f"v_cvt_pk_bf16_f32 v{pk + 2 * db + i}, v{x + 2 * i}, v{x + 2 * i + 1}" for i in range(2)] + \
                   [f"ds_write_b64 v{VA + db}, v[{pk + 2 * db}:{pk + 2 * db + 1}] offset:{qb * 16384}"]
        for db in range(8):
            x = tb + 4 * db
            for i in range(4): L.append(f"v_accvgpr_read_b32 v{x + i}, a{Ob(db, qb) + i}")
            if packed:
                for i in (0, 2):
                    r = rl(cfg, qb, i)
                    L.append(f"v_pk_mul_f32 v[{x + i}:{x + i + 1}], v[{x + i}:{x + i + 1}], v[{r}:{r + 1}]" + ("" if cfg.ap else " op_sel_hi:[1,0]"))
            else:
                for i in range(4): L.append(f"v_mul_f32 v{x + i}, v{x + i}, v{rl(cfg, qb, i)}")
            if cfg.ap:
                for i in range(2): L.append(f"v_cvt_pk_bf16_f32 v{pk + 2 * db + i}, v{x + 2 * i}, v{x + 2 * i + 1}")
                if db > 0: L += fin(db - 1)
                L.append(f"v_mfma_f32_16x16x16_bf16 v[{x}:{x + 3}], v[{pk + 2 * db}:{pk + 2 * db + 1}], v[{IDN}:{IDN + 1}], 0")
            else:
                L += fin(db)
        if cfg.ap: L += fin(7)
        if last and packed and cfg.wgrp > 1:
            W = [x for x in L if x.startswith("ds_write")]; V = [x for x in L if not x.startswith("ds_write")]
            per = len(V) // 8; L = []
            for k in range(0, 8, cfg.wgrp): L += V[k * per:(k + cfg.wgrp) * per] + W[k:k + cfg.wgrp]
        for n in range(4): L.append(f"ds_read_b128 v[{tb + 4 * n}:{tb + 4 * n + 3}], v{KA + n} offset:{qb * 16384 + n * 1024}")
        St = [f"buffer_store_dwordx4 v[{tb + 4 * n}:{tb + 4 * n + 3}], v{OS}, s[{SO}:{SO+3}], s{SQB + qb} offen offset:{n * 1024}{cfg.opol}" for n in range(4)]
        return L, St
    addr = [f"v_xor_b32 v{VA + db}, {32 * db}, v{OW}" for db in range(8)] + [f"v_xor_b32 v{KA + n}, {64 * n}, v{OR_}" for n in range(4)]
    for _ in range(8): A(vr.pop(0))
    for x in wr: A(x)
    fill = []
    mf = [mfma_text(cfg, ("ONE", qb, sl), t) for qb in cfg.ones for sl in range(1 if cfg.smf else 2)] + pv(0)
    n1 = len(mf) - 16
    rest = lpre(0) + addr + ["s_waitcnt vmcnt(0)"]
    for i, m in enumerate(mf):
        emit(m)
        if vr:
            A(vr.pop(0))
            if vr and i >= n1 - 2: A(vr.pop(0))
        else:
            for _ in range(2):
                if rest: emit(rest.pop(0))
    prev = []
    for qb in range(4):
        L, St = epi(qb, (qb == 3 or cfg.pkt) and not cfg.ap, qb == 3)
        L = rest + L; rest = []
        for n, x in enumerate(prev): L.insert(cfg.stdelay + n * (cfg.ststep + 1), x)
        prev = St
        if qb < 3:
            L = L[:-7] + lpre(qb + 1) + L[-7:]
            mf = pv(qb + 1)
            ismem = lambda x: x.startswith("ds_") or x.startswith("buffer_")
            if cfg.pkt:
                stores = [x for x in L if x.startswith("buffer_")]
                L2 = []; k = 0; nw = 0
                for x in L:
                    if x.startswith("buffer_"): continue
                    if x.startswith("ds_write"):
                        L2 += [mf[k], x, mf[k + 1]]; k += 2; nw += 1
                        if stores and nw >= 2 and nw % 2 == 0 or (stores and nw == 7): L2.append(stores.pop(0))
                    else: L2.append(x)
                assert not stores and k == 16
                L = L2; mf = []
            pos = [i for i, x in enumerate(L) if ismem(x) and not (i and (ismem(L[i - 1]) or "mfma" in L[i - 1]))]
            while len(pos) < 16 and mf:
                e = [0] + pos
                runs = [(e[k + 1] - e[k], k) for k in range(len(pos))]
                ln, k = max(runs)
                pos.append(e[k] + (ln + 1) // 2 if k else 0); pos = sorted(set(pos))
            for n, m in enumerate(mf): L.insert(pos[n] + n, m)
        stamp(st, cfg, f"stg{qb}")
        for x in L: emit(x)
    stamp(st, cfg, "stg4")
    for x in prev: emit(x)

WA = LS
RA = [182, 183, 190, 191]
def tail2(st, cfg, T):
    A = st.add
    t = NT - 1
    assert cfg.smf and not cfg.ap and len(cfg.ones) == 4
    stamp(st, cfg, "loopend")
    vr = [vr_text(t, db, sl, u) for db in range(8) for sl in range(2) for u in range(2)]
    wr = [sm_text(v[0], t, v[2], v[3], v[4]) for v in T.wrapped]
    assert all(v[3] >= 2 for v in T.wrapped)
    def emit(x):
        i = parse(x)
        n = st.lgkm_needed(i.rd | i.wr)
        if n is not None: A(f"s_waitcnt lgkmcnt({n})")
        if i.kind == "vst" and cfg.nostore: return
        A(x)
    def pv(n):
        qb, db = n // 8, n % 8
        return [mfma_text(cfg, ("PV", db, qb, sl), t) for sl in ((0, 1) if db % 2 == 0 else (1, 0))]
    def one(qb): return mfma_text(cfg, ("ONE", qb, 0), t)
    def lpre(qb):
        x = rl(cfg, qb, 0)
        L = [f"v_accvgpr_read_b32 v{x}, a{L0 + 4 * qb}", f"v_accvgpr_read_b32 v{x + 1}, a{L0 + 4 * qb + 1}", f"v_add_f32 v{x}, v{x}, v{x + 1}"]
        if cfg.zrow:
            for sw in ("v_permlane16_swap_b32", "v_permlane32_swap_b32"):
                L += [f"v_mov_b32 v{x + 1}, v{x}", f"{sw} v{x}, v{x + 1}", f"v_add_f32 v{x}, v{x}, v{x + 1}"]
        return L + [f"v_rcp_f32 v{x}, v{x}"]
    LAG = cfg.tlag
    for _ in range(4): A(vr.pop(0))
    emit(one(0))
    for _ in range(4): A(vr.pop(0))
    emit(one(1))
    for _ in range(4): A(vr.pop(0))
    A("s_waitcnt vmcnt(0)")
    for x in wr: A(x)
    for x in lpre(0): emit(x)
    for n in range(LAG):
        m = pv(n)
        emit(m[0]); A(vr.pop(0)); A(vr.pop(0)); emit(m[1]); A(vr.pop(0)); A(vr.pop(0))
    emit(one(2));
    for x in lpre(1): emit(x)
    emit(one(3))
    stores = []
    for n in range(32):
        qb, db = n // 8, n % 8
        tb = S0 + (qb % 2) * 32
        pk = P0 + ((t + 1) % 2) * 32 + (qb % 2) * 16
        x = tb + 4 * db; r = rl(cfg, qb, 0)
        for i in range(4): emit(f"v_accvgpr_read_b32 v{x + i}, a{Ob(db, qb) + i}")
        if db == 4 and qb in (1, 2):
            for y in lpre(qb + 1): emit(y)
        if cfg.fallback and cfg.early and n == 21:
            rr = [rl(cfg, q, 0) for q in range(4)]
            A(f"s_mov_b32 s36, {f32bits(2.0 ** (-40 - cfg.boff)):#x}")
            A(f"v_min_f32 v3, v{rr[0]}, v{rr[1]}")
            A(f"s_lshl_b32 s38, s{SW}, 2")
            A(f"v_min3_f32 v3, v3, v{rr[2]}, v{rr[3]}")
            A(f"s_add_u32 s38, s38, {FLAGS}")
            A("v_cmp_nle_f32 vcc, s36, v3")
            A(f"v_mov_b32 v2, {FLAGS}")
            A("v_mov_b32 v3, s38")
        if cfg.fallback and cfg.early and n == 22:
            A("s_cmp_lg_u64 vcc, 0")
            A("s_cselect_b32 s37, 1, 0")
            A("v_mov_b32 v1, s37")
        for i in (0, 2): emit(f"v_pk_mul_f32 v[{x + i}:{x + i + 1}], v[{x + i}:{x + i + 1}], v[{r}:{r + 1}] op_sel_hi:[1,0]")
        for i in range(2): emit(f"v_cvt_pk_bf16_f32 v{pk + 2 * db + i}, v{x + 2 * i}, v{x + 2 * i + 1}")
        if cfg.fallback and cfg.early and n == 29:
            emit("v_or_b32 v4, v4, v5")
            emit("v_or3_b32 v4, v4, v6, v7")
        if cfg.fallback and cfg.early and n == 30:
            A("v_readfirstlane_b32 s37, v4")
        m = pv(n + LAG) if n + LAG < 32 else []
        W = f"ds_write_b64 v{WA + db}, v[{pk + 2 * db}:{pk + 2 * db + 1}] offset:{qb * 16384}"
        if m: emit(m[0])
        if m or n == 31:
            if not m:
                for k in range(32 - LAG, 31): emit(f"ds_write_b64 v{WA + k % 8}, v[{pk + 2 * (k % 8)}:{pk + 2 * (k % 8) + 1}] offset:{qb * 16384}")
            emit(W)
        if m: emit(m[1])
        if cfg.fallback and cfg.early:
            if n == 22: A("ds_write_b32 v3, v1"); flagw = st.ins[-1]
            if n == 25:
                k = len(st.lgkm) - 1 - st.lgkm.index(flagw) if flagw in st.lgkm else None
                if k is not None: A(f"s_waitcnt lgkmcnt({min(k, 14)})")
                A("s_barrier")
                A("ds_read_b128 v[4:7], v2")
        for _ in range(4):
            if vr: A(vr.pop(0))
        if db == 7:
            for k in range(4): emit(f"ds_read_b128 v[{tb + 4 * k}:{tb + 4 * k + 3}], v{RA[k]} offset:{qb * 16384 + k * 1024}")
            stores = [f"buffer_store_dwordx4 v[{tb + 4 * k}:{tb + 4 * k + 3}], v{OS}, s[{SO}:{SO+3}], s{SQB + qb} offen offset:{k * 1024}{cfg.opol}" for k in range(4)]
        elif stores and db >= cfg.st0 and m: emit(stores.pop(0))
    for x in stores: emit(x)

def tail3(st, cfg, T):
    A = st.add
    t0, t1 = NT - 2, NT - 1
    assert cfg.smf and not cfg.ap and len(cfg.ones) == 4 and cfg.early
    stamp(st, cfg, "loopend")
    def V1(db, sl): return Q0 + (db * 2 + sl) * 4
    def vr0(db): return [vr_text(t0, db, sl, u) for sl in range(2) for u in range(2)]
    def vr1(db): return [f"ds_read_b64_tr_b16 {R('v', V1(db, sl) + 2 * u, 2)}, v{VA + db} offset:{(t1 % 2) * 16384 + (8 * sl + 4 * u) * 256}"
                         for sl in range(2) for u in range(2)]
    def emit(x):
        i = parse(x)
        n = st.lgkm_needed(i.rd | i.wr)
        if n is not None: A(f"s_waitcnt lgkmcnt({n})")
        if i.kind == "vst" and cfg.nostore: return
        if cfg.now and x.startswith("ds_write_b64"): return
        A(x)
    def sm1(qb):
        E, C = [], []
        for kb in range(4):
            for r in range(4): E.append(sm_text("EXP", t1, kb, qb, r))
            for r in range(2): C.append(sm_text("CVT", t1, kb, qb, r))
        return E, C
    wrE = [(0, sm_text(v[0], t0, v[2], v[3], v[4])) for v in T.wrapped if v[0] == "EXP"]
    wrC = [sm_text(v[0], t0, v[2], v[3], v[4]) for v in T.wrapped if v[0] == "CVT"]
    E0, C0 = sm1(0)
    EL = wrE + [(16 * (k // 4) + 8, x) for k, x in enumerate(E0)]
    done = set()
    CL = wrC + C0
    def cready(x):
        i = parse(x)
        return not any(parse(e).wr & i.rd for _, e in EL)
    KD = {16 * (kb - 1) + 1 + 2 * s: kr_text(t1, kb, s) for kb in range(1, 4) for s in range(4)}
    D0 = [x for db in range(8) for x in vr0(db)]
    D1 = [x for db in range(8) for x in vr1(db)]
    lastE = None
    for g in range(64):
        A(mfma_text(cfg, T.M[g], t0))
        if g in (15, 31, 47):
            rs = set()
            for x in range(g + 1, g + 17): rs |= parse(mfma_text(cfg, T.M[x], t0)).rd
            n = st.lgkm_needed(rs)
            if n is not None: A(f"s_waitcnt lgkmcnt({n})")
        if g == 49: A("s_waitcnt vmcnt(0)")
        if g == 50: A("s_barrier")
        if g in KD: A(KD[g])
        elif EL and EL[0][0] <= g and g != 50:
            A(EL.pop(0)[1]); continue
        elif g >= 52: A(D1.pop(0))
        elif g != 50: A(D0.pop(0))
        if CL and cready(CL[0]) and g != 50: A(CL.pop(0))
    assert not EL
    for x in CL: A(x)
    stamp(st, cfg, "f1")
    def need(db):
        L = []
        for D in (D0, D1):
            while D and f"v{VA + db} " in D[0]: L.append(D.pop(0))
        return L
    def pv(n):
        qb, db = n // 8, n % 8
        d = R("a", Ob(db, qb), 4)
        a = [mfma_text(cfg, ("PV", db, qb, sl), t0) for sl in range(2)]
        b = [f"{MF} {d}, {R('v', V1(db, sl), 4)}, {R('v', Pf(t1 % 2, qb, sl), 4)}, {d}" for sl in range(2)]
        L = a + b
        return L if db % 2 == 0 else L[::-1]
    def ones(qb): return [mfma_text(cfg, ("ONE", qb, 0), t) for t in (t0, t1)]
    def lpre(qb):
        x = rl(cfg, qb, 0)
        return [f"v_accvgpr_read_b32 v{x}, a{L0 + 4 * qb}", f"v_accvgpr_read_b32 v{x + 1}, a{L0 + 4 * qb + 1}",
                f"v_add_f32 v{x}, v{x}, v{x + 1}", f"v_rcp_f32 v{x}, v{x}"] + \
               ([f"v_mul_f32 v{x + 1}, s{SNC}, v{x}"] if cfg.ooff else [])
    XT = lambda n: 4 + 4 * (n % 2)
    PT = lambda n: 12 + 2 * (n % 2)
    def W(n): return f"ds_write_b64 v{WA + n % 8}, v[{PT(n)}:{PT(n) + 1}] offset:{(n // 8) * 16384}"
    def body(n, plain):
        qb, db = n // 8, n % 8
        x = XT(n); r = rl(cfg, qb, 0)
        return ([f"v_accvgpr_read_b32 v{x + i}, a{Ob(db, qb) + i}" for i in range(4)],
                (([f"v_fma_f32 v{x + i}, v{x + i}, v{r}, v{r + 1}" for i in range(4)] if plain else
                  [f"v_pk_fma_f32 v[{x + i}:{x + i + 1}], v[{x + i}:{x + i + 1}], v[{r}:{r + 1}], v[{r}:{r + 1}] op_sel:[0,0,1] op_sel_hi:[1,0,1]" for i in (0, 2)]) if cfg.ooff else
                 ([f"v_mul_f32 v{x + i}, v{x + i}, v{r}" for i in range(4)] if plain else
                  [f"v_pk_mul_f32 v[{x + i}:{x + i + 1}], v[{x + i}:{x + i + 1}], v[{r}:{r + 1}] op_sel_hi:[1,0]" for i in (0, 2)])) +
                [f"v_cvt_pk_bf16_f32 v{PT(n) + i}, v{x + 2 * i}, v{x + 2 * i + 1}" for i in range(2)])
    def Rd(qb): return [f"ds_read_b128 v[{Sb(k, qb)}:{Sb(k, qb) + 3}], v{RA[k]} offset:{qb * 16384 + k * 1024}" for k in range(4)]
    def St(qb): return [f"buffer_store_dwordx4 v[{Sb(k, qb)}:{Sb(k, qb) + 3}], v{OS}, s[{SO}:{SO+3}], s{SQB + qb} offen offset:{k * 1024}{cfg.opol}" for k in range(4)]
    o = ones(0)
    pre = need(0) + need(1) + need(2)
    emit(o[0])
    for x in pre[:2]: A(x)
    emit(o[1])
    for x in pre[2:]: A(x)
    stores = []; E, C = [], []
    for q in (1, 2, 3):
        e, c = sm1(q); E += e; C += c
    onesq = 1; lq = []
    WL = 2 + cfg.deep
    pend_cvt = []
    for n in range(31 + WL):
        qb, db = n // 8, n % 8
        m = pv(n) if n < 32 else [None] * 4
        if n < 32: assert qb < onesq, "softmax of this q block not finished"
        nd = need(db + 3) if qb == 0 and db + 3 < 8 else []
        def M(k):
            if m[k]: emit(m[k])
        def X(cnt):
            for _ in range(cnt):
                if E: A(E.pop(0))
        plain = (not E) and n < 32 and n > 0
        rd, rest = body(n - 1, plain) if 0 < n <= 32 else ([], [])
        if cfg.ooff and cfg.fallback and 0 < n <= 32 and (n - 1) % 8 < 2:
            x = XT(n - 1); q_ = (n - 1) // 8; r_ = rl(cfg, q_, 0)
            if (n - 1) % 8 == 0:
                rest += [f"v_max3_f32 v{r_ + 2}, |v{x}|, |v{x + 1}|, |v{x + 2}|", f"v_max_f32_e64 v{r_ + 2}, v{r_ + 2}, |v{x + 3}|"]
            else:
                rest += [f"v_max3_f32 v{r_ + 2}, v{r_ + 2}, |v{x}|, |v{x + 1}|", f"v_max3_f32 v{r_ + 2}, v{r_ + 2}, |v{x + 2}|, |v{x + 3}|",
                         f"v_fma_f32 v{r_ + 2}, v{r_ + 2}, s{S256}, v{r_ + 1}"]
        if cfg.deep:
            mul, cv = rest[:-2], rest[-2:]
            rest = pend_cvt + mul; pend_cvt = cv
        M(0)
        if n >= WL: emit(W(n - WL))
        if n >= WL and (n - WL) % 8 == 7:
            for x in Rd(qb - 1): emit(x)
            stores = St(qb - 1)
        elif stores and db >= cfg.st3 + cfg.deep: emit(stores.pop(0))
        M(1)
        for x in nd[:4]: A(x)
        if plain:
            emit(rd.pop(0)); emit(rd.pop(0))
        X(1)
        M(2)
        for x in nd[4:]: A(x)
        if plain:
            emit(rd.pop(0)); emit(rd.pop(0))
        X(1)
        M(3)
        if cfg.fallback and n == 27: A("ds_write_b32 v3, v1"); flagw = st.ins[-1]
        if cfg.fallback and n == 29:
            if flagw in st.lgkm: A(f"s_waitcnt lgkmcnt({min(14, len(st.lgkm) - 1 - st.lgkm.index(flagw))})")
            A("s_barrier")
            A(f"ds_read_b128 v[{KA}:{KA + 3}], v2")
        if n == 0:
            X(cfg.ne)
            lq = lpre(0)
        for x in rd: emit(x)
        while C and not any(parse(e).wr & parse(C[0]).rd for e in E): A(C.pop(0))
        for x in lq: emit(x)
        lq = []
        if cfg.fallback and n == 26:
            rr = [rl(cfg, q, 0) for q in range(4)]
            A(f"s_mov_b32 s36, {f32bits(2.0 ** (-40 - cfg.boff)):#x}")
            A(f"v_min_f32 v3, v{rr[0]}, v{rr[1]}")
            A(f"s_lshl_b32 s38, s{SW}, 2")
            A(f"v_min3_f32 v3, v3, v{rr[2]}, v{rr[3]}")
            A(f"s_add_u32 s38, s38, {FLAGS}")
            A("v_cmp_nle_f32 vcc, s36, v3")
            A(f"v_mov_b32 v2, {FLAGS}")
            A("v_mov_b32 v3, s38")
        if onesq < 4 and len(C) <= 8 * (3 - onesq):
            o = ones(onesq)
            pkk = [x for x in rest if x.startswith("v_pk_")]; oth = [x for x in rest if not x.startswith("v_pk_")]
            for x in pkk + oth[:-2]: emit(x)
            emit(o[0]); emit(oth[-2]); emit(o[1]); emit(oth[-1])
            lq = lpre(onesq); onesq += 1
        else:
            for x in rest: emit(x)
        if cfg.fallback and n == 26:
            if cfg.ooff:
                rr = [rl(cfg, q, 0) + 2 for q in range(4)]
                A(f"v_min_f32 v1, v{rr[0]}, v{rr[1]}")
                A(f"v_min3_f32 v1, v1, v{rr[2]}, v{rr[3]}")
                A("v_cmp_nle_f32 s[52:53], 0, v1")
                A("s_or_b64 vcc, vcc, s[52:53]")
            else: A("s_cmp_lg_u64 vcc, 0")
            A("s_cselect_b32 s37, 1, 0")
            A("v_mov_b32 v1, s37")
        if cfg.fallback and n == 31:
            emit(f"v_or_b32 v{KA}, v{KA}, v{KA + 1}")
            emit(f"v_or3_b32 v{KA}, v{KA}, v{KA + 2}, v{KA + 3}")
        if cfg.fallback and n == 32: A(f"v_readfirstlane_b32 s37, v{KA}")
        if n in (8, 16, 24): stamp(st, cfg, f"b{n}")
    assert not stores and not D0 and not D1 and not pend_cvt
    emit(W(31))
    for x in Rd(3): emit(x)
    for x in St(3): emit(x)

def finish(st, cfg, T):
    A = st.add
    stamp(st, cfg, "stored")
    if cfg.twice:
        A("s_sub_u32 s35, s35, 1")
        A("s_cmp_lg_u32 s35, 0")
        A("s_cbranch_scc1 L_twice")
    if cfg.fallback and cfg.early:
        A(f"s_cmp_gt_u32 s37, s{SMODE}")
        A("s_cbranch_scc1 L_fallback")
    elif cfg.fallback:
        A(f"s_cmp_lg_u32 s{SMODE}, 0")
        A("s_cbranch_scc1 L_done")
        A(f"s_mov_b32 s36, {f32bits(2.0 ** (-40 - cfg.boff)):#x}")
        rr = sorted(set(rl(cfg, qb, i) for qb in range(4) for i in range(4)))
        A(f"v_min_f32 v3, v{rr[0]}, v{rr[1]}")
        for i in range(2, len(rr), 2): A(f"v_min3_f32 v3, v3, v{rr[i]}, v{rr[i + 1]}")
        A("v_cmp_nle_f32 vcc, s36, v3")
        A("s_cmp_lg_u64 vcc, 0")
        A("s_cselect_b32 s37, 1, 0")
        A("v_mov_b32 v1, s37")
        A(f"s_lshl_b32 s38, s{SW}, 2")
        A(f"s_add_u32 s38, s38, {FLAGS}")
        A("v_mov_b32 v3, s38")
        A("ds_write_b32 v3, v1")
        A("s_waitcnt lgkmcnt(0)")
        A("s_barrier")
        A(f"v_mov_b32 v3, {FLAGS}")
        A("ds_read_b128 v[4:7], v3")
        A("s_waitcnt lgkmcnt(0)")
        A("v_or_b32 v4, v4, v5")
        A("v_or3_b32 v4, v4, v6, v7")
        A("v_readfirstlane_b32 s37, v4")
        A("s_cmp_lg_u32 s37, 0")
        A("s_cbranch_scc1 L_fallback")
        A("L_done:")
    if cfg.stamps:
        A("s_waitcnt vmcnt(0)")
        stamp(st, cfg, "drained")
        if cfg.spin:
            n1_, n2_, K_ = cfg.spin.split(",")
            nm = st.stampnames
            A(f"s_sub_u32 s36, s{65 + 2 * nm.index(n2_)}, s{65 + 2 * nm.index(n1_)}")
            A(f"s_mul_i32 s36, s36, {K_}")
            A("s_min_u32 s36, s36, 50000")
            A("L_spin:")
            A("s_memrealtime s[62:63]")
            A("s_waitcnt lgkmcnt(0)")
            A(f"s_sub_u32 s37, s62, s{65 + 2 * nm.index('drained')}")
            A("s_cmp_lt_u32 s37, s36")
            A("s_cbranch_scc1 L_spin")
            A("s_endpgm")
        if cfg.dbg:
            nm = st.stampnames
            def sr(n, w): return 64 + 2 * nm.index(n) + w
            A("s_mov_b32 s8, s56"); A("s_mov_b32 s9, s57"); A("s_mov_b32 s10, 0x100"); A("s_mov_b32 s11, 0x20000")
            A(f"s_not_b32 s36, s{sr('start', 1)}")
            A(f"s_mov_b32 s37, s{sr('drained', 1)}")
            A(f"s_sub_u32 s38, s{sr('loopend', 0)}, s{sr('mainstart', 0)}")
            A(f"s_sub_u32 s39, s{sr('loopend', 1)}, s{sr('mainstart', 1)}")
            A(f"s_not_b32 s40, s39")
            A(f"s_mov_b32 s41, s{sr('mainstart', 1)}")
            A(f"s_mov_b32 s42, s{sr('loopend', 1)}")
            A("s_mov_b64 exec, 1")
            A("v_mov_b32 v1, 0")
            for k in range(7):
                A(f"v_mov_b32 v4, s{36 + k}")
                st.ins.append(I(f"buffer_atomic_umax v4, v1, s[8:11], 0 offen offset:{4 * k}", "ctl"))
                A("s_waitcnt vmcnt(0)")
            A("s_endpgm")
        A("s_mov_b32 s8, s56"); A("s_mov_b32 s9, s57"); A("s_mov_b32 s10, 0x100000"); A("s_mov_b32 s11, 0x20000")
        A("s_lshl_b32 s3, s2, 2"); A(f"s_add_u32 s3, s3, s{SW}"); A("s_lshl_b32 s3, s3, 7")
        A("v_mov_b32 v1, s3")
        for k in range((len(st.stampnames) + 1) // 2):
            for i in range(4): A(f"v_mov_b32 v{4 + i}, s{64 + 4 * k + i}")
            A(f"buffer_store_dwordx4 v[4:7], v1, s[8:11], 0 offen offset:{16 * k}")
            A("s_nop 1")
    if cfg.itstamp:
        A("s_lshl_b32 s3, s3, 1")
        A("s_add_u32 s3, s3, 0x40000")
        A("v_and_b32 v1, 63, v0")
        A("v_lshl_add_u32 v1, v1, 2, s3")
        A("buffer_store_dword v188, v1, s[8:11], 0 offen")
    A("L_end:")
    A("s_endpgm")
    A("L_codeend:")

def fallback(cfg, T):
    st = Stream(); A = st.add
    A("L_fallback:")
    A("s_waitcnt vmcnt(0) lgkmcnt(0)")
    A(f"s_mov_b32 s{SMODE}, 1")
    A("v_and_b32 v2, 63, v0")
    A("v_and_b32 v3, 15, v2")
    A("v_lshrrev_b32 v4, 4, v2")
    A("v_lshrrev_b32 v5, 2, v3")
    A("v_lshlrev_b32 v5, 12, v5")
    A("v_and_b32 v6, 3, v3")
    A("v_lshl_add_u32 v5, v6, 8, v5")
    for s in range(4):
        A(f"v_add_u32 v6, {4 * s}, v4")
        A("v_xor_b32 v6, v6, v3")
        A(f"v_lshl_add_u32 v{KA + s}, v6, 4, v5")
    A("v_lshrrev_b32 v5, 2, v3")
    A("v_and_b32 v6, 1, v4")
    A("v_lshl_add_u32 v6, v6, 2, v5")
    A("v_lshl_add_u32 v5, v4, 4, v5")
    A("v_lshlrev_b32 v5, 8, v5")
    A("v_and_b32 v7, 3, v3")
    A("v_lshl_add_u32 v5, v7, 3, v5")
    A(f"v_add_u32 v5, {VBASE}, v5")
    for db in range(8):
        A(f"v_xor_b32 v7, {db}, v6")
        A(f"v_lshl_add_u32 v{VA + db}, v7, 5, v5")
    if cfg.pkt == 3:
        A("v_lshlrev_b32 v5, 8, v3")
        A("v_lshl_add_u32 v5, v4, 4, v5")
        for qb in range(4):
            for s in range(4):
                A(f"buffer_load_dwordx4 {R('v', Qf(qb, s), 4)}, v5, s[{SQ}:{SQ+3}], s{SQB + qb} offen offset:{64 * s}")
        A("s_waitcnt vmcnt(0)")
        for x in range(Q0, Q0 + 64):
            A(f"v_lshlrev_b32 v6, 16, v{x}")
            A(f"v_and_b32 v7, s{SC - 1}, v{x}")
            A(f"v_pk_mul_f32 v[6:7], v[6:7], s[{SC}:{SC + 1}]")
            A(f"v_cvt_pk_bf16_f32 v{x}, v6, v7")
    for qb in range(4): A(f"v_mov_b32 v{8 + qb}, 0xff800000")
    A(f"s_mov_b32 s{SOFFK}, s{SW4K}")
    A(f"s_mov_b32 s{SCNT}, {NT}")
    A("L_fb1:")
    A("s_barrier")
    A(f"s_mov_b32 m0, s{SW4K}")
    for j in range(4): A(dmak_text(cfg, j))
    A(f"s_addk_i32 s{SOFFK}, 0x4000")
    A("s_waitcnt vmcnt(0)")
    A("s_barrier")
    for kb in range(4):
        for s in range(4):
            A(f"ds_read_b128 {R('a', K0f(kb, s), 4)}, v{KA + s} offset:{kb * 1024}")
    A("s_waitcnt lgkmcnt(0)")
    for qb in range(4):
        for kb in range(4):
            for s in range(4):
                d = R("v", Sb(kb, qb), 4)
                A(f"{MF} {d}, {R('a', K0f(kb, s), 4)}, {R('v', Qf(qb, s), 4)}, {'0' if s == 0 else d}")
    A("s_nop 7")
    for qb in range(4):
        x = [Sb(kb, qb) + r for kb in range(4) for r in range(4)]
        for i in range(0, 16, 2): A(f"v_max3_f32 v{8 + qb}, v{8 + qb}, v{x[i]}, v{x[i + 1]}")
    A(f"s_sub_u32 s{SCNT}, s{SCNT}, 1")
    A(f"s_cmp_lg_u32 s{SCNT}, 0")
    A("s_cbranch_scc1 L_fb1")
    for qb in range(4):
        xlane(st, "v_max_f32", 8 + qb, 5)
        for i in range(4): A(f"v_sub_f32 v{NEGM + 4 * qb + i}, 0, v{8 + qb}")
    init_acc(st, cfg, True)
    A(f"s_mov_b32 s{SOFFK}, s{SW4K}")
    A(f"s_mov_b32 s{SOFFV}, s{SW4K}")
    A(f"s_mov_b32 s{SCNT}, {cfg.trips}")
    A("s_barrier")
    for w, t in (("K", 0), ("K", 1), ("V", 0), ("K", 2), ("V", 1), ("K", 3))[:cfg.kdepth + 2]: dma_tile(st, cfg, w, t)
    A("s_waitcnt vmcnt(0)")
    A("s_barrier")
    for kb in range(4):
        for s in range(4):
            A(f"ds_read_b128 {R('a', K0f(kb, s), 4)}, v{KA + s} offset:{kb * 1024}")
    A("s_waitcnt lgkmcnt(0)")
    for qb in range(4):
        for kb in range(4):
            for s in range(4):
                d = R("v", Sb(kb, qb), 4)
                c = R("v", NEGM + 4 * qb, 4) if s == 0 else d
                A(f"{MF} {d}, {R('a', K0f(kb, s), 4)}, {R('v', Qf(qb, s), 4)}, {c}")
    A("s_nop 7")
    for qb in range(4): softmax0(st, cfg, T, qb)
    A("s_barrier")
    for s in range(4): A(kr_text(1, 0, s))
    A("s_waitcnt lgkmcnt(0)")
    A("s_nop 7")
    A("s_branch L_entry")
    return st

def flat(cfg, T, forced):
    st = Stream(); rec = {}; marks = {}
    prologue(st, cfg, T)
    NL = cfg.NL
    for t in range(cfg.head, NL):
        marks[t] = len(st.ins)
        emit_iter(st, cfg, T, t, forced, rec)
    marks[NL] = len(st.ins)
    {3: tail3, 2: tail2}.get(cfg.pkt, tail)(st, cfg, T)
    finish(st, cfg, T)
    return st, rec, marks

def generate(cfg):
    cfg.NL = NT - 2 if cfg.pkt == 3 else NT - 1
    cfg.bpar = 1 if cfg.pkt == 3 else 0
    cfg.trips = 15 if cfg.pkt == 3 else 16
    vers = []
    gbase = list(cfg.gpos)
    for v in range(cfg.wv):
        cfg.gpos = [g + cfg.wstep * v for g in gbase]
        T = build_template(cfg)
        st, rec, marks = flat(cfg, T, {})
        forced = {}; cls = {}
        for (t, g), n in rec.items(): cls.setdefault((t % 2, g), []).append(n)
        for (t, g), n in rec.items():
            x = [y for y in cls[(t % 2, g)] if y is not None]
            forced[(t, g)] = min(x) if x else None
        st, rec, marks = flat(cfg, T, forced)
        its = {t: st.text(marks[t], marks[t + 1]) for t in range(cfg.head, cfg.NL)}
        for t in range(2 + cfg.head, cfg.NL): assert its[t] == its[t - 2], f"loop not periodic at {t}"
        its[0] = its[2]
        nl = [x for x in st.nops_inserted if marks[1] <= x[0] < marks[3]]
        sys.stderr.write(f"G={T.G} loop body instrs={marks[3]-marks[1]} nops in loop: {nl}; total auto nops {len(st.nops_inserted)}\n")
        vers.append((its, st.text(0, marks[cfg.head]), st.text(marks[cfg.NL]), sorted(T.wrapped)))
    cfg.gpos = gbase
    for x in vers[1:]: assert x[1:] == vers[0][1:], "versions differ outside the loop"
    out = []
    out.append(open("standalone__gqa_softmax__prompt.s.ref").read().split("; Override")[0].rstrip())
    if cfg.stamps: out.append("; STAMPS " + " ".join(st.stampnames))
    out.append(f"; @launch grid=(256,1,1) block=(256,1,1) lds={cfg.lds}")
    out.append('.amdgcn_target "amdgcn-amd-amdhsa--gfx950"\n.text')
    out.append(f".globl {KNAME}\n.p2align 8\n.type {KNAME},@function\n{KNAME}:")
    out.append(st.text(0, marks[cfg.head]))
    if cfg.wv == 1:
        out.append(".p2align 6")
        out.append("L_loop:")
        if cfg.bpar == 0: out.append(its[1])
        out.append("L_entry:")
        out.append(its[0])
        if cfg.bpar == 1: out.append("L_odd:\n" + its[1])
    else:
        assert cfg.bpar == 1 and not cfg.head and out[-1].rstrip().endswith("s_branch L_entry")
        out[-1] = out[-1].rstrip()[:-len("s_branch L_entry")].rstrip()
        out.append("L_entry:")
        for v in range(cfg.wv - 1):
            out.append(f"  s_cmp_eq_u32 s{SVER}, {v}\n  s_cbranch_scc1 L_loop{v}")
        out.append(f"  s_branch L_loop{cfg.wv - 1}")
        for v in range(cfg.wv):
            out.append(f".p2align 6\nL_loop{v}:")
            out.append((vers[v][0][0] + "\n" + vers[v][0][1]).replace("L_loop", f"L_loop{v}"))
            if v < cfg.wv - 1: out.append("  s_branch L_tail")
        out.append("L_tail:")
    out.append(st.text(marks[cfg.NL]))
    if cfg.fallback: out.append(fallback(cfg, T).text())
    out.append(f'''.section .rodata,"a"
.p2align 6
.amdhsa_kernel {KNAME}
  .amdhsa_next_free_vgpr 512
  .amdhsa_next_free_sgpr 102
  .amdhsa_accum_offset 256
  .amdhsa_group_segment_fixed_size 0
  .amdhsa_kernarg_size 48
  .amdhsa_user_sgpr_count 2
  .amdhsa_user_sgpr_kernarg_segment_ptr 1
  .amdhsa_system_sgpr_workgroup_id_x 1
.end_amdhsa_kernel''')
    return "\n".join(out) + "\n", T

if __name__ == "__main__":
    ap = argparse.ArgumentParser()
    ap.add_argument("-o", default="/dev/stdout")
    ap.add_argument("--ones", default="0,1,2,3")
    for n, d in (("ap", 0), ("bous", 1), ("lag", 8), ("stamps", 0), ("vstart", 9), ("vend", 200), ("show", 0), ("nobar", 0),
                 ("nodma", 0), ("pf", 0), ("qfirst", 2), ("hid", 8), ("wv", 1), ("wstep", 2), ("wsel", 0), ("oiw", 2), ("sperm", 0), ("ooff", 0), ("perm", 0), ("lite", 0), ("b0first", 0), ("tries", 60), ("head", 0), ("hpk", 1), ("h0", 100), ("mbias", 0), ("otouch", 0), ("wfix", 0), ("now", 0), ("deep", 0), ("ne", 2), ("st3", 3), ("early", 0), ("tlag", 2), ("st0", 1), ("pat", 0), ("pkt", 0), ("pvb", 1), ("twice", 0), ("kdepth", 4), ("wgrp", 4), ("mxstart", 7), ("e2first", 17), ("smf", 0), ("zrow", 0), ("tailgap", 12), ("gexcl", 0), ("grp", 1), ("nostore", 0), ("dbg", 0), ("itstamp", 0), ("probe", 0), ("qmap", 0), ("stdelay", 20), ("ststep", 8), ("fallback", 1)):
        ap.add_argument("--" + n, type=int, default=d)
    ap.add_argument("--gpos", default="11,27,43,57,71,85,99,109")
    ap.add_argument("--only", default="")
    ap.add_argument("--boff", type=float, default=0)
    ap.add_argument("--apl", type=int, default=0)
    ap.add_argument("--hord", default="KV23")
    ap.add_argument("--rel", default="300,700,1300,2600,3200,4200,0,600,2200,3400")
    ap.add_argument("--hlate", default="23")
    ap.add_argument("--ha", default="")
    ap.add_argument("--hb", default="")
    ap.add_argument("--skip", default="")
    ap.add_argument("--spin", default="")
    ap.add_argument("--flip", default="")
    ap.add_argument("--extra", default="")
    ap.add_argument("--empty", default="")
    ap.add_argument("--sched", default="0,1,1,3,0")
    ap.add_argument("--pol", default="")
    ap.add_argument("--qpol", default="")
    ap.add_argument("--opol", default="")
    a = ap.parse_args()
    cfg = Cfg()
    cfg.__dict__.update(vars(a))
    cfg.ones = [int(x) for x in a.ones.split(",") if x != ""]
    cfg.gpos = [int(x) for x in a.gpos.split(",")]
    cfg.extra = [int(x) for x in a.extra.split(",") if x != ""]
    cfg.rel = [int(x) for x in a.rel.split(",")]
    cfg.flip = [int(x) for x in a.flip.split(",") if x != ""]
    cfg.empty = [int(x) for x in a.empty.split(",") if x != ""]
    cfg.sched = [int(x) for x in a.sched.split(",")]
    for n in ("pol", "qpol", "opol"):
        v = getattr(cfg, n).replace("+", " ")
        setattr(cfg, n, " " + v if v else "")
    PERM[0] = cfg.perm
    cfg.lds = 131072 + 64
    for cfg.enop in (-1, 0, 1, 2, 3, 5, 7):
        try:
            txt, T = generate(cfg); break
        except AssertionError as e:
            if "periodic" not in str(e): raise
    open(a.o, "w").write(txt)
    if a.show:
        for g in range(T.G):
            sys.stderr.write(f"{g:3d} {T.typ[g]} {T.M[g]} | {T.sca[g]} | {T.mem[g]} | {T.val[g]}\n")
```

```python
import sys, argparse, math, struct, re
from asmlib import *
from lsched import schedule

KNAME = "standalone__gqa_softmax__prompt_kernel"
NT = 32
MF = "v_mfma_f32_16x16x32_bf16"

S0, P0, NEGM, LS, KA, VA, DK, DV, OW, OR_, OS, Q0 = 16, 80, 144, 160, 168, 172, 180, 181, 182, 183, 184, 192
O0, VF, KF, L0, ONES = 0, 128, 192, 224, 240
def Sb(kb, qb): return S0 + (kb * 4 + qb) * 4
def Pf(buf, qb, sl): return P0 + buf * 32 + (qb * 2 + sl) * 4
def Qf(qb, s): return Q0 + (qb * 4 + s) * 4
def Ob(db, qb): return O0 + (db * 4 + qb) * 4
def Vf(db, sl): return VF + (db * 2 + sl) * 4
def Kf(buf, s): return KF + (buf * 4 + s) * 4
def K0f(kb, s): return VF + (kb * 4 + s) * 4
SQ, SK, SV, SO = 12, 16, 20, 24
SW, SOFFK, SOFFV, SCNT, SMODE, SX8000, SW4K = 28, 29, 30, 31, 32, 33, 34
SQB = 44
SC = 40
VBASE = 65536
FLAGS = 131072
QSTAGE = [3 * 16384, VBASE + 16384, VBASE + 2 * 16384, VBASE + 3 * 16384]
QBIAS = 4096

SIDX = 189
PERM = [0]
SNC = 43
SVER = 48
S256 = 35
DOC = """;
;"""
def f32bits(x): return struct.unpack("<I", struct.pack("<f", x))[0]
class Cfg: pass

def build_template(cfg):
    ones = cfg.ones
    n1 = (1 if cfg.smf else 2) * len(ones)
    G = 128 + n1
    pv0 = 64 + n1
    M = []
    for kb in range(4):
        for qb in range(4):
            order = range(4) if (qb % 2 == 0 or not cfg.bous) else (range(3, -1, -1) if cfg.bous == 1 else (2, 3, 0, 1))
            for n, s in enumerate(order):
                M.append(("QK", kb, qb, s, n == 0))
    for qb in ones:
        for sl in range(1 if cfg.smf else 2):
            M.append(("ONE", qb, sl))
    for db in range(8):
        for qb in range(4):
            order = (0, 1) if (qb % 2 == 0 or not cfg.pvb) else (1, 0)
            for sl in order:
                M.append(("PV", db, qb, sl))
    assert len(M) == G
    if cfg.pat:
        F = set(range(64, pv0)) | {G - 18, G - 1} | set(cfg.empty)
        typ = []; nxt = "E"
        for g in range(G):
            if g in F: typ.append("D"); nxt = "E"
            else:
                typ.append(nxt); nxt = "D" if nxt == "E" else "E"
        ne = typ.count("E")
        cand = [g for g in cfg.flip]
        while ne < 64:
            g = cand.pop(0); assert typ[g] == "D" and g not in F; typ[g] = "E"; ne += 1
        while ne > 64:
            g = cand.pop(0); assert typ[g] == "E"; typ[g] = "D"; ne -= 1
    else:
        extra = cfg.extra if cfg.extra else list(range(112, 112 + n1))
        assert len(extra) == n1
        typ = []; nxt = "E"
        for g in range(G):
            if g in extra: typ.append("D")
            else:
                typ.append(nxt); nxt = "D" if nxt == "E" else "E"
    Eg = [g for g in range(G) if typ[g] == "E"]
    assert len(Eg) == 64 and typ[G - 1] == "D"
    mem = [None] * G
    for kb in range(4):
        base = 16 * (kb - 1)
        toff = 1
        if base < 0: base += G; toff = 2
        ds = [g for g in range(base + 1, base + 16) if typ[g] == "D" and g not in cfg.gpos and g not in cfg.empty][:4]
        assert ds[-1] <= base + 10
        for s in range(4):
            mem[ds[s]] = ("KR", toff, kb, s)
    gpos = cfg.gpos
    for n, g in enumerate(gpos):
        assert typ[g] == "D" and mem[g] is None, g
        mem[g] = ("DMAV", 2, n) if n < 4 else ("DMAK", cfg.kdepth, n - 4)
    gbar = G - 18
    free = [g for g in range(cfg.vstart, min(cfg.vend, G - 19)) if typ[g] == "D" and mem[g] is None and g not in cfg.empty]
    vreads = [(db, sl, u) for db in range(8) for sl in range(2) for u in range(2)]
    assert len(free) >= 32, len(free)
    vpos = {}
    for n, v in enumerate(vreads):
        g = free[(n * len(free)) // 32]
        assert g <= pv0 + 8 * v[0] - 6, (g, v)
        mem[g] = ("VR", 0) + v
        vpos.setdefault(v[0], []).append(g)
    cap = [0] * G
    for g in range(G):
        if typ[g] == "D": cap[g] = 1 if mem[g] else 2
    cap[G - 1] = 0
    if cfg.pat:
        for g in range(64, pv0): cap[g] -= 1
    for g in cfg.empty: cap[g] = 0
    if cfg.gexcl:
        for g in gpos: cap[g] = 0
    need = 32 + 16 * (4 - len(ones)) + 8
    if typ[gbar] == "D" and sum(cap) - cap[gbar] >= need: cap[gbar] = 0
    short = need - sum(cap)
    if short > 0:
        cand = [g for g in range(G) if typ[g] == "E"]
        for n in range(short):
            cap[cand[(n * len(cand)) // short]] += 1
    val = [[] for _ in range(G)]
    e0 = next(k for k, g in enumerate(Eg) if g >= cfg.lag)
    plain = []
    for k in range(64):
        idx = e0 + k
        g = Eg[idx % 64]; X = g + G * (idx // 64)
        b, r = k // 4, k % 4
        kb, qb = b // 4, b % 4
        val[g].append(("EXP", 1 - idx // 64, kb, qb, r))
        if qb not in ones: plain.append((X + 1, ("ADD", kb, qb, r)))
        if r % 2 == 1: plain.append((X + 1, ("CVT", kb, qb, r // 2)))
    used = [0] * G
    last = 0
    for ready, op in plain:
        X = max(ready, last)
        while used[X % G] >= cap[X % G]: X += 1
        used[X % G] += 1
        last = X
        kb, qb = op[1], op[2]
        assert X < G + 4 * (kb * 4 + qb), ("S overwritten", op, X)
        assert X < G + 60, ("P late", op, X)
        val[X % G].append((op[0], 1 - X // G) + op[1:])
    xk = 0
    for db in range(8):
        X = max(vpos[db]) + 1
        if xk < 4: X = max(X, 40)
        while used[X] >= cap[X]: X += 1
        assert X < G
        used[X] += 1
        s = None
        if xk < 4 and 40 <= X < G - 16: s = xk; xk += 1
        val[X].append(("XOR", 0, db, s))
    assert xk == 4
    sca = [None] * G
    for kb in range(1, 4): sca[16 * kb - 1] = ("WAITL", 16 * kb)
    sca[G - 2] = ("WAITL", G)
    for db in range(8): sca[pv0 + 8 * db - 1] = ("WAITL", pv0 + 8 * db)
    def put(g, item, step=-1):
        while sca[g % G] is not None: g += step
        sca[g % G] = item
        return g
    assert sca[gbar] is None and sca[gbar - 1] is None
    sca[gbar - 1] = ("WAITV",); sca[gbar] = ("BAR",)
    sca[G - 1] = ("BRANCH",)
    g1 = put(G - 3, ("CMP",))
    put(g1 - 1, ("CNT",))
    a = put(gpos[0] - 1, ("M0V",)); assert a >= 0
    a = put(gpos[4] - 1, ("M0K",)); assert a >= gpos[3]
    put(gpos[3] + 1, ("INCV",), +1)
    a = put(gpos[7] + 1, ("INCK",), +1); assert a < g1
    T = Cfg()
    T.G, T.pv0, T.M, T.mem, T.val, T.sca, T.typ = G, pv0, M, mem, val, sca, typ
    T.wrapped = [v for g in range(G) for v in val[g] if v[0] in ("EXP", "ADD", "CVT") and v[1] == 0]
    return T

def mfma_text(cfg, m, t):
    if m[0] == "QK":
        _, kb, qb, s, first = m
        d = R("v", Sb(kb, qb), 4)
        c = R("v", NEGM + 4 * qb, 4) if first else d
        return f"{MF} {d}, {R('a', Kf(kb % 2, s), 4)}, {R('v', Qf(qb, s), 4)}, {c}"
    if m[0] == "ONE":
        _, qb, sl = m
        d = R("a", L0 + 4 * qb, 4)
        if cfg.smf: return f"v_smfmac_f32_16x16x64_bf16 {d}, {R('a', ONES, 4)}, {R('v', Pf(t % 2, qb, 0), 8)}, v{SIDX}"
        a, b = R("a", ONES, 4), R("v", Pf(t % 2, qb, sl), 4)
        if cfg.ap: a, b = b, a
        return f"{MF} {d}, {a}, {b}, {d}"
    _, db, qb, sl = m
    d = R("a", Ob(db, qb), 4)
    a, b = R("a", Vf(db, sl), 4), R("v", Pf(t % 2, qb, sl), 4)
    if cfg.ap or cfg.apl: a, b = b, a
    return f"{MF} {d}, {a}, {b}, {d}"

def kr_text(tt, kb, s): return f"ds_read_b128 {R('a', Kf(kb % 2, s), 4)}, v{KA + s} offset:{(tt % 2) * 16384 + kb * 1024}"
def vr_text(tt, db, sl, u): return f"ds_read_b64_tr_b16 {R('a', Vf(db, sl) + 2 * u, 2)}, v{VA + db} offset:{(tt % 2) * 16384 + (8 * sl + 4 * u) * 256}"
def dmak_text(cfg, j): return f"buffer_load_dwordx4 v{DK}, s[{SK}:{SK+3}], s{SOFFK} offen offset:{1024 * j}{cfg.pol} lds"
def dmav_text(cfg, j): return f"buffer_load_dwordx4 v{DV}, s[{SV}:{SV+3}], s{SOFFV} offen offset:{1024 * j}{cfg.pol} lds"
def sm_text(k, tt, kb, qb, r):
    x = Sb(kb, qb)
    if k == "EXP": return f"v_exp_f32 v{x + r}, v{x + r}"
    if k == "ADD":
        a = LS + 2 * qb + (r % 2)
        return f"v_add_f32 v{a}, v{a}, v{x + r}"
    d = Pf(tt % 2, qb, kb // 2) + (kb % 2) * 2 + r
    if PERM[0]: return f"v_perm_b32 v{d}, v{x + 2 * r + 1}, v{x + 2 * r}, s42"
    return f"v_cvt_pk_bf16_f32 v{d}, v{x + 2 * r}, v{x + 2 * r + 1}"

def emit_iter(st, cfg, T, t, forced, record):
    G = T.G
    for g in range(G):
        st.add(mfma_text(cfg, T.M[g], t))
        sc = T.sca[g]
        if cfg.itstamp and g == G - 8: st.add("s_memtime s[60:61]" if cfg.itstamp == 1 else "s_memrealtime s[60:61]")
        if cfg.itstamp and g == G - 1:
            st.add("v_writelane_b32 v188, s60, m0")
        if cfg.itstamp and g == G - 6: st.add("s_mov_b32 m0, s35")
        if cfg.itstamp and g == 2: st.add("s_add_u32 s35, s35, 1")
        if sc:
            k = sc[0]
            if k == "WAITL":
                tt, gg = (t, sc[1]) if sc[1] < G else (t + 1, 0)
                rs = set()
                n = 16 if T.M[gg][0] == "QK" else 8
                for x in range(gg, gg + n): rs |= parse(mfma_text(cfg, T.M[x], tt)).rd
                n = st.lgkm_needed(rs)
                record[(t, g)] = n
                if (t, g) in forced: n = forced[(t, g)]
                if n is not None: st.add(f"s_waitcnt lgkmcnt({n})")
            elif k == "WAITV":
                p = t + 2
                n = st.vm_needed(lambda o: o.tag in (("K", p), ("V", p - 1)))
                record[(t, g)] = n
                if (t, g) in forced: n = forced[(t, g)]
                if n is not None: st.add(f"s_waitcnt vmcnt({n})")
            elif k == "BAR":
                if not cfg.nobar: st.add("s_barrier")
            elif k == "M0V": st.add(f"s_pack_ll_b32_b16 m0, s{SOFFV}, 1")
            elif k == "M0K": st.add(f"s_pack_ll_b32_b16 m0, s{SOFFK}, 0")
            elif k == "INCV": st.add(f"s_addk_i32 s{SOFFV}, 0x4000")
            elif k == "INCK": st.add(f"s_addk_i32 s{SOFFK}, 0x4000")
            elif k == "CNT":
                if t % 2 == cfg.bpar: st.add(f"s_sub_u32 s{SCNT}, s{SCNT}, 1")
            elif k == "CMP":
                if t % 2 == cfg.bpar: st.add(f"s_cmp_lg_u32 s{SCNT}, 0")
            elif k == "BRANCH":
                if t % 2 == cfg.bpar: st.add("s_cbranch_scc1 L_loop")
        me = T.mem[g]
        if me:
            k, tt = me[0], t + me[1]
            if k in cfg.skip.split(","): pass
            elif k == "KR": st.add(kr_text(tt, me[2], me[3]))
            elif k == "VR": st.add(vr_text(tt, me[2], me[3], me[4]))
            elif cfg.nodma: pass
            elif k == "DMAK": st.add(dmak_text(cfg, me[2]), tag=("K", tt))
            elif k == "DMAV": st.add(dmav_text(cfg, me[2]), tag=("V", tt))
        for v in T.val[g]:
            if v[0] == "XOR":
                if t % 2 == 1: st.add(f"v_xor_b32 v{VA + v[2]}, s{SX8000}, v{VA + v[2]}")
                elif v[3] is not None: st.add(f"v_xor_b32 v{KA + v[3]}, s{SX8000}, v{KA + v[3]}")
            elif v[0] in cfg.skip.split(","): pass
            else:
                st.add(sm_text(v[0], t + v[1], v[2], v[3], v[4]))

def stamp(st, cfg, name):
    if not cfg.stamps: return
    if cfg.only and name not in cfg.only.split(","): return
    if not hasattr(st, "stampnames"): st.stampnames = []
    idx = len(st.stampnames); st.stampnames.append(str(name)); assert idx < 14
    st.add("s_waitcnt lgkmcnt(0)")
    st.add(f"s_memtime s[60:61]")
    st.add(f"s_memrealtime s[62:63]")
    st.add("s_waitcnt lgkmcnt(0)")
    st.add(f"s_mov_b32 s{64 + 2 * idx}, s60")
    st.add(f"s_mov_b32 s{65 + 2 * idx}, s62")

def dma_tile(st, cfg, which, t):
    A = st.add
    if which == "K":
        A(f"s_pack_ll_b32_b16 m0, s{SOFFK}, 0")
        for j in range(4): A(dmak_text(cfg, j), tag=("K", t))
        A(f"s_addk_i32 s{SOFFK}, 0x4000")
    else:
        A(f"s_pack_ll_b32_b16 m0, s{SOFFV}, 1")
        for j in range(4): A(dmav_text(cfg, j), tag=("V", t))
        A(f"s_addk_i32 s{SOFFV}, 0x4000")

def waitv(st, *tags):
    n = st.vm_needed(lambda o: o.tag in tags)
    if n is not None: st.add(f"s_waitcnt vmcnt({n})")

def xlane(st, op, x, y):
    for sw in ("v_permlane16_swap_b32", "v_permlane32_swap_b32"):
        st.add(f"v_mov_b32 v{y}, v{x}")
        st.add(f"{sw} v{x}, v{y}")
        st.add(f"{op} v{x}, v{x}, v{y}")

def softmax0(st, cfg, T, qb):
    W = set((v[0],) + tuple(v[2:]) for v in T.wrapped)
    for kb in range(4):
        for r in range(4):
            if ("EXP", kb, qb, r) not in W: st.add(sm_text("EXP", 0, kb, qb, r))
    for kb in range(4):
        for r in range(4):
            if qb not in cfg.ones and ("ADD", kb, qb, r) not in W: st.add(sm_text("ADD", 0, kb, qb, r))
        for r in range(2):
            if ("CVT", kb, qb, r) not in W: st.add(sm_text("CVT", 0, kb, qb, r))

def init_acc(st, cfg, zero=False):
    A = st.add
    if cfg.ooff and zero:
        A(f"s_mov_b32 s{SNC}, 0")
    if cfg.ooff and not zero: pass
    else:
        for i in range(128): A(f"v_accvgpr_write_b32 a{O0 + i}, 0")
    for i in range(16): A(f"v_accvgpr_write_b32 a{L0 + i}, 0")
    if len(cfg.ones) < 4:
        for i in range(8): A(f"v_mov_b32 v{LS + i}, 0")

def prologue(st, cfg, T):
    A = st.add
    A("s_cmp_ge_u32 s2, 0x100")
    A("s_cbranch_scc1 L_end")
    stamp(st, cfg, "start")
    A("s_load_dwordx8 s[4:11], s[0:1], 0")
    if cfg.stamps: A("s_load_dwordx2 s[56:57], s[0:1], %d" % (32 if cfg.dbg else 40))
    A("v_lshrrev_b32 v1, 6, v0")
    A("v_and_b32 v2, 63, v0")
    A(f"v_readfirstlane_b32 s{SW}, v1")
    A("v_and_b32 v3, 15, v2")
    A("v_lshrrev_b32 v4, 4, v2")
    def prefetch(lo, hi, idx):
        A(f"v_min_u32 v186, ({hi}-{lo}-4)/128, {idx}")
        A("v_lshlrev_b32 v186, 7, v186")
        if lo != "L_pc": A(f"v_add_u32 v186, {lo}-L_pc, v186")
        A("v_mov_b32 v187, s37")
        A("v_add_co_u32 v186, vcc, s36, v186")
        A("v_addc_co_u32 v187, vcc, 0, v187, vcc")
        A("global_load_dword v185, v[186:187], off", tag=("PF", 0))
    if cfg.pf:
        A("s_getpc_b64 s[36:37]")
        A("L_pc:")
        if cfg.pf == 1: prefetch("L_pc", "L_codeend", "v0")
        else:
            A("v_lshrrev_b32 v5, 2, v0")
            prefetch("L_pc", "L_entry", "v5")
    A("s_bfe_u32 s50, s2, 0x20001")
    A("s_and_b32 s51, s2, 1")
    A("s_lshl_b32 s51, s51, 5")
    A("s_lshr_b32 s52, s2, 3")
    A("s_or_b32 s51, s51, s52")
    A("s_lshl_b32 s52, s50, 6")
    A("s_add_u32 s51, s51, s52")
    A("s_lshl_b32 s51, s51, 16")
    A("s_lshl_b32 s50, s50, 19")
    A(f"s_lshl_b32 s{SW4K}, s{SW}, 12")
    A(f"s_lshl_b32 s{SQB}, s{SW}, 14")
    if cfg.qmap == 0:
        for i in range(1, 4): A(f"s_add_u32 s{SQB + i}, s{SQB}, {4096 * i}")
    elif cfg.qmap == 1:
        A(f"s_lshr_b32 s53, s2, 3")
        A(f"s_add_u32 s53, s53, s{SW}")
        A(f"s_mov_b32 s54, s{SQB}")
        for i in range(4):
            A(f"s_add_u32 s55, s53, {i}")
            A(f"s_and_b32 s55, s55, 3")
            A(f"s_lshl_b32 s55, s55, 12")
            A(f"s_add_u32 s{SQB + i}, s54, s55")
    elif cfg.qmap == 2:
        for i in range(4): A(f"s_add_u32 s{SQB + i}, s{SW4K}, {16384 * i}")
    elif cfg.qmap == 3:
        A(f"s_lshr_b32 s53, s2, 3")
        for i in range(4):
            A(f"s_add_u32 s55, s53, {i}")
            A(f"s_and_b32 s55, s55, 3")
            A(f"s_lshl_b32 s55, s55, 14")
            A(f"s_add_u32 s{SQB + i}, s{SW4K}, s55")
    A(f"s_mov_b32 s{SOFFK}, s{SW4K}")
    A(f"s_mov_b32 s{SOFFV}, s{SW4K}")
    A(f"s_lshl_b32 s53, s{SW}, 2")
    A("v_add_u32 v5, s53, v4")
    A("v_xor_b32 v5, v5, v3")
    A("v_lshlrev_b32 v6, 8, v4")
    A(f"v_lshl_add_u32 v{DK}, v5, 4, v6")
    for j in range(4):
        A(f"v_add_u32 v5, {4 * j}, v4")
        A("v_xor_b32 v5, v5, v3")
        A(f"v_lshl_add_u32 v{8 + j}, v5, 4, v6")
    A("s_waitcnt lgkmcnt(0)")
    stamp(st, cfg, "kernarg")
    def srd(srd, p, off, n):
        A(f"s_add_u32 s{srd}, s{p}, s{off}")
        A(f"s_addc_u32 s{srd + 1}, s{p + 1}, 0")
        A(f"s_mov_b32 s{srd + 2}, {n}")
        A(f"s_mov_b32 s{srd + 3}, 0x20000")
    if cfg.ooff: A("s_load_dwordx8 s[92:99], s[8:9], s50")
    srd(SK, 6, 50, 524288)
    dma_tile(st, cfg, "K", 0)
    srd(SQ, 4, 51, 65536)
    def dmaq(qb):
        A(f"s_add_u32 m0, s{SW4K}, {QSTAGE[qb]}")
        for j in range(4):
            A(f"buffer_load_dwordx4 v{8 + j}, s[{SQ}:{SQ+3}], s{SQB + qb} offen offset:{1024 * j}{cfg.qpol} lds", tag=("Q", qb))
    def part2():
        srd(SV, 8, 50, 524288)
        srd(SO, 10, 51, 65536)
        A(f"s_and_b32 s53, s{SW}, 1")
        A("s_lshl_b32 s53, s53, 2")
        A("v_add_u32 v5, s53, v4")
        A("v_lshlrev_b32 v5, 1, v5")
        A("v_xor_b32 v5, v5, v3")
        A(f"v_lshl_add_u32 v{DV}, v5, 4, v6")
        A("v_lshrrev_b32 v5, 2, v3")
        A("v_lshlrev_b32 v5, 12, v5")
        A("v_and_b32 v6, 3, v3")
        A("v_lshl_add_u32 v5, v6, 8, v5")
        A(f"v_lshl_add_u32 v7, v3, 8, s{SW4K}")
        for s in range(4):
            A(f"v_add_u32 v6, {4 * s}, v4")
            A("v_xor_b32 v6, v6, v3")
            A(f"v_lshl_add_u32 v{KA + s}, v6, 4, v5")
            A(f"v_lshl_add_u32 v{12 + s}, v6, 4, v7")
            A(f"v_add_u32 v{12 + s}, {QSTAGE[0]}, v{12 + s}")
        A("v_lshrrev_b32 v5, 1, v4")
        A("v_xor_b32 v5, v5, v3")
        A("v_lshl_add_u32 v5, v5, 4, v7")
        A("v_and_b32 v6, 1, v4")
        if cfg.wfix:
            A("v_lshrrev_b32 v1, 3, v3")
            A("v_xor_b32 v6, v6, v1")
        A(f"v_lshl_add_u32 v{OW}, v6, 3, v5")
        A("v_xor_b32 v5, v3, v4")
        A("v_lshlrev_b32 v5, 4, v5")
        A("v_lshl_add_u32 v5, v4, 8, v5")
        A(f"v_add_u32 v{OR_}, s{SW4K}, v5")
        if cfg.pkt >= 2:
            for db in range(8): A(f"v_xor_b32 v{WA + db}, {32 * db}, v{OW}")
            for k in (3, 2, 0, 1): A(f"v_xor_b32 v{RA[k]}, {64 * k}, v{OR_}")
        A(f"v_lshlrev_b32 v{OS}, 4, v2")
        if cfg.sperm:
            A("v_and_b32 v5, 3, v2")
            A("v_lshrrev_b32 v6, 2, v2")
            A("v_lshlrev_b32 v6, 4, v6")
            A(f"v_lshl_add_u32 v{OS}, v5, 8, v6")
        A("v_lshrrev_b32 v5, 2, v3")
        A("v_and_b32 v6, 1, v4")
        A("v_lshl_add_u32 v6, v6, 2, v5")
        A("v_lshl_add_u32 v5, v4, 4, v5")
        A("v_lshlrev_b32 v5, 8, v5")
        A("v_and_b32 v7, 3, v3")
        A("v_lshl_add_u32 v5, v7, 3, v5")
        A(f"v_add_u32 v5, {VBASE}, v5")
        for db in range(8):
            A(f"v_xor_b32 v7, {db}, v6")
            A(f"v_lshl_add_u32 v{VA + db}, v7, 5, v5")
        if cfg.ap:
            A("v_lshlrev_b32 v5, 2, v4")
            A("v_sub_u32 v5, v3, v5")
            A("v_mov_b32 v6, 0x3f80")
            A("v_mov_b32 v7, 0x3f800000")
            for h in range(2):
                A(f"v_cmp_eq_u32 vcc, {2 * h}, v5")
                A(f"v_cndmask_b32 v{IDN + h}, 0, v6, vcc")
                A(f"v_cmp_eq_u32 vcc, {2 * h + 1}, v5")
                A(f"v_cndmask_b32 v{IDN + h}, v{IDN + h}, v7, vcc")
        if cfg.head:
            for i in range(16): A(f"v_accvgpr_write_b32 a{L0 + i}, 0")
        else: init_acc(st, cfg)
        A("v_mov_b32 v5, 0x3f803f80")
        if cfg.zrow:
            assert not cfg.ap
            A(f"v_cmp_gt_u32 vcc, {2 if cfg.smf else 1}, v3")
            A("v_cndmask_b32 v5, 0, v5, vcc")
        if cfg.smf:
            assert not cfg.ap
            A("v_and_b32 v6, 1, v3")
            A("v_mov_b32 v7, 0xeeeeeeee")
            A(f"v_mov_b32 v{SIDX}, 0x44444444")
            A("v_cmp_eq_u32 vcc, 1, v6")
            A(f"v_cndmask_b32 v{SIDX}, v{SIDX}, v7, vcc")
        for i in range(4): A(f"v_accvgpr_write_b32 a{ONES + i}, v5")
        c = math.log2(math.e) / math.sqrt(128.0)
        A(f"s_mov_b32 s{SC}, {f32bits(c):#x}")
        A(f"s_mov_b32 s{SC + 1}, s{SC}")
        A(f"s_mov_b32 s{SC - 1}, 0xffff0000")
        A(f"s_mov_b32 s{SCNT}, {cfg.trips}")
        A(f"s_mov_b32 s{SMODE}, 0")
        if cfg.wv == 4: A(f"s_mov_b32 s{SVER}, s{SW}")
        elif cfg.wv == 2: A(f"s_and_b32 s{SVER}, s{SW}, 1" if cfg.wsel else f"s_lshr_b32 s{SVER}, s{SW}, 1")
        if cfg.ooff: A(f"s_mov_b32 s{S256}, 0x44800000")
        if cfg.perm: A("s_mov_b32 s42, 0x07060302")
        if cfg.itstamp: A("s_mov_b32 s35, -1"); A("v_mov_b32 v188, 0")
        A(f"s_mov_b32 s{SX8000}, 0x8000")
    def oinit1():
        A("s_waitcnt lgkmcnt(0)")
        A("s_mov_b32 s52, 0")
        for i in range(8):
            A(f"s_lshl_b32 s53, s{92 + i}, 16")
            A(f"s_and_b32 s53, s53, 0x7f800000")
            A(f"s_and_b32 s54, s{92 + i}, 0x7f800000")
            A("s_max_u32 s52, s52, s53")
            A("s_max_u32 s52, s52, s54")
        A(f"s_add_u32 s52, s52, {(int(cfg.boff) + cfg.ooff) << 23:#x}")
        A("s_min_u32 s52, s52, 0x70000000")
        A("s_or_b32 s52, s52, 0x400000")
        A(f"s_or_b32 s{SNC}, s52, 0x80000000")
    def oinit2():
        A("v_mov_b32 v6, s52")
        for i in range(128): A(f"v_accvgpr_write_b32 a{O0 + i}, v6")
    pend = [("K", 1), ("V", 0), ("K", 2), ("V", 1), ("K", 3)] if cfg.kdepth == 4 else [("K", 1), ("V", 0), ("V", 1), ("K", 2)]
    done_q = [0]
    def later(n):
        for _ in range(n):
            w, t = pend.pop(0)
            assert (w, t) not in (("V", 1), ("K", 3)) or done_q[0] >= 2
            dma_tile(st, cfg, w, t)
    def raw(fn):
        keep = list(st.vm); fn(); st.vm = keep
    if cfg.two:
        na, nb = cfg.two // 10, cfg.two % 10
        for qb in range(nb): dmaq(qb)
        A(f"s_bitcmp1_b32 s2, {cfg.twobit}")
        A("s_cbranch_scc1 L_qlate")
        for qb in range(nb, na): dmaq(qb)
        A("L_qlate:")
        part2()
        if cfg.ooff: oinit1(); oinit2()
        A(f"s_bitcmp1_b32 s2, {cfg.twobit}")
        A("s_cbranch_scc0 L_qdone")
        raw(lambda: [dmaq(qb) for qb in range(nb, na)])
        A("L_qdone:")
        for qb in range(na, 4): dmaq(qb)
    else:
        for qb in range(cfg.qfirst): dmaq(qb)
        stamp(st, cfg, "dmaQa")
        part2()
        stamp(st, cfg, "init")
    if cfg.head:
        for x in cfg.hord:
            if x == "K": dma_tile(st, cfg, "K", 1)
            elif x == "V": dma_tile(st, cfg, "V", 0)
            else: dmaq(int(x))
    elif not cfg.two:
        for qb in range(cfg.qfirst, 4):
            if cfg.ooff and cfg.oiw == qb + 1: oinit1(); oinit2()
            dmaq(qb)
        later(cfg.sched[0])
    if cfg.pf == 2:
        st.vm = [o for o in st.vm]
        for o in st.vm:
            if o.tag == ("PF", 0): o.wr = set()
        prefetch("L_entry", "L_codeend", "v0")
    stamp(st, cfg, "dmaQb")
    if cfg.probe:
        waitv(st, ("K", 0)); stamp(st, cfg, "pK0")
        for qb in range(4):
            waitv(st, ("Q", qb)); stamp(st, cfg, f"pQ{qb}")
    def Rq(qb):
        waitv(st, ("Q", qb))
        stamp(st, cfg, f"Q{qb}landed")
        qoff = QSTAGE[qb] - QSTAGE[0]
        if qb == 3:
            qoff -= 16384
        for s in range(4):
            A(f"ds_read_b128 {R('v', Qf(qb, s), 4)}, v{12 + s} offset:{qoff}")
    def Aq(qb):
        for s in range(4):
            st.wait_regs(R('v', Qf(qb, s), 4))
            tb = P0 + 32 + 8 * s
            for i in range(4):
                x = Qf(qb, s) + i
                A(f"v_lshlrev_b32 v{tb + 2 * i}, 16, v{x}")
                A(f"v_and_b32 v{tb + 2 * i + 1}, s{SC - 1}, v{x}")
            for i in range(4):
                A(f"v_pk_mul_f32 v[{tb + 2 * i}:{tb + 2 * i + 1}], v[{tb + 2 * i}:{tb + 2 * i + 1}], s[{SC}:{SC + 1}]")
            for i in range(4):
                A(f"v_cvt_pk_bf16_f32 v{Qf(qb, s) + i}, v{tb + 2 * i}, v{tb + 2 * i + 1}")
        if qb == 2:
            for s in range(4): A(f"v_add_u32 v{12 + s}, 0x4000, v{12 + s}")
        done_q[0] = qb + 1
    def dma_list(n):
        L = []
        for _ in range(n):
            w, t = pend.pop(0)
            assert (w, t) not in (("V", 1), ("K", 3)) or done_q[0] >= 2
            so = SOFFK if w == "K" else SOFFV
            L.append(("s", f"s_pack_ll_b32_b16 m0, s{so}, {0 if w == 'K' else 1}", None))
            for j in range(4): L.append(("m", (dmak_text if w == "K" else dmav_text)(cfg, j), (w, t)))
            L.append(("s", f"s_addk_i32 s{so}, 0x4000", None))
        return L
    def Bq(qb, early, dmas):
        x = Sb(0, qb)
        mx = [f"v_max3_f32 v1, v{x}, v{x + 1}, v{x + 2}", f"v_max_f32 v1, v1, v{x + 3}"]
        for sw in ("v_permlane16_swap_b32", "v_permlane32_swap_b32"):
            mx += ["v_mov_b32 v5, v1", "-", f"{sw} v1, v5", "v_max_f32 v1, v1, v5"]
        mx += [f"v_sub_f32 v{NEGM + 4 * qb + i}, {f32bits(float(cfg.boff)):#x}, v1" for i in range(4)]
        i = 0
        for kb in range(4):
            for s in range(4):
                d = R("v", Sb(kb, qb), 4)
                st.wait_regs(R('a', K0f(kb, s), 4))
                A(f"{MF} {d}, {R('a', K0f(kb, s), 4)}, {R('v', Qf(qb, s), 4)}, {'0' if s == 0 else d}")
                if i >= cfg.mxstart:
                    for _ in range(2):
                        if mx:
                            y = mx.pop(0)
                            if y == "-": break
                            A(y)
                elif dmas:
                    while dmas and dmas[0][0] == "s": A(dmas.pop(0)[1])
                    if dmas: _, y, tg = dmas.pop(0); A(y, tag=tg)
                elif early:
                    y = early.pop(0); A(y)
                    if not y.startswith("v_exp") and early and not early[0].startswith("v_exp"): A(early.pop(0))
                i += 1
        for _, y, tg in dmas: A(y, tag=tg)
        for y in mx:
            if y != "-": A(y)
        for y in early: A(y)
    def Eq(qb):
        tmp = Stream()
        x = [Sb(kb, qb) + r for kb in range(4) for r in range(4)]
        L = [f"v_pk_add_f32 v[{x[i]}:{x[i] + 1}], v[{x[i]}:{x[i] + 1}], v[{NEGM + 4 * qb}:{NEGM + 4 * qb + 1}]" for i in range(0, 16, 2)]
        softmax0(tmp, cfg, T, qb)
        return L + [i.text for i in tmp.ins if i.tag != "autonop"]
    def sync1():
        waitv(st, ("K", 1), ("V", 0))
        A("s_barrier")
        for s in range(4): A(kr_text(1, 0, s))
    if cfg.head or cfg.lite:
        head_phase(st, cfg, T, Rq)
        return
    if cfg.ooff and cfg.oiw < 3:
        oinit1()
        if cfg.oiw == 0: oinit2()
    Rq(0)
    waitv(st, ("K", 0))
    A("s_barrier")
    stamp(st, cfg, "B0")
    for kb in range(4):
        for s in range(4):
            A(f"ds_read_b128 {R('a', K0f(kb, s), 4)}, v{KA + s} offset:{kb * 1024}")
    Aq(0); Bq(0, [], dma_list(cfg.sched[1]))
    for y in Eq(0): A(y)
    if cfg.pf == 3: prefetch("L_entry", "L_codeend", "v0")
    if cfg.ooff and cfg.oiw == 1: oinit2()
    Rq(1); Aq(1); Bq(1, [], dma_list(cfg.sched[2]))
    for y in Eq(1): A(y)
    if cfg.pf == 4: prefetch("L_entry", "L_codeend", "v0")
    for _, y, tg in dma_list(cfg.sched[3]): A(y, tag=tg)
    if cfg.ooff and cfg.oiw == 2: oinit2()
    Rq(2); Aq(2); Bq(2, [], dma_list(cfg.sched[4]))
    e2 = Eq(2)
    Rq(3)
    for _ in range(cfg.e2first): A(e2.pop(0))
    Aq(3); Bq(3, e2, dma_list(len(pend)))
    sync1()
    if cfg.otouch: A(f"buffer_load_dword v185, v{OS}, s[{SO}:{SO+3}], s{SQB} offen nt", tag=("T", 0))
    for y in Eq(3): A(y)
    A("s_waitcnt lgkmcnt(0)")
    if cfg.dephase:
        A("s_bitcmp1_b32 s2, 3")
        A("s_cbranch_scc0 L_nodelay")
        st.ins.append(I(f"s_sleep {cfg.dephase}", "ctl"))
        A("L_nodelay:")
    stamp(st, cfg, "mainstart")
    A("s_branch L_entry")

def head_phase(st, cfg, T, Rq):
    A = st.add
    def K0b(kb, s):
        f = kb * 4 + s
        if cfg.lite: return R('a', K0f(kb, s), 4)
        return R('a', KF + 4 * f, 4) if f < 8 else R('a', Ob(f - 8, 3), 4)
    def K1b(kb, s, late):
        f = kb * 4 + s
        if f < 8: return R('a', Ob(f, 2), 4)
        f -= 8
        return R('v', Sb(f // 2, (0 if late else 2) + f % 2), 4)
    Wr = set((v[0],) + tuple(v[2:]) for v in T.wrapped)
    def scale(qb):
        L = []
        for s in range(4):
            tb = Pf(1, 2, 0) + 8 * (s % 2) if not cfg.lite else P0 + 32 + 8 * s
            for i in range(4):
                x = Qf(qb, s) + i
                L.append(f"v_lshlrev_b32 v{tb + 2 * i}, 16, v{x}")
                L.append((f"v_and_b32 v{tb + 2 * i + 1}, s{SC - 1}, v{x}", None, (), (f"qd{qb}_{s}",) if i == 3 else ()))
            for i in range(4): L.append(f"v_pk_mul_f32 v[{tb + 2 * i}:{tb + 2 * i + 1}], v[{tb + 2 * i}:{tb + 2 * i + 1}], s[{SC}:{SC + 1}]")
            for i in range(4): L.append(f"v_cvt_pk_bf16_f32 v{Qf(qb, s) + i}, v{tb + 2 * i}, v{tb + 2 * i + 1}")
        return L
    def qk0(qb):
        L = []
        for kb in range(4):
            for s in range(4):
                d = R("v", Sb(kb, qb), 4)
                L.append(f"{MF} {d}, {K0b(kb, s)}, {R('v', Qf(qb, s), 4)}, {'0' if s == 0 else d}")
        x = Sb(0, qb); a, b = (1, 5) if qb % 2 == 0 else (6, 7)
        L += [f"v_max3_f32 v{a}, v{x}, v{x + 1}, v{x + 2}", f"v_max_f32 v{a}, v{a}, v{x + 3}"]
        for sw in ("v_permlane16_swap_b32", "v_permlane32_swap_b32"):
            L += [f"v_mov_b32 v{b}, v{a}", f"{sw} v{a}, v{b}", f"v_max_f32 v{a}, v{a}, v{b}"]
        L += [f"v_sub_f32 v{NEGM + 4 * qb + i}, 0, v{a}" for i in range(4)]
        return L
    def sm(tt, qb):
        L = []
        for kb in range(4):
            x = Sb(kb, qb)
            if tt == 0:
                if cfg.hpk: L += [f"v_pk_add_f32 v[{x + i}:{x + i + 1}], v[{x + i}:{x + i + 1}], v[{NEGM + 4 * qb}:{NEGM + 4 * qb + 1}]" for i in (0, 2)]
                else: L += [f"v_add_f32 v{x + i}, v{x + i}, v{NEGM + 4 * qb}" for i in range(4)]
            for r in range(4):
                if (tt == 0 and not cfg.lite) or ("EXP", kb, qb, r) not in Wr: L.append(sm_text("EXP", tt, kb, qb, r))
            for r in range(2):
                if (tt == 0 and not cfg.lite) or ("CVT", kb, qb, r) not in Wr: L.append(sm_text("CVT", tt, kb, qb, r))
        return L
    def qk1(qb):
        L = []
        for kb in range(4):
            for s in range(4):
                d = R("v", Sb(kb, qb), 4)
                L.append(f"{MF} {d}, {K1b(kb, s, qb >= 2)}, {R('v', Qf(qb, s), 4)}, {R('v', NEGM + 4 * qb, 4) if s == 0 else d}")
        return L
    def pv0(qb):
        L = [mfma_text(cfg, ("ONE", qb, 0), 0)]
        for db in range(8):
            d = R("a", Ob(db, qb), 4)
            for sl in range(2):
                L.append(f"{MF} {d}, {R('a', Vf(db, sl), 4)}, {R('v', Pf(0, qb, sl), 4)}, {'0' if sl == 0 else d}")
        return L
    def dma(w, t, after=()):
        so = SOFFK if w == "K" else SOFFV
        L = [f"s_pack_ll_b32_b16 m0, s{so}, {0 if w == 'K' else 1}"]
        for j in range(4): L.append(((dmak_text if w == "K" else dmav_text)(cfg, j), (w, t), ("vmq",) + tuple(after), ("vmq",)))
        L.append(f"s_addk_i32 s{so}, 0x4000")
        return L
    def run(items, name):
        out, tend = schedule(items, mfma_bias=cfg.mbias)
        sys.stderr.write(f"  head region {name}: {len(out)} instrs, model {tend} cycles\n")
        for x, tg in out:
            i = parse(x)
            n = st.lgkm_needed(i.rd | i.wr)
            if n is not None: A(f"s_waitcnt lgkmcnt({n})")
            A(x, tag=tg)
    def dq(qb):
        L = [f"s_add_u32 m0, s{SW4K}, {QSTAGE[qb]}"]
        for j in range(4):
            L.append((f"buffer_load_dwordx4 v{8 + j}, s[{SQ}:{SQ+3}], s{SQB + qb} offen offset:{1024 * j}{cfg.qpol} lds", ("Q", qb), ("vmq",), ("vmq",)))
        return L
    def lst(spec):
        L = []
        for x in spec:
            L += dma("K", 1) if x == "K" else dma("V", 0) if x == "V" else dq(int(x))
        return L
    def now(L):
        for x in L:
            if isinstance(x, str): A(x)
            else: A(x[0], tag=x[1])
    k0r = [f"ds_read_b128 {K0b(kb, s)}, v{KA + s} offset:{kb * 1024}" for kb in range(4) for s in range(4)]
    k1r = lambda late, fr: [f"ds_read_b128 {K1b(f // 4, f % 4, late)}, v{KA + f % 4} offset:{16384 + (f // 4) * 1024}" for f in fr]
    v0r = [vr_text(0, db, sl, u) for db in range(8) for sl in range(2) for u in range(2)]
    qd = lambda qb: tuple(f"qd{qb}_{s}" for s in range(4))
    rel = dict(zip(("B0", "Q1", "B1", "Q2", "Q3", "B2", "D2", "D3", "D4", "D5", "DV", "BV", "Q0"), cfg.rel + [0] * 5))
    def dep(L, rd=(), wr=(), rl_=0):
        out = []
        for x in L:
            if isinstance(x, str): x = (x, None, (), ())
            out.append((x[0], x[1], tuple(x[2]) + tuple(rd), tuple(x[3]) + tuple(wr), rl_))
        return out
    def rq(qb):
        qoff = QSTAGE[qb] - QSTAGE[0] - (16384 if qb == 3 else 0)
        L = [(f"@W Q{qb}", None, (f"iss_Q{qb}",), (f"q{qb}",), rel.get(f"Q{qb}", 0))]
        L += dep([f"ds_read_b128 {R('v', Qf(qb, s), 4)}, v{12 + s} offset:{qoff}" for s in range(4)], rd=(f"q{qb}",))
        if qb == 2: L += [f"v_add_u32 v{12 + s}, 0x4000, v{12 + s}" for s in range(4)]
        return L
    def bar(name, tiles, rd=()):
        return [(f"@B {tiles}", None, tuple(f"iss_{x}" for x in tiles.split(",")) + tuple(rd), (name,), rel[name])]
    def iss(L, name, r, after=()):
        L = dep(L, rl_=r)
        L = [(x[0], x[1], x[2] + (tuple(after) if x[1] else ()), x[3] + ((f"iss_{name}",) if x[1] else ()), x[4]) for x in L]
        return L
    xk = [f"v_xor_b32 v{KA + s}, s{SX8000}, v{KA + s}" for s in range(4)]
    toks = []
    def tok(L):
        out = []
        for x in L:
            toks.append(f"tok{len(toks)}"); out.append((x[0], x[1], x[2], x[3] + (toks[-1],), x[4]))
        return out
    P = []
    if cfg.b0first: P += bar("B0", "K0") + rq(0) + tok(dep(k0r, rd=("B0",)))
    else: P += rq(0) + bar("B0", "K0") + tok(dep(k0r, rd=("B0",)))
    late = [x for x in cfg.hlate]
    for x in late:
        if x == "V": P += iss(dma("V", 0), "V0", rel["DV"], after=("q0",))
        else: P += iss(dq(int(x)), f"Q{x}", rel[f"D{x}"], after=("q0",))
    P += scale(0) + qk0(0) + sm(0, 0) + rq(1) + scale(1) + qk0(1)
    if "V" in late:
        P += bar("B1", "K1") + tok(dep(k1r(False, range(16)), rd=("B1",)))
        P += bar("BV", "V0") + tok(dep(v0r, rd=("BV",)))
    else:
        P += bar("B1", "K1,V0") + tok(dep(k1r(False, range(16)) + v0r, rd=("B1",)))
    P += sm(0, 1) + qk1(0) + qk1(1) + pv0(0) + sm(1, 0) + pv0(1) + sm(1, 1) + tok(dep(k1r(True, range(8, 16)), rd=("B1",)))
    P += iss(dma("V", 1), "V1", rel["D4"], after=qd(1)) + iss(dma("K", 2), "K2", rel["D4"])
    P += rq(2) + scale(2) + qk0(2) + rq(3) + xk
    P += iss(dma("V", 2), "V2", rel["D5"], after=qd(2)) + iss(dma("K", 3), "K3", rel["D5"], after=qd(0))
    P += sm(0, 2) + scale(3) + qk0(3) + qk1(2) + sm(0, 3) + qk1(3) + sm(1, 2) + pv0(2)
    P += bar("B2", "K2,V1", rd=tuple(toks))
    P += dep([kr_text(2, 0, s) for s in range(4)], rd=("B2",))
    P += sm(1, 3) + pv0(3)
    P += [("@E", None, tuple(f"a{KF + i}" for i in range(16)) + tuple(f"v{Sb(3, 3) + i}" for i in range(4)), (), 0)]
    if cfg.lite:
        toks.clear()
        P = rq(0) + bar("B0", "K0") + tok(dep(k0r, rd=("B0",)))
        P += iss(dma("K", 1), "K1", rel["D2"], after=("q0",)) + iss(dma("V", 0), "V0", rel["D3"])
        for qb in range(4):
            if qb: P += rq(qb)
            P += scale(qb) + qk0(qb) + sm(0, qb)
            if qb == 1: P += iss(dma("V", 1), "V1", rel["D4"], after=qd(1)) + iss(dma("K", 2), "K2", rel["D5"])
        P += bar("B1", "K1,V0", rd=tuple(toks))
        P += dep([kr_text(1, 0, s) for s in range(4)], rd=("B1",))
        P += [("@E", None, tuple(f"a{KF + i}" for i in range(16)) + tuple(f"v{Sb(3, 3) + i}" for i in range(4)), (), 0)]
    out, tend = schedule(P, tries=cfg.tries)
    sys.stderr.write(f"  head: {len(out)} instrs, model {tend} cycles\n")
    for x, tg in out:
        if x == "@E": continue
        if x.startswith("@"):
            tiles = [(y[0], int(y[1:])) for y in x.split()[1].split(",")]
            waitv(st, *tiles)
            if x.startswith("@B"):
                if "K2" in x or (cfg.lite and "K1" in x):
                    pend_ = set(r for y in k0r + k1r(True, range(16)) + k1r(False, range(16)) + v0r for r in parse(y).wr)
                    n = st.lgkm_needed(pend_)
                    if n is not None: A(f"s_waitcnt lgkmcnt({n})")
                A("s_barrier")
            stamp(st, cfg, x.split()[1].replace(",", ""))
            continue
        i = parse(x)
        n = st.lgkm_needed(i.rd | i.wr)
        if n is not None: A(f"s_waitcnt lgkmcnt({n})")
        A(x, tag=tg)
    A("s_waitcnt lgkmcnt(0)")
    stamp(st, cfg, "mainstart")
    if cfg.enop >= 0: A(f"s_nop {cfg.enop}")
    A("s_branch L_odd" if cfg.head else "s_branch L_entry")

IDN = 186
def rl(cfg, qb, i): return NEGM + 4 * qb + (i if cfg.ap else 0)

def tail(st, cfg, T):
    A = st.add
    t = NT - 1
    if cfg.twice:
        A("s_mov_b32 s35, 2")
        A("L_twice:")
        A("s_waitcnt vmcnt(0)")
        A("s_barrier")
    stamp(st, cfg, "loopend")
    vr = [vr_text(t, db, sl, u) for db in range(8) for sl in range(2) for u in range(2)]
    wr = [sm_text(v[0], t, v[2], v[3], v[4]) for v in T.wrapped]
    def pv(qb):
        return [mfma_text(cfg, ("PV", db, qb, sl), t) for db in range(8) for sl in ((0, 1) if db % 2 == 0 else (1, 0))]
    def emit(x):
        i = parse(x)
        if i.kind == "vst" and (cfg.nostore == 1):
            n = st.lgkm_needed(i.rd)
            if n is not None: A(f"s_waitcnt lgkmcnt({n})")
            return
        n = st.lgkm_needed(i.rd | i.wr)
        if n is not None: A(f"s_waitcnt lgkmcnt({n})")
        A(x)
    def lpre(qb):
        L = []
        if qb in cfg.ones:
            for i in range(4 if cfg.ap else 1): L.append(f"v_accvgpr_read_b32 v{rl(cfg, qb, i)}, a{L0 + 4 * qb + i}")
            x = rl(cfg, qb, 0)
            if cfg.smf:
                L.append(f"v_accvgpr_read_b32 v{x + 1}, a{L0 + 4 * qb + 1}")
                L.append(f"v_add_f32 v{x}, v{x}, v{x + 1}")
            if cfg.zrow:
                for sw in ("v_permlane16_swap_b32", "v_permlane32_swap_b32"):
                    L.append(f"v_mov_b32 v{x + 1}, v{x}")
                    L.append(f"{sw} v{x}, v{x + 1}")
                    L.append(f"v_add_f32 v{x}, v{x}, v{x + 1}")
        else:
            assert not cfg.ap
            x = rl(cfg, qb, 0)
            L.append(f"v_add_f32 v{x}, v{LS + 2 * qb}, v{LS + 2 * qb + 1}")
            for sw in ("v_permlane16_swap_b32", "v_permlane32_swap_b32"):
                L.append(f"v_mov_b32 v{x + 1}, v{x}")
                L.append(f"{sw} v{x}, v{x + 1}")
                L.append(f"v_add_f32 v{x}, v{x}, v{x + 1}")
        for i in range(4 if cfg.ap else 1): L.append(f"v_rcp_f32 v{rl(cfg, qb, i)}, v{rl(cfg, qb, i)}")
        return L
    def epi(qb, packed, last):
        L = []
        tb = S0 + (qb % 2) * 32
        pk = P0 + ((t + 1) % 2) * 32 + (qb % 2) * 16
        def fin(db):
            x = tb + 4 * db
            return [f"v_cvt_pk_bf16_f32 v{pk + 2 * db + i}, v{x + 2 * i}, v{x + 2 * i + 1}" for i in range(2)] + \
                   [f"ds_write_b64 v{VA + db}, v[{pk + 2 * db}:{pk + 2 * db + 1}] offset:{qb * 16384}"]
        for db in range(8):
            x = tb + 4 * db
            for i in range(4): L.append(f"v_accvgpr_read_b32 v{x + i}, a{Ob(db, qb) + i}")
            if packed:
                for i in (0, 2):
                    r = rl(cfg, qb, i)
                    L.append(f"v_pk_mul_f32 v[{x + i}:{x + i + 1}], v[{x + i}:{x + i + 1}], v[{r}:{r + 1}]" + ("" if cfg.ap else " op_sel_hi:[1,0]"))
            else:
                for i in range(4): L.append(f"v_mul_f32 v{x + i}, v{x + i}, v{rl(cfg, qb, i)}")
            if cfg.ap:
                for i in range(2): L.append(f"v_cvt_pk_bf16_f32 v{pk + 2 * db + i}, v{x + 2 * i}, v{x + 2 * i + 1}")
                if db > 0: L += fin(db - 1)
                L.append(f"v_mfma_f32_16x16x16_bf16 v[{x}:{x + 3}], v[{pk + 2 * db}:{pk + 2 * db + 1}], v[{IDN}:{IDN + 1}], 0")
            else:
                L += fin(db)
        if cfg.ap: L += fin(7)
        if last and packed and cfg.wgrp > 1:
            W = [x for x in L if x.startswith("ds_write")]; V = [x for x in L if not x.startswith("ds_write")]
            per = len(V) // 8; L = []
            for k in range(0, 8, cfg.wgrp): L += V[k * per:(k + cfg.wgrp) * per] + W[k:k + cfg.wgrp]
        for n in range(4): L.append(f"ds_read_b128 v[{tb + 4 * n}:{tb + 4 * n + 3}], v{KA + n} offset:{qb * 16384 + n * 1024}")
        St = [f"buffer_store_dwordx4 v[{tb + 4 * n}:{tb + 4 * n + 3}], v{OS}, s[{SO}:{SO+3}], s{SQB + qb} offen offset:{n * 1024}{cfg.opol}" for n in range(4)]
        return L, St
    addr = [f"v_xor_b32 v{VA + db}, {32 * db}, v{OW}" for db in range(8)] + [f"v_xor_b32 v{KA + n}, {64 * n}, v{OR_}" for n in range(4)]
    for _ in range(8): A(vr.pop(0))
    for x in wr: A(x)
    fill = []
    mf = [mfma_text(cfg, ("ONE", qb, sl), t) for qb in cfg.ones for sl in range(1 if cfg.smf else 2)] + pv(0)
    n1 = len(mf) - 16
    rest = lpre(0) + addr + ["s_waitcnt vmcnt(0)"]
    for i, m in enumerate(mf):
        emit(m)
        if vr:
            A(vr.pop(0))
            if vr and i >= n1 - 2: A(vr.pop(0))
        else:
            for _ in range(2):
                if rest: emit(rest.pop(0))
    prev = []
    for qb in range(4):
        L, St = epi(qb, (qb == 3 or cfg.pkt) and not cfg.ap, qb == 3)
        L = rest + L; rest = []
        for n, x in enumerate(prev): L.insert(cfg.stdelay + n * (cfg.ststep + 1), x)
        prev = St
        if qb < 3:
            L = L[:-7] + lpre(qb + 1) + L[-7:]
            mf = pv(qb + 1)
            ismem = lambda x: x.startswith("ds_") or x.startswith("buffer_")
            if cfg.pkt:
                stores = [x for x in L if x.startswith("buffer_")]
                L2 = []; k = 0; nw = 0
                for x in L:
                    if x.startswith("buffer_"): continue
                    if x.startswith("ds_write"):
                        L2 += [mf[k], x, mf[k + 1]]; k += 2; nw += 1
                        if stores and nw >= 2 and nw % 2 == 0 or (stores and nw == 7): L2.append(stores.pop(0))
                    else: L2.append(x)
                assert not stores and k == 16
                L = L2; mf = []
            pos = [i for i, x in enumerate(L) if ismem(x) and not (i and (ismem(L[i - 1]) or "mfma" in L[i - 1]))]
            while len(pos) < 16 and mf:
                e = [0] + pos
                runs = [(e[k + 1] - e[k], k) for k in range(len(pos))]
                ln, k = max(runs)
                pos.append(e[k] + (ln + 1) // 2 if k else 0); pos = sorted(set(pos))
            for n, m in enumerate(mf): L.insert(pos[n] + n, m)
        stamp(st, cfg, f"stg{qb}")
        for x in L: emit(x)
    stamp(st, cfg, "stg4")
    for x in prev: emit(x)

WA = LS
RA = [182, 183, 190, 191]
def tail2(st, cfg, T):
    A = st.add
    t = NT - 1
    assert cfg.smf and not cfg.ap and len(cfg.ones) == 4
    stamp(st, cfg, "loopend")
    vr = [vr_text(t, db, sl, u) for db in range(8) for sl in range(2) for u in range(2)]
    wr = [sm_text(v[0], t, v[2], v[3], v[4]) for v in T.wrapped]
    assert all(v[3] >= 2 for v in T.wrapped)
    def emit(x):
        i = parse(x)
        n = st.lgkm_needed(i.rd | i.wr)
        if n is not None: A(f"s_waitcnt lgkmcnt({n})")
        if i.kind == "vst" and cfg.nostore: return
        A(x)
    def pv(n):
        qb, db = n // 8, n % 8
        return [mfma_text(cfg, ("PV", db, qb, sl), t) for sl in ((0, 1) if db % 2 == 0 else (1, 0))]
    def one(qb): return mfma_text(cfg, ("ONE", qb, 0), t)
    def lpre(qb):
        x = rl(cfg, qb, 0)
        L = [f"v_accvgpr_read_b32 v{x}, a{L0 + 4 * qb}", f"v_accvgpr_read_b32 v{x + 1}, a{L0 + 4 * qb + 1}", f"v_add_f32 v{x}, v{x}, v{x + 1}"]
        if cfg.zrow:
            for sw in ("v_permlane16_swap_b32", "v_permlane32_swap_b32"):
                L += [f"v_mov_b32 v{x + 1}, v{x}", f"{sw} v{x}, v{x + 1}", f"v_add_f32 v{x}, v{x}, v{x + 1}"]
        return L + [f"v_rcp_f32 v{x}, v{x}"]
    LAG = cfg.tlag
    for _ in range(4): A(vr.pop(0))
    emit(one(0))
    for _ in range(4): A(vr.pop(0))
    emit(one(1))
    for _ in range(4): A(vr.pop(0))
    A("s_waitcnt vmcnt(0)")
    for x in wr: A(x)
    for x in lpre(0): emit(x)
    for n in range(LAG):
        m = pv(n)
        emit(m[0]); A(vr.pop(0)); A(vr.pop(0)); emit(m[1]); A(vr.pop(0)); A(vr.pop(0))
    emit(one(2));
    for x in lpre(1): emit(x)
    emit(one(3))
    stores = []
    for n in range(32):
        qb, db = n // 8, n % 8
        tb = S0 + (qb % 2) * 32
        pk = P0 + ((t + 1) % 2) * 32 + (qb % 2) * 16
        x = tb + 4 * db; r = rl(cfg, qb, 0)
        for i in range(4): emit(f"v_accvgpr_read_b32 v{x + i}, a{Ob(db, qb) + i}")
        if db == 4 and qb in (1, 2):
            for y in lpre(qb + 1): emit(y)
        if cfg.fallback and cfg.early and n == 21:
            rr = [rl(cfg, q, 0) for q in range(4)]
            A(f"s_mov_b32 s36, {f32bits(2.0 ** (-40 - cfg.boff)):#x}")
            A(f"v_min_f32 v3, v{rr[0]}, v{rr[1]}")
            A(f"s_lshl_b32 s38, s{SW}, 2")
            A(f"v_min3_f32 v3, v3, v{rr[2]}, v{rr[3]}")
            A(f"s_add_u32 s38, s38, {FLAGS}")
            A("v_cmp_nle_f32 vcc, s36, v3")
            A(f"v_mov_b32 v2, {FLAGS}")
            A("v_mov_b32 v3, s38")
        if cfg.fallback and cfg.early and n == 22:
            A("s_cmp_lg_u64 vcc, 0")
            A("s_cselect_b32 s37, 1, 0")
            A("v_mov_b32 v1, s37")
        for i in (0, 2): emit(f"v_pk_mul_f32 v[{x + i}:{x + i + 1}], v[{x + i}:{x + i + 1}], v[{r}:{r + 1}] op_sel_hi:[1,0]")
        for i in range(2): emit(f"v_cvt_pk_bf16_f32 v{pk + 2 * db + i}, v{x + 2 * i}, v{x + 2 * i + 1}")
        if cfg.fallback and cfg.early and n == 29:
            emit("v_or_b32 v4, v4, v5")
            emit("v_or3_b32 v4, v4, v6, v7")
        if cfg.fallback and cfg.early and n == 30:
            A("v_readfirstlane_b32 s37, v4")
        m = pv(n + LAG) if n + LAG < 32 else []
        W = f"ds_write_b64 v{WA + db}, v[{pk + 2 * db}:{pk + 2 * db + 1}] offset:{qb * 16384}"
        if m: emit(m[0])
        if m or n == 31:
            if not m:
                for k in range(32 - LAG, 31): emit(f"ds_write_b64 v{WA + k % 8}, v[{pk + 2 * (k % 8)}:{pk + 2 * (k % 8) + 1}] offset:{qb * 16384}")
            emit(W)
        if m: emit(m[1])
        if cfg.fallback and cfg.early:
            if n == 22: A("ds_write_b32 v3, v1"); flagw = st.ins[-1]
            if n == 25:
                k = len(st.lgkm) - 1 - st.lgkm.index(flagw) if flagw in st.lgkm else None
                if k is not None: A(f"s_waitcnt lgkmcnt({min(k, 14)})")
                A("s_barrier")
                A("ds_read_b128 v[4:7], v2")
        for _ in range(4):
            if vr: A(vr.pop(0))
        if db == 7:
            for k in range(4): emit(f"ds_read_b128 v[{tb + 4 * k}:{tb + 4 * k + 3}], v{RA[k]} offset:{qb * 16384 + k * 1024}")
            stores = [f"buffer_store_dwordx4 v[{tb + 4 * k}:{tb + 4 * k + 3}], v{OS}, s[{SO}:{SO+3}], s{SQB + qb} offen offset:{k * 1024}{cfg.opol}" for k in range(4)]
        elif stores and db >= cfg.st0 and m: emit(stores.pop(0))
    for x in stores: emit(x)

def tail3(st, cfg, T):
    A = st.add
    t0, t1 = NT - 2, NT - 1
    assert cfg.smf and not cfg.ap and len(cfg.ones) == 4 and cfg.early
    stamp(st, cfg, "loopend")
    def V1(db, sl): return Q0 + (db * 2 + sl) * 4
    def vr0(db): return [vr_text(t0, db, sl, u) for sl in range(2) for u in range(2)]
    def vr1(db): return [f"ds_read_b64_tr_b16 {R('v', V1(db, sl) + 2 * u, 2)}, v{VA + db} offset:{(t1 % 2) * 16384 + (8 * sl + 4 * u) * 256}"
                         for sl in range(2) for u in range(2)]
    def emit(x):
        i = parse(x)
        n = st.lgkm_needed(i.rd | i.wr)
        if n is not None: A(f"s_waitcnt lgkmcnt({n})")
        if i.kind == "vst" and cfg.nostore: return
        if cfg.now and x.startswith("ds_write_b64"): return
        A(x)
    def sm1(qb):
        E, C = [], []
        for kb in range(4):
            for r in range(4): E.append(sm_text("EXP", t1, kb, qb, r))
            for r in range(2): C.append(sm_text("CVT", t1, kb, qb, r))
        return E, C
    wrE = [(0, sm_text(v[0], t0, v[2], v[3], v[4])) for v in T.wrapped if v[0] == "EXP"]
    wrC = [sm_text(v[0], t0, v[2], v[3], v[4]) for v in T.wrapped if v[0] == "CVT"]
    E0, C0 = sm1(0)
    EL = wrE + [(16 * (k // 4) + 8, x) for k, x in enumerate(E0)]
    done = set()
    CL = wrC + C0
    def cready(x):
        i = parse(x)
        return not any(parse(e).wr & i.rd for _, e in EL)
    KD = {16 * (kb - 1) + 1 + 2 * s: kr_text(t1, kb, s) for kb in range(1, 4) for s in range(4)}
    D0 = [x for db in range(8) for x in vr0(db)]
    D1 = [x for db in range(8) for x in vr1(db)]
    lastE = None
    for g in range(64):
        A(mfma_text(cfg, T.M[g], t0))
        if g in (15, 31, 47):
            rs = set()
            for x in range(g + 1, g + 17): rs |= parse(mfma_text(cfg, T.M[x], t0)).rd
            n = st.lgkm_needed(rs)
            if n is not None: A(f"s_waitcnt lgkmcnt({n})")
        if g == 49: A("s_waitcnt vmcnt(0)")
        if g == 50: A("s_barrier")
        if g in KD: A(KD[g])
        elif EL and EL[0][0] <= g and g != 50:
            A(EL.pop(0)[1]); continue
        elif g >= 52: A(D1.pop(0))
        elif g != 50: A(D0.pop(0))
        if CL and cready(CL[0]) and g != 50: A(CL.pop(0))
    assert not EL
    for x in CL: A(x)
    stamp(st, cfg, "f1")
    def need(db):
        L = []
        for D in (D0, D1):
            while D and f"v{VA + db} " in D[0]: L.append(D.pop(0))
        return L
    def pv(n):
        qb, db = n // 8, n % 8
        d = R("a", Ob(db, qb), 4)
        a = [mfma_text(cfg, ("PV", db, qb, sl), t0) for sl in range(2)]
        b = [f"{MF} {d}, {R('v', V1(db, sl), 4)}, {R('v', Pf(t1 % 2, qb, sl), 4)}, {d}" for sl in range(2)]
        L = a + b
        return L if db % 2 == 0 else L[::-1]
    def ones(qb): return [mfma_text(cfg, ("ONE", qb, 0), t) for t in (t0, t1)]
    def lpre(qb):
        x = rl(cfg, qb, 0)
        return [f"v_accvgpr_read_b32 v{x}, a{L0 + 4 * qb}", f"v_accvgpr_read_b32 v{x + 1}, a{L0 + 4 * qb + 1}",
                f"v_add_f32 v{x}, v{x}, v{x + 1}", f"v_rcp_f32 v{x}, v{x}"] + \
               ([f"v_mul_f32 v{x + 1}, s{SNC}, v{x}"] if cfg.ooff else [])
    XT = lambda n: 4 + 4 * (n % 2)
    PT = lambda n: 12 + 2 * (n % 2)
    def W(n): return f"ds_write_b64 v{WA + n % 8}, v[{PT(n)}:{PT(n) + 1}] offset:{(n // 8) * 16384}"
    def body(n, plain):
        qb, db = n // 8, n % 8
        x = XT(n); r = rl(cfg, qb, 0)
        return ([f"v_accvgpr_read_b32 v{x + i}, a{Ob(db, qb) + i}" for i in range(4)],
                (([f"v_fma_f32 v{x + i}, v{x + i}, v{r}, v{r + 1}" for i in range(4)] if plain else
                  [f"v_pk_fma_f32 v[{x + i}:{x + i + 1}], v[{x + i}:{x + i + 1}], v[{r}:{r + 1}], v[{r}:{r + 1}] op_sel:[0,0,1] op_sel_hi:[1,0,1]" for i in (0, 2)]) if cfg.ooff else
                 ([f"v_mul_f32 v{x + i}, v{x + i}, v{r}" for i in range(4)] if plain else
                  [f"v_pk_mul_f32 v[{x + i}:{x + i + 1}], v[{x + i}:{x + i + 1}], v[{r}:{r + 1}] op_sel_hi:[1,0]" for i in (0, 2)])) +
                [f"v_cvt_pk_bf16_f32 v{PT(n) + i}, v{x + 2 * i}, v{x + 2 * i + 1}" for i in range(2)])
    def Rd(qb): return [f"ds_read_b128 v[{Sb(k, qb)}:{Sb(k, qb) + 3}], v{RA[k]} offset:{qb * 16384 + k * 1024}" for k in range(4)]
    def St(qb): return [f"buffer_store_dwordx4 v[{Sb(k, qb)}:{Sb(k, qb) + 3}], v{OS}, s[{SO}:{SO+3}], s{SQB + qb} offen offset:{k * 1024}{cfg.opol}" for k in range(4)]
    o = ones(0)
    pre = need(0) + need(1) + need(2)
    emit(o[0])
    for x in pre[:2]: A(x)
    emit(o[1])
    for x in pre[2:]: A(x)
    stores = []; E, C = [], []
    for q in (1, 2, 3):
        e, c = sm1(q); E += e; C += c
    onesq = 1; lq = []
    WL = 2 + cfg.deep
    pend_cvt = []
    for n in range(31 + WL):
        qb, db = n // 8, n % 8
        m = pv(n) if n < 32 else [None] * 4
        if n < 32: assert qb < onesq, "softmax of this q block not finished"
        nd = need(db + 3) if qb == 0 and db + 3 < 8 else []
        def M(k):
            if m[k]: emit(m[k])
        def X(cnt):
            for _ in range(cnt):
                if E: A(E.pop(0))
        plain = (not E) and n < 32 and n > 0
        rd, rest = body(n - 1, plain) if 0 < n <= 32 else ([], [])
        if cfg.ooff and cfg.fallback and 0 < n <= 32 and (n - 1) % 8 < 2:
            x = XT(n - 1); q_ = (n - 1) // 8; r_ = rl(cfg, q_, 0)
            if (n - 1) % 8 == 0:
                rest += [f"v_max3_f32 v{r_ + 2}, |v{x}|, |v{x + 1}|, |v{x + 2}|", f"v_max_f32_e64 v{r_ + 2}, v{r_ + 2}, |v{x + 3}|"]
            else:
                rest += [f"v_max3_f32 v{r_ + 2}, v{r_ + 2}, |v{x}|, |v{x + 1}|", f"v_max3_f32 v{r_ + 2}, v{r_ + 2}, |v{x + 2}|, |v{x + 3}|",
                         f"v_fma_f32 v{r_ + 2}, v{r_ + 2}, s{S256}, v{r_ + 1}"]
        if cfg.deep:
            mul, cv = rest[:-2], rest[-2:]
            rest = pend_cvt + mul; pend_cvt = cv
        M(0)
        if n >= WL: emit(W(n - WL))
        if n >= WL and (n - WL) % 8 == 7:
            for x in Rd(qb - 1): emit(x)
            stores = St(qb - 1)
        elif stores and db >= cfg.st3 + cfg.deep: emit(stores.pop(0))
        M(1)
        for x in nd[:4]: A(x)
        if plain:
            emit(rd.pop(0)); emit(rd.pop(0))
        X(1)
        M(2)
        for x in nd[4:]: A(x)
        if plain:
            emit(rd.pop(0)); emit(rd.pop(0))
        X(1)
        M(3)
        if cfg.fallback and n == 27: A("ds_write_b32 v3, v1"); flagw = st.ins[-1]
        if cfg.fallback and n == 29:
            if flagw in st.lgkm: A(f"s_waitcnt lgkmcnt({min(14, len(st.lgkm) - 1 - st.lgkm.index(flagw))})")
            A("s_barrier")
            A(f"ds_read_b128 v[{KA}:{KA + 3}], v2")
        if n == 0:
            X(cfg.ne)
            lq = lpre(0)
        for x in rd: emit(x)
        while C and not any(parse(e).wr & parse(C[0]).rd for e in E): A(C.pop(0))
        for x in lq: emit(x)
        lq = []
        if cfg.fallback and n == 26:
            rr = [rl(cfg, q, 0) for q in range(4)]
            A(f"s_mov_b32 s36, {f32bits(2.0 ** (-40 - cfg.boff)):#x}")
            A(f"v_min_f32 v3, v{rr[0]}, v{rr[1]}")
            A(f"s_lshl_b32 s38, s{SW}, 2")
            A(f"v_min3_f32 v3, v3, v{rr[2]}, v{rr[3]}")
            A(f"s_add_u32 s38, s38, {FLAGS}")
            A("v_cmp_nle_f32 vcc, s36, v3")
            A(f"v_mov_b32 v2, {FLAGS}")
            A("v_mov_b32 v3, s38")
        if onesq < 4 and len(C) <= 8 * (3 - onesq):
            o = ones(onesq)
            pkk = [x for x in rest if x.startswith("v_pk_")]; oth = [x for x in rest if not x.startswith("v_pk_")]
            for x in pkk + oth[:-2]: emit(x)
            emit(o[0]); emit(oth[-2]); emit(o[1]); emit(oth[-1])
            lq = lpre(onesq); onesq += 1
        else:
            for x in rest: emit(x)
        if cfg.fallback and n == 26:
            if cfg.ooff:
                rr = [rl(cfg, q, 0) + 2 for q in range(4)]
                A(f"v_min_f32 v1, v{rr[0]}, v{rr[1]}")
                A(f"v_min3_f32 v1, v1, v{rr[2]}, v{rr[3]}")
                A("v_cmp_nle_f32 s[52:53], 0, v1")
                A("s_or_b64 vcc, vcc, s[52:53]")
            else: A("s_cmp_lg_u64 vcc, 0")
            A("s_cselect_b32 s37, 1, 0")
            A("v_mov_b32 v1, s37")
        if cfg.fallback and n == 31:
            emit(f"v_or_b32 v{KA}, v{KA}, v{KA + 1}")
            emit(f"v_or3_b32 v{KA}, v{KA}, v{KA + 2}, v{KA + 3}")
        if cfg.fallback and n == 32: A(f"v_readfirstlane_b32 s37, v{KA}")
        if n in (8, 16, 24): stamp(st, cfg, f"b{n}")
    assert not stores and not D0 and not D1 and not pend_cvt
    emit(W(31))
    for x in Rd(3): emit(x)
    for x in St(3): emit(x)

def finish(st, cfg, T):
    A = st.add
    stamp(st, cfg, "stored")
    if cfg.twice:
        A("s_sub_u32 s35, s35, 1")
        A("s_cmp_lg_u32 s35, 0")
        A("s_cbranch_scc1 L_twice")
    if cfg.fallback and cfg.early:
        A(f"s_cmp_gt_u32 s37, s{SMODE}")
        A("s_cbranch_scc1 L_fallback")
    elif cfg.fallback:
        A(f"s_cmp_lg_u32 s{SMODE}, 0")
        A("s_cbranch_scc1 L_done")
        A(f"s_mov_b32 s36, {f32bits(2.0 ** (-40 - cfg.boff)):#x}")
        rr = sorted(set(rl(cfg, qb, i) for qb in range(4) for i in range(4)))
        A(f"v_min_f32 v3, v{rr[0]}, v{rr[1]}")
        for i in range(2, len(rr), 2): A(f"v_min3_f32 v3, v3, v{rr[i]}, v{rr[i + 1]}")
        A("v_cmp_nle_f32 vcc, s36, v3")
        A("s_cmp_lg_u64 vcc, 0")
        A("s_cselect_b32 s37, 1, 0")
        A("v_mov_b32 v1, s37")
        A(f"s_lshl_b32 s38, s{SW}, 2")
        A(f"s_add_u32 s38, s38, {FLAGS}")
        A("v_mov_b32 v3, s38")
        A("ds_write_b32 v3, v1")
        A("s_waitcnt lgkmcnt(0)")
        A("s_barrier")
        A(f"v_mov_b32 v3, {FLAGS}")
        A("ds_read_b128 v[4:7], v3")
        A("s_waitcnt lgkmcnt(0)")
        A("v_or_b32 v4, v4, v5")
        A("v_or3_b32 v4, v4, v6, v7")
        A("v_readfirstlane_b32 s37, v4")
        A("s_cmp_lg_u32 s37, 0")
        A("s_cbranch_scc1 L_fallback")
        A("L_done:")
    if cfg.stamps:
        A("s_waitcnt vmcnt(0)")
        stamp(st, cfg, "drained")
        if cfg.spin:
            n1_, n2_, K_ = cfg.spin.split(",")
            nm = st.stampnames
            A(f"s_sub_u32 s36, s{65 + 2 * nm.index(n2_)}, s{65 + 2 * nm.index(n1_)}")
            A(f"s_mul_i32 s36, s36, {K_}")
            A("s_min_u32 s36, s36, 50000")
            A("L_spin:")
            A("s_memrealtime s[62:63]")
            A("s_waitcnt lgkmcnt(0)")
            A(f"s_sub_u32 s37, s62, s{65 + 2 * nm.index('drained')}")
            A("s_cmp_lt_u32 s37, s36")
            A("s_cbranch_scc1 L_spin")
            A("s_endpgm")
        if cfg.dbg:
            nm = st.stampnames
            def sr(n, w): return 64 + 2 * nm.index(n) + w
            A("s_mov_b32 s8, s56"); A("s_mov_b32 s9, s57"); A("s_mov_b32 s10, 0x100"); A("s_mov_b32 s11, 0x20000")
            A(f"s_not_b32 s36, s{sr('start', 1)}")
            A(f"s_mov_b32 s37, s{sr('drained', 1)}")
            A(f"s_sub_u32 s38, s{sr('loopend', 0)}, s{sr('mainstart', 0)}")
            A(f"s_sub_u32 s39, s{sr('loopend', 1)}, s{sr('mainstart', 1)}")
            A(f"s_not_b32 s40, s39")
            A(f"s_mov_b32 s41, s{sr('mainstart', 1)}")
            A(f"s_mov_b32 s42, s{sr('loopend', 1)}")
            A("s_mov_b64 exec, 1")
            A("v_mov_b32 v1, 0")
            for k in range(7):
                A(f"v_mov_b32 v4, s{36 + k}")
                st.ins.append(I(f"buffer_atomic_umax v4, v1, s[8:11], 0 offen offset:{4 * k}", "ctl"))
                A("s_waitcnt vmcnt(0)")
            A("s_endpgm")
        A("s_mov_b32 s8, s56"); A("s_mov_b32 s9, s57"); A("s_mov_b32 s10, 0x100000"); A("s_mov_b32 s11, 0x20000")
        A("s_lshl_b32 s3, s2, 2"); A(f"s_add_u32 s3, s3, s{SW}"); A("s_lshl_b32 s3, s3, 7")
        A("v_mov_b32 v1, s3")
        for k in range((len(st.stampnames) + 1) // 2):
            for i in range(4): A(f"v_mov_b32 v{4 + i}, s{64 + 4 * k + i}")
            A(f"buffer_store_dwordx4 v[4:7], v1, s[8:11], 0 offen offset:{16 * k}")
            A("s_nop 1")
    if cfg.itstamp:
        A("s_lshl_b32 s3, s3, 1")
        A("s_add_u32 s3, s3, 0x40000")
        A("v_and_b32 v1, 63, v0")
        A("v_lshl_add_u32 v1, v1, 2, s3")
        A("buffer_store_dword v188, v1, s[8:11], 0 offen")
    A("L_end:")
    A("s_endpgm")
    A("L_codeend:")

def fallback(cfg, T):
    st = Stream(); A = st.add
    A("L_fallback:")
    A("s_waitcnt vmcnt(0) lgkmcnt(0)")
    A(f"s_mov_b32 s{SMODE}, 1")
    A("v_and_b32 v2, 63, v0")
    A("v_and_b32 v3, 15, v2")
    A("v_lshrrev_b32 v4, 4, v2")
    A("v_lshrrev_b32 v5, 2, v3")
    A("v_lshlrev_b32 v5, 12, v5")
    A("v_and_b32 v6, 3, v3")
    A("v_lshl_add_u32 v5, v6, 8, v5")
    for s in range(4):
        A(f"v_add_u32 v6, {4 * s}, v4")
        A("v_xor_b32 v6, v6, v3")
        A(f"v_lshl_add_u32 v{KA + s}, v6, 4, v5")
    A("v_lshrrev_b32 v5, 2, v3")
    A("v_and_b32 v6, 1, v4")
    A("v_lshl_add_u32 v6, v6, 2, v5")
    A("v_lshl_add_u32 v5, v4, 4, v5")
    A("v_lshlrev_b32 v5, 8, v5")
    A("v_and_b32 v7, 3, v3")
    A("v_lshl_add_u32 v5, v7, 3, v5")
    A(f"v_add_u32 v5, {VBASE}, v5")
    for db in range(8):
        A(f"v_xor_b32 v7, {db}, v6")
        A(f"v_lshl_add_u32 v{VA + db}, v7, 5, v5")
    if cfg.pkt == 3:
        A("v_lshlrev_b32 v5, 8, v3")
        A("v_lshl_add_u32 v5, v4, 4, v5")
        for qb in range(4):
            for s in range(4):
                A(f"buffer_load_dwordx4 {R('v', Qf(qb, s), 4)}, v5, s[{SQ}:{SQ+3}], s{SQB + qb} offen offset:{64 * s}")
        A("s_waitcnt vmcnt(0)")
        for x in range(Q0, Q0 + 64):
            A(f"v_lshlrev_b32 v6, 16, v{x}")
            A(f"v_and_b32 v7, s{SC - 1}, v{x}")
            A(f"v_pk_mul_f32 v[6:7], v[6:7], s[{SC}:{SC + 1}]")
            A(f"v_cvt_pk_bf16_f32 v{x}, v6, v7")
    for qb in range(4): A(f"v_mov_b32 v{8 + qb}, 0xff800000")
    A(f"s_mov_b32 s{SOFFK}, s{SW4K}")
    A(f"s_mov_b32 s{SCNT}, {NT}")
    A("L_fb1:")
    A("s_barrier")
    A(f"s_mov_b32 m0, s{SW4K}")
    for j in range(4): A(dmak_text(cfg, j))
    A(f"s_addk_i32 s{SOFFK}, 0x4000")
    A("s_waitcnt vmcnt(0)")
    A("s_barrier")
    for kb in range(4):
        for s in range(4):
            A(f"ds_read_b128 {R('a', K0f(kb, s), 4)}, v{KA + s} offset:{kb * 1024}")
    A("s_waitcnt lgkmcnt(0)")
    for qb in range(4):
        for kb in range(4):
            for s in range(4):
                d = R("v", Sb(kb, qb), 4)
                A(f"{MF} {d}, {R('a', K0f(kb, s), 4)}, {R('v', Qf(qb, s), 4)}, {'0' if s == 0 else d}")
    A("s_nop 7")
    for qb in range(4):
        x = [Sb(kb, qb) + r for kb in range(4) for r in range(4)]
        for i in range(0, 16, 2): A(f"v_max3_f32 v{8 + qb}, v{8 + qb}, v{x[i]}, v{x[i + 1]}")
    A(f"s_sub_u32 s{SCNT}, s{SCNT}, 1")
    A(f"s_cmp_lg_u32 s{SCNT}, 0")
    A("s_cbranch_scc1 L_fb1")
    for qb in range(4):
        xlane(st, "v_max_f32", 8 + qb, 5)
        for i in range(4): A(f"v_sub_f32 v{NEGM + 4 * qb + i}, 0, v{8 + qb}")
    init_acc(st, cfg, True)
    A(f"s_mov_b32 s{SOFFK}, s{SW4K}")
    A(f"s_mov_b32 s{SOFFV}, s{SW4K}")
    A(f"s_mov_b32 s{SCNT}, {cfg.trips}")
    A("s_barrier")
    for w, t in (("K", 0), ("K", 1), ("V", 0), ("K", 2), ("V", 1), ("K", 3))[:cfg.kdepth + 2]: dma_tile(st, cfg, w, t)
    A("s_waitcnt vmcnt(0)")
    A("s_barrier")
    for kb in range(4):
        for s in range(4):
            A(f"ds_read_b128 {R('a', K0f(kb, s), 4)}, v{KA + s} offset:{kb * 1024}")
    A("s_waitcnt lgkmcnt(0)")
    for qb in range(4):
        for kb in range(4):
            for s in range(4):
                d = R("v", Sb(kb, qb), 4)
                c = R("v", NEGM + 4 * qb, 4) if s == 0 else d
                A(f"{MF} {d}, {R('a', K0f(kb, s), 4)}, {R('v', Qf(qb, s), 4)}, {c}")
    A("s_nop 7")
    for qb in range(4): softmax0(st, cfg, T, qb)
    A("s_barrier")
    for s in range(4): A(kr_text(1, 0, s))
    A("s_waitcnt lgkmcnt(0)")
    A("s_nop 7")
    A("s_branch L_entry")
    return st

def flat(cfg, T, forced):
    st = Stream(); rec = {}; marks = {}
    prologue(st, cfg, T)
    NL = cfg.NL
    for t in range(cfg.head, NL):
        marks[t] = len(st.ins)
        emit_iter(st, cfg, T, t, forced, rec)
    marks[NL] = len(st.ins)
    {3: tail3, 2: tail2}.get(cfg.pkt, tail)(st, cfg, T)
    finish(st, cfg, T)
    return st, rec, marks

def generate(cfg):
    cfg.NL = NT - 2 if cfg.pkt == 3 else NT - 1
    cfg.bpar = 1 if cfg.pkt == 3 else 0
    cfg.trips = 15 if cfg.pkt == 3 else 16
    vers = []
    gbase = list(cfg.gpos)
    for v in range(cfg.wv):
        cfg.gpos = [g + cfg.wstep * v for g in gbase]
        T = build_template(cfg)
        st, rec, marks = flat(cfg, T, {})
        forced = {}; cls = {}
        for (t, g), n in rec.items(): cls.setdefault((t % 2, g), []).append(n)
        for (t, g), n in rec.items():
            x = [y for y in cls[(t % 2, g)] if y is not None]
            forced[(t, g)] = min(x) if x else None
        st, rec, marks = flat(cfg, T, forced)
        its = {t: st.text(marks[t], marks[t + 1]) for t in range(cfg.head, cfg.NL)}
        for t in range(2 + cfg.head, cfg.NL): assert its[t] == its[t - 2], f"loop not periodic at {t}"
        its[0] = its[2]
        nl = [x for x in st.nops_inserted if marks[1] <= x[0] < marks[3]]
        sys.stderr.write(f"G={T.G} loop body instrs={marks[3]-marks[1]} nops in loop: {nl}; total auto nops {len(st.nops_inserted)}\n")
        vers.append((its, st.text(0, marks[cfg.head]), st.text(marks[cfg.NL]), sorted(T.wrapped)))
    cfg.gpos = gbase
    for x in vers[1:]: assert x[1:] == vers[0][1:], "versions differ outside the loop"
    out = []
    out.append(open("standalone__gqa_softmax__prompt.s.ref").read().split("; Override")[0].rstrip())
    if cfg.stamps: out.append("; STAMPS " + " ".join(st.stampnames))
    out.append(f"; @launch grid=(256,1,1) block=(256,1,1) lds={cfg.lds}")
    out.append(DOC)
    out.append('.amdgcn_target "amdgcn-amd-amdhsa--gfx950"\n.text')
    out.append(f".globl {KNAME}\n.p2align 8\n.type {KNAME},@function\n{KNAME}:")
    out.append(st.text(0, marks[cfg.head]))
    if cfg.wv == 1:
        out.append(".p2align 6")
        out.append("L_loop:")
        if cfg.bpar == 0: out.append(its[1])
        out.append("L_entry:")
        out.append(its[0])
        if cfg.bpar == 1: out.append("L_odd:\n" + its[1])
    else:
        assert cfg.bpar == 1 and not cfg.head and out[-1].rstrip().endswith("s_branch L_entry")
        out[-1] = out[-1].rstrip()[:-len("s_branch L_entry")].rstrip()
        out.append("L_entry:")
        for v in range(cfg.wv - 1):
            out.append(f"  s_cmp_eq_u32 s{SVER}, {v}\n  s_cbranch_scc1 L_loop{v}")
        out.append(f"  s_branch L_loop{cfg.wv - 1}")
        for v in range(cfg.wv):
            out.append(f".p2align 6\nL_loop{v}:")
            out.append((vers[v][0][0] + "\n" + vers[v][0][1]).replace("L_loop", f"L_loop{v}"))
            if v < cfg.wv - 1: out.append("  s_branch L_tail")
        out.append("L_tail:")
    out.append(st.text(marks[cfg.NL]))
    if cfg.fallback: out.append(fallback(cfg, T).text())
    out.append(f'''.section .rodata,"a"
.p2align 6
.amdhsa_kernel {KNAME}
  .amdhsa_next_free_vgpr 512
  .amdhsa_next_free_sgpr 102
  .amdhsa_accum_offset 256
  .amdhsa_group_segment_fixed_size 0
  .amdhsa_kernarg_size 48
  .amdhsa_user_sgpr_count 2
  .amdhsa_user_sgpr_kernarg_segment_ptr 1
  .amdhsa_system_sgpr_workgroup_id_x 1
.end_amdhsa_kernel''')
    return "\n".join(out) + "\n", T

if __name__ == "__main__":
    ap = argparse.ArgumentParser()
    ap.add_argument("-o", default="/dev/stdout")
    ap.add_argument("--ones", default="0,1,2,3")
    for n, d in (("ap", 0), ("bous", 1), ("lag", 8), ("stamps", 0), ("vstart", 9), ("vend", 200), ("show", 0), ("nobar", 0),
                 ("nodma", 0), ("pf", 0), ("qfirst", 2), ("hid", 8), ("two", 0), ("twobit", 3), ("dephase", 0), ("wv", 1), ("wstep", 2), ("wsel", 0), ("oiw", 2), ("sperm", 0), ("ooff", 0), ("perm", 0), ("lite", 0), ("b0first", 0), ("tries", 60), ("head", 0), ("hpk", 1), ("h0", 100), ("mbias", 0), ("otouch", 0), ("wfix", 0), ("now", 0), ("deep", 0), ("ne", 2), ("st3", 3), ("early", 0), ("tlag", 2), ("st0", 1), ("pat", 0), ("pkt", 0), ("pvb", 1), ("twice", 0), ("kdepth", 4), ("wgrp", 4), ("mxstart", 7), ("e2first", 17), ("smf", 0), ("zrow", 0), ("tailgap", 12), ("gexcl", 0), ("grp", 1), ("nostore", 0), ("dbg", 0), ("itstamp", 0), ("probe", 0), ("qmap", 0), ("stdelay", 20), ("ststep", 8), ("fallback", 1)):
        ap.add_argument("--" + n, type=int, default=d)
    ap.add_argument("--gpos", default="11,27,43,57,71,85,99,109")
    ap.add_argument("--only", default="")
    ap.add_argument("--boff", type=float, default=0)
    ap.add_argument("--apl", type=int, default=0)
    ap.add_argument("--hord", default="KV23")
    ap.add_argument("--rel", default="300,700,1300,2600,3200,4200,0,600,2200,3400")
    ap.add_argument("--hlate", default="23")
    ap.add_argument("--ha", default="")
    ap.add_argument("--hb", default="")
    ap.add_argument("--skip", default="")
    ap.add_argument("--spin", default="")
    ap.add_argument("--flip", default="")
    ap.add_argument("--extra", default="")
    ap.add_argument("--empty", default="")
    ap.add_argument("--sched", default="0,1,1,3,0")
    ap.add_argument("--pol", default="")
    ap.add_argument("--qpol", default="")
    ap.add_argument("--opol", default="")
    a = ap.parse_args()
    cfg = Cfg()
    cfg.__dict__.update(vars(a))
    cfg.ones = [int(x) for x in a.ones.split(",") if x != ""]
    cfg.gpos = [int(x) for x in a.gpos.split(",")]
    cfg.extra = [int(x) for x in a.extra.split(",") if x != ""]
    cfg.rel = [int(x) for x in a.rel.split(",")]
    cfg.flip = [int(x) for x in a.flip.split(",") if x != ""]
    cfg.empty = [int(x) for x in a.empty.split(",") if x != ""]
    cfg.sched = [int(x) for x in a.sched.split(",")]
    for n in ("pol", "qpol", "opol"):
        v = getattr(cfg, n).replace("+", " ")
        setattr(cfg, n, " " + v if v else "")
    PERM[0] = cfg.perm
    cfg.lds = 131072 + 64
    for cfg.enop in (-1, 0, 1, 2, 3, 5, 7):
        try:
            txt, T = generate(cfg); break
        except AssertionError as e:
            if "periodic" not in str(e): raise
    open(a.o, "w").write(txt)
    if a.show:
        for g in range(T.G):
            sys.stderr.write(f"{g:3d} {T.typ[g]} {T.M[g]} | {T.sca[g]} | {T.mem[g]} | {T.val[g]}\n")
```

```python
import sys, argparse, math, struct, re
from asmlib import *
from lsched import schedule

KNAME = "standalone__gqa_softmax__prompt_kernel"
NT = 32
MF = "v_mfma_f32_16x16x32_bf16"

S0, P0, NEGM, LS, KA, VA, DK, DV, OW, OR_, OS, Q0 = 16, 80, 144, 160, 168, 172, 180, 181, 182, 183, 184, 192
O0, VF, KF, L0, ONES = 0, 128, 192, 224, 240
def Sb(kb, qb): return S0 + (kb * 4 + qb) * 4
def Pf(buf, qb, sl): return P0 + buf * 32 + (qb * 2 + sl) * 4
def Qf(qb, s): return Q0 + (qb * 4 + s) * 4
def Ob(db, qb): return O0 + (db * 4 + qb) * 4
def Vf(db, sl): return VF + (db * 2 + sl) * 4
def Kf(buf, s): return KF + (buf * 4 + s) * 4
def K0f(kb, s): return VF + (kb * 4 + s) * 4
SQ, SK, SV, SO = 12, 16, 20, 24
SW, SOFFK, SOFFV, SCNT, SMODE, SX8000, SW4K = 28, 29, 30, 31, 32, 33, 34
SQB = 44
SC = 40
VBASE = 65536
FLAGS = 131072
QSTAGE = [3 * 16384, VBASE + 16384, VBASE + 2 * 16384, VBASE + 3 * 16384]
QBIAS = 4096

SIDX = 189
PERM = [0]
SNC = 43
SVER = 48
S256 = 35
DOC = """;
;"""
def f32bits(x): return struct.unpack("<I", struct.pack("<f", x))[0]
class Cfg: pass

def build_template(cfg):
    ones = cfg.ones
    n1 = (1 if cfg.smf else 2) * len(ones)
    G = 128 + n1
    pv0 = 64 + n1
    M = []
    for kb in range(4):
        for qb in range(4):
            order = range(4) if (qb % 2 == 0 or not cfg.bous) else (range(3, -1, -1) if cfg.bous == 1 else (2, 3, 0, 1))
            for n, s in enumerate(order):
                M.append(("QK", kb, qb, s, n == 0))
    for qb in ones:
        for sl in range(1 if cfg.smf else 2):
            M.append(("ONE", qb, sl))
    for db in range(8):
        for qb in range(4):
            order = (0, 1) if (qb % 2 == 0 or not cfg.pvb) else (1, 0)
            for sl in order:
                M.append(("PV", db, qb, sl))
    assert len(M) == G
    if cfg.pat:
        F = set(range(64, pv0)) | {G - 18, G - 1} | set(cfg.empty)
        typ = []; nxt = "E"
        for g in range(G):
            if g in F: typ.append("D"); nxt = "E"
            else:
                typ.append(nxt); nxt = "D" if nxt == "E" else "E"
        ne = typ.count("E")
        cand = [g for g in cfg.flip]
        while ne < 64:
            g = cand.pop(0); assert typ[g] == "D" and g not in F; typ[g] = "E"; ne += 1
        while ne > 64:
            g = cand.pop(0); assert typ[g] == "E"; typ[g] = "D"; ne -= 1
    else:
        extra = cfg.extra if cfg.extra else list(range(112, 112 + n1))
        assert len(extra) == n1
        typ = []; nxt = "E"
        for g in range(G):
            if g in extra: typ.append("D")
            else:
                typ.append(nxt); nxt = "D" if nxt == "E" else "E"
    Eg = [g for g in range(G) if typ[g] == "E"]
    assert len(Eg) == 64 and typ[G - 1] == "D"
    mem = [None] * G
    for kb in range(4):
        base = 16 * (kb - 1)
        toff = 1
        if base < 0: base += G; toff = 2
        ds = [g for g in range(base + 1, base + 16) if typ[g] == "D" and g not in cfg.gpos and g not in cfg.empty][:4]
        assert ds[-1] <= base + 10
        for s in range(4):
            mem[ds[s]] = ("KR", toff, kb, s)
    gpos = cfg.gpos
    for n, g in enumerate(gpos):
        assert typ[g] == "D" and mem[g] is None, g
        mem[g] = ("DMAV", 2, n) if n < 4 else ("DMAK", cfg.kdepth, n - 4)
    gbar = G - 18
    free = [g for g in range(cfg.vstart, min(cfg.vend, G - 19)) if typ[g] == "D" and mem[g] is None and g not in cfg.empty]
    vreads = [(db, sl, u) for db in range(8) for sl in range(2) for u in range(2)]
    assert len(free) >= 32, len(free)
    vpos = {}
    for n, v in enumerate(vreads):
        g = free[(n * len(free)) // 32]
        assert g <= pv0 + 8 * v[0] - 6, (g, v)
        mem[g] = ("VR", 0) + v
        vpos.setdefault(v[0], []).append(g)
    cap = [0] * G
    for g in range(G):
        if typ[g] == "D": cap[g] = 1 if mem[g] else 2
    cap[G - 1] = 0
    if cfg.pat:
        for g in range(64, pv0): cap[g] -= 1
    for g in cfg.empty: cap[g] = 0
    if cfg.gexcl:
        for g in gpos: cap[g] = 0
    need = 32 + 16 * (4 - len(ones)) + 8
    if typ[gbar] == "D" and sum(cap) - cap[gbar] >= need: cap[gbar] = 0
    short = need - sum(cap)
    if short > 0:
        cand = [g for g in range(G) if typ[g] == "E"]
        for n in range(short):
            cap[cand[(n * len(cand)) // short]] += 1
    val = [[] for _ in range(G)]
    e0 = next(k for k, g in enumerate(Eg) if g >= cfg.lag)
    plain = []
    for k in range(64):
        idx = e0 + k
        g = Eg[idx % 64]; X = g + G * (idx // 64)
        b, r = k // 4, k % 4
        kb, qb = b // 4, b % 4
        val[g].append(("EXP", 1 - idx // 64, kb, qb, r))
        if qb not in ones: plain.append((X + 1, ("ADD", kb, qb, r)))
        if r % 2 == 1: plain.append((X + 1, ("CVT", kb, qb, r // 2)))
    used = [0] * G
    last = 0
    for ready, op in plain:
        X = max(ready, last)
        while used[X % G] >= cap[X % G]: X += 1
        used[X % G] += 1
        last = X
        kb, qb = op[1], op[2]
        assert X < G + 4 * (kb * 4 + qb), ("S overwritten", op, X)
        assert X < G + 60, ("P late", op, X)
        val[X % G].append((op[0], 1 - X // G) + op[1:])
    xk = 0
    for db in range(8):
        X = max(vpos[db]) + 1
        if xk < 4: X = max(X, 40)
        while used[X] >= cap[X]: X += 1
        assert X < G
        used[X] += 1
        s = None
        if xk < 4 and 40 <= X < G - 16: s = xk; xk += 1
        val[X].append(("XOR", 0, db, s))
    assert xk == 4
    sca = [None] * G
    for kb in range(1, 4): sca[16 * kb - 1] = ("WAITL", 16 * kb)
    sca[G - 2] = ("WAITL", G)
    for db in range(8): sca[pv0 + 8 * db - 1] = ("WAITL", pv0 + 8 * db)
    def put(g, item, step=-1):
        while sca[g % G] is not None: g += step
        sca[g % G] = item
        return g
    assert sca[gbar] is None and sca[gbar - 1] is None
    sca[gbar - 1] = ("WAITV",); sca[gbar] = ("BAR",)
    sca[G - 1] = ("BRANCH",)
    g1 = put(G - 3, ("CMP",))
    put(g1 - 1, ("CNT",))
    a = put(gpos[0] - 1, ("M0V",)); assert a >= 0
    a = put(gpos[4] - 1, ("M0K",)); assert a >= gpos[3]
    put(gpos[3] + 1, ("INCV",), +1)
    a = put(gpos[7] + 1, ("INCK",), +1); assert a < g1
    T = Cfg()
    T.G, T.pv0, T.M, T.mem, T.val, T.sca, T.typ = G, pv0, M, mem, val, sca, typ
    T.wrapped = [v for g in range(G) for v in val[g] if v[0] in ("EXP", "ADD", "CVT") and v[1] == 0]
    return T

def mfma_text(cfg, m, t):
    if m[0] == "QK":
        _, kb, qb, s, first = m
        d = R("v", Sb(kb, qb), 4)
        c = R("v", NEGM + 4 * qb, 4) if first else d
        return f"{MF} {d}, {R('a', Kf(kb % 2, s), 4)}, {R('v', Qf(qb, s), 4)}, {c}"
    if m[0] == "ONE":
        _, qb, sl = m
        d = R("a", L0 + 4 * qb, 4)
        if cfg.smf: return f"v_smfmac_f32_16x16x64_bf16 {d}, {R('a', ONES, 4)}, {R('v', Pf(t % 2, qb, 0), 8)}, v{SIDX}"
        a, b = R("a", ONES, 4), R("v", Pf(t % 2, qb, sl), 4)
        if cfg.ap: a, b = b, a
        return f"{MF} {d}, {a}, {b}, {d}"
    _, db, qb, sl = m
    d = R("a", Ob(db, qb), 4)
    a, b = R("a", Vf(db, sl), 4), R("v", Pf(t % 2, qb, sl), 4)
    if cfg.ap or cfg.apl: a, b = b, a
    return f"{MF} {d}, {a}, {b}, {d}"

def kr_text(tt, kb, s): return f"ds_read_b128 {R('a', Kf(kb % 2, s), 4)}, v{KA + s} offset:{(tt % 2) * 16384 + kb * 1024}"
def vr_text(tt, db, sl, u): return f"ds_read_b64_tr_b16 {R('a', Vf(db, sl) + 2 * u, 2)}, v{VA + db} offset:{(tt % 2) * 16384 + (8 * sl + 4 * u) * 256}"
def dmak_text(cfg, j): return f"buffer_load_dwordx4 v{DK}, s[{SK}:{SK+3}], s{SOFFK} offen offset:{1024 * j}{cfg.pol} lds"
def dmav_text(cfg, j): return f"buffer_load_dwordx4 v{DV}, s[{SV}:{SV+3}], s{SOFFV} offen offset:{1024 * j}{cfg.pol} lds"
def sm_text(k, tt, kb, qb, r):
    x = Sb(kb, qb)
    if k == "EXP": return f"v_exp_f32 v{x + r}, v{x + r}"
    if k == "ADD":
        a = LS + 2 * qb + (r % 2)
        return f"v_add_f32 v{a}, v{a}, v{x + r}"
    d = Pf(tt % 2, qb, kb // 2) + (kb % 2) * 2 + r
    if PERM[0]: return f"v_perm_b32 v{d}, v{x + 2 * r + 1}, v{x + 2 * r}, s42"
    return f"v_cvt_pk_bf16_f32 v{d}, v{x + 2 * r}, v{x + 2 * r + 1}"

def emit_iter(st, cfg, T, t, forced, record):
    G = T.G
    for g in range(G):
        st.add(mfma_text(cfg, T.M[g], t))
        sc = T.sca[g]
        if cfg.itstamp and g == G - 8: st.add("s_memtime s[60:61]" if cfg.itstamp == 1 else "s_memrealtime s[60:61]")
        if cfg.itstamp and g == G - 1:
            st.add("v_writelane_b32 v188, s60, m0")
        if cfg.itstamp and g == G - 6: st.add("s_mov_b32 m0, s35")
        if cfg.itstamp and g == 2: st.add("s_add_u32 s35, s35, 1")
        if sc:
            k = sc[0]
            if k == "WAITL":
                tt, gg = (t, sc[1]) if sc[1] < G else (t + 1, 0)
                rs = set()
                n = 16 if T.M[gg][0] == "QK" else 8
                for x in range(gg, gg + n): rs |= parse(mfma_text(cfg, T.M[x], tt)).rd
                n = st.lgkm_needed(rs)
                record[(t, g)] = n
                if (t, g) in forced: n = forced[(t, g)]
                if n is not None: st.add(f"s_waitcnt lgkmcnt({n})")
            elif k == "WAITV":
                p = t + 2
                n = st.vm_needed(lambda o: o.tag in (("K", p), ("V", p - 1)))
                record[(t, g)] = n
                if (t, g) in forced: n = forced[(t, g)]
                if n is not None: st.add(f"s_waitcnt vmcnt({n})")
            elif k == "BAR":
                if not cfg.nobar: st.add("s_barrier")
            elif k == "M0V": st.add(f"s_pack_ll_b32_b16 m0, s{SOFFV}, 1")
            elif k == "M0K": st.add(f"s_pack_ll_b32_b16 m0, s{SOFFK}, 0")
            elif k == "INCV": st.add(f"s_addk_i32 s{SOFFV}, 0x4000")
            elif k == "INCK": st.add(f"s_addk_i32 s{SOFFK}, 0x4000")
            elif k == "CNT":
                if t % 2 == cfg.bpar: st.add(f"s_sub_u32 s{SCNT}, s{SCNT}, 1")
            elif k == "CMP":
                if t % 2 == cfg.bpar: st.add(f"s_cmp_lg_u32 s{SCNT}, 0")
            elif k == "BRANCH":
                if t % 2 == cfg.bpar: st.add("s_cbranch_scc1 L_loop")
        me = T.mem[g]
        if me:
            k, tt = me[0], t + me[1]
            if k in cfg.skip.split(","): pass
            elif k == "KR": st.add(kr_text(tt, me[2], me[3]))
            elif k == "VR": st.add(vr_text(tt, me[2], me[3], me[4]))
            elif cfg.nodma: pass
            elif k == "DMAK": st.add(dmak_text(cfg, me[2]), tag=("K", tt))
            elif k == "DMAV": st.add(dmav_text(cfg, me[2]), tag=("V", tt))
        for v in T.val[g]:
            if v[0] == "XOR":
                if t % 2 == 1: st.add(f"v_xor_b32 v{VA + v[2]}, s{SX8000}, v{VA + v[2]}")
                elif v[3] is not None: st.add(f"v_xor_b32 v{KA + v[3]}, s{SX8000}, v{KA + v[3]}")
            elif v[0] in cfg.skip.split(","): pass
            else:
                st.add(sm_text(v[0], t + v[1], v[2], v[3], v[4]))

def stamp(st, cfg, name):
    if not cfg.stamps: return
    if cfg.only and name not in cfg.only.split(","): return
    if not hasattr(st, "stampnames"): st.stampnames = []
    idx = len(st.stampnames); st.stampnames.append(str(name)); assert idx < 14
    st.add("s_waitcnt lgkmcnt(0)")
    st.add(f"s_memtime s[60:61]")
    st.add(f"s_memrealtime s[62:63]")
    st.add("s_waitcnt lgkmcnt(0)")
    st.add(f"s_mov_b32 s{64 + 2 * idx}, s60")
    st.add(f"s_mov_b32 s{65 + 2 * idx}, s62")

def dma_tile(st, cfg, which, t):
    A = st.add
    if which == "K":
        A(f"s_pack_ll_b32_b16 m0, s{SOFFK}, 0")
        for j in range(4): A(dmak_text(cfg, j), tag=("K", t))
        A(f"s_addk_i32 s{SOFFK}, 0x4000")
    else:
        A(f"s_pack_ll_b32_b16 m0, s{SOFFV}, 1")
        for j in range(4): A(dmav_text(cfg, j), tag=("V", t))
        A(f"s_addk_i32 s{SOFFV}, 0x4000")

def waitv(st, *tags):
    n = st.vm_needed(lambda o: o.tag in tags)
    if n is not None: st.add(f"s_waitcnt vmcnt({n})")

def xlane(st, op, x, y):
    for sw in ("v_permlane16_swap_b32", "v_permlane32_swap_b32"):
        st.add(f"v_mov_b32 v{y}, v{x}")
        st.add(f"{sw} v{x}, v{y}")
        st.add(f"{op} v{x}, v{x}, v{y}")

def softmax0(st, cfg, T, qb):
    W = set((v[0],) + tuple(v[2:]) for v in T.wrapped)
    for kb in range(4):
        for r in range(4):
            if ("EXP", kb, qb, r) not in W: st.add(sm_text("EXP", 0, kb, qb, r))
    for kb in range(4):
        for r in range(4):
            if qb not in cfg.ones and ("ADD", kb, qb, r) not in W: st.add(sm_text("ADD", 0, kb, qb, r))
        for r in range(2):
            if ("CVT", kb, qb, r) not in W: st.add(sm_text("CVT", 0, kb, qb, r))

def init_acc(st, cfg, zero=False):
    A = st.add
    if cfg.ooff and zero:
        A(f"s_mov_b32 s{SNC}, 0")
    if cfg.ooff and not zero: pass
    else:
        for i in range(128): A(f"v_accvgpr_write_b32 a{O0 + i}, 0")
    for i in range(16): A(f"v_accvgpr_write_b32 a{L0 + i}, 0")
    if len(cfg.ones) < 4:
        for i in range(8): A(f"v_mov_b32 v{LS + i}, 0")

def prologue(st, cfg, T):
    A = st.add
    A("s_cmp_ge_u32 s2, 0x100")
    A("s_cbranch_scc1 L_end")
    stamp(st, cfg, "start")
    A("s_load_dwordx8 s[4:11], s[0:1], 0")
    if cfg.stamps: A("s_load_dwordx2 s[56:57], s[0:1], %d" % (32 if cfg.dbg else 40))
    A("v_lshrrev_b32 v1, 6, v0")
    A("v_and_b32 v2, 63, v0")
    A(f"v_readfirstlane_b32 s{SW}, v1")
    A("v_and_b32 v3, 15, v2")
    A("v_lshrrev_b32 v4, 4, v2")
    def prefetch(lo, hi, idx):
        A(f"v_min_u32 v186, ({hi}-{lo}-4)/128, {idx}")
        A("v_lshlrev_b32 v186, 7, v186")
        if lo != "L_pc": A(f"v_add_u32 v186, {lo}-L_pc, v186")
        A("v_mov_b32 v187, s37")
        A("v_add_co_u32 v186, vcc, s36, v186")
        A("v_addc_co_u32 v187, vcc, 0, v187, vcc")
        A("global_load_dword v185, v[186:187], off", tag=("PF", 0))
    if cfg.pf:
        A("s_getpc_b64 s[36:37]")
        A("L_pc:")
        if cfg.pf == 1: prefetch("L_pc", "L_codeend", "v0")
        else:
            A("v_lshrrev_b32 v5, 2, v0")
            prefetch("L_pc", "L_entry", "v5")
    A("s_bfe_u32 s50, s2, 0x20001")
    A("s_and_b32 s51, s2, 1")
    A("s_lshl_b32 s51, s51, 5")
    A("s_lshr_b32 s52, s2, 3")
    A("s_or_b32 s51, s51, s52")
    A("s_lshl_b32 s52, s50, 6")
    A("s_add_u32 s51, s51, s52")
    A("s_lshl_b32 s51, s51, 16")
    A("s_lshl_b32 s50, s50, 19")
    A(f"s_lshl_b32 s{SW4K}, s{SW}, 12")
    A(f"s_lshl_b32 s{SQB}, s{SW}, 14")
    if cfg.qmap == 0:
        for i in range(1, 4): A(f"s_add_u32 s{SQB + i}, s{SQB}, {4096 * i}")
    elif cfg.qmap == 1:
        A(f"s_lshr_b32 s53, s2, 3")
        A(f"s_add_u32 s53, s53, s{SW}")
        A(f"s_mov_b32 s54, s{SQB}")
        for i in range(4):
            A(f"s_add_u32 s55, s53, {i}")
            A(f"s_and_b32 s55, s55, 3")
            A(f"s_lshl_b32 s55, s55, 12")
            A(f"s_add_u32 s{SQB + i}, s54, s55")
    elif cfg.qmap == 2:
        for i in range(4): A(f"s_add_u32 s{SQB + i}, s{SW4K}, {16384 * i}")
    elif cfg.qmap == 3:
        A(f"s_lshr_b32 s53, s2, 3")
        for i in range(4):
            A(f"s_add_u32 s55, s53, {i}")
            A(f"s_and_b32 s55, s55, 3")
            A(f"s_lshl_b32 s55, s55, 14")
            A(f"s_add_u32 s{SQB + i}, s{SW4K}, s55")
    A(f"s_mov_b32 s{SOFFK}, s{SW4K}")
    A(f"s_mov_b32 s{SOFFV}, s{SW4K}")
    A(f"s_lshl_b32 s53, s{SW}, 2")
    A("v_add_u32 v5, s53, v4")
    A("v_xor_b32 v5, v5, v3")
    A("v_lshlrev_b32 v6, 8, v4")
    A(f"v_lshl_add_u32 v{DK}, v5, 4, v6")
    for j in range(4):
        A(f"v_add_u32 v5, {4 * j}, v4")
        A("v_xor_b32 v5, v5, v3")
        A(f"v_lshl_add_u32 v{8 + j}, v5, 4, v6")
    A("s_waitcnt lgkmcnt(0)")
    stamp(st, cfg, "kernarg")
    def srd(srd, p, off, n):
        A(f"s_add_u32 s{srd}, s{p}, s{off}")
        A(f"s_addc_u32 s{srd + 1}, s{p + 1}, 0")
        A(f"s_mov_b32 s{srd + 2}, {n}")
        A(f"s_mov_b32 s{srd + 3}, 0x20000")
    if cfg.ooff: A("s_load_dwordx8 s[92:99], s[8:9], s50")
    if cfg.kpos == 0:
        srd(SK, 6, 50, 524288)
        dma_tile(st, cfg, "K", 0)
    srd(SQ, 4, 51, 65536)
    def dmaq(qb):
        A(f"s_add_u32 m0, s{SW4K}, {QSTAGE[qb]}")
        for j in range(4):
            A(f"buffer_load_dwordx4 v{8 + j}, s[{SQ}:{SQ+3}], s{SQB + qb} offen offset:{1024 * j}{cfg.qpol} lds", tag=("Q", qb))
    def part2():
        srd(SV, 8, 50, 524288)
        srd(SO, 10, 51, 65536)
        A(f"s_and_b32 s53, s{SW}, 1")
        A("s_lshl_b32 s53, s53, 2")
        A("v_add_u32 v5, s53, v4")
        A("v_lshlrev_b32 v5, 1, v5")
        A("v_xor_b32 v5, v5, v3")
        A(f"v_lshl_add_u32 v{DV}, v5, 4, v6")
        A("v_lshrrev_b32 v5, 2, v3")
        A("v_lshlrev_b32 v5, 12, v5")
        A("v_and_b32 v6, 3, v3")
        A("v_lshl_add_u32 v5, v6, 8, v5")
        A(f"v_lshl_add_u32 v7, v3, 8, s{SW4K}")
        for s in range(4):
            A(f"v_add_u32 v6, {4 * s}, v4")
            A("v_xor_b32 v6, v6, v3")
            A(f"v_lshl_add_u32 v{KA + s}, v6, 4, v5")
            A(f"v_lshl_add_u32 v{12 + s}, v6, 4, v7")
            A(f"v_add_u32 v{12 + s}, {QSTAGE[0]}, v{12 + s}")
        A("v_lshrrev_b32 v5, 1, v4")
        A("v_xor_b32 v5, v5, v3")
        A("v_lshl_add_u32 v5, v5, 4, v7")
        A("v_and_b32 v6, 1, v4")
        if cfg.wfix:
            A("v_lshrrev_b32 v1, 3, v3")
            A("v_xor_b32 v6, v6, v1")
        A(f"v_lshl_add_u32 v{OW}, v6, 3, v5")
        A("v_xor_b32 v5, v3, v4")
        A("v_lshlrev_b32 v5, 4, v5")
        A("v_lshl_add_u32 v5, v4, 8, v5")
        A(f"v_add_u32 v{OR_}, s{SW4K}, v5")
        if cfg.pkt >= 2:
            for db in range(8): A(f"v_xor_b32 v{WA + db}, {32 * db}, v{OW}")
            for k in (3, 2, 0, 1): A(f"v_xor_b32 v{RA[k]}, {64 * k}, v{OR_}")
        A(f"v_lshlrev_b32 v{OS}, 4, v2")
        if cfg.sperm:
            A("v_and_b32 v5, 3, v2")
            A("v_lshrrev_b32 v6, 2, v2")
            A("v_lshlrev_b32 v6, 4, v6")
            A(f"v_lshl_add_u32 v{OS}, v5, 8, v6")
        A("v_lshrrev_b32 v5, 2, v3")
        A("v_and_b32 v6, 1, v4")
        A("v_lshl_add_u32 v6, v6, 2, v5")
        A("v_lshl_add_u32 v5, v4, 4, v5")
        A("v_lshlrev_b32 v5, 8, v5")
        A("v_and_b32 v7, 3, v3")
        A("v_lshl_add_u32 v5, v7, 3, v5")
        A(f"v_add_u32 v5, {VBASE}, v5")
        for db in range(8):
            A(f"v_xor_b32 v7, {db}, v6")
            A(f"v_lshl_add_u32 v{VA + db}, v7, 5, v5")
        if cfg.ap:
            A("v_lshlrev_b32 v5, 2, v4")
            A("v_sub_u32 v5, v3, v5")
            A("v_mov_b32 v6, 0x3f80")
            A("v_mov_b32 v7, 0x3f800000")
            for h in range(2):
                A(f"v_cmp_eq_u32 vcc, {2 * h}, v5")
                A(f"v_cndmask_b32 v{IDN + h}, 0, v6, vcc")
                A(f"v_cmp_eq_u32 vcc, {2 * h + 1}, v5")
                A(f"v_cndmask_b32 v{IDN + h}, v{IDN + h}, v7, vcc")
        if cfg.head:
            for i in range(16): A(f"v_accvgpr_write_b32 a{L0 + i}, 0")
        else: init_acc(st, cfg)
        A("v_mov_b32 v5, 0x3f803f80")
        if cfg.zrow:
            assert not cfg.ap
            A(f"v_cmp_gt_u32 vcc, {2 if cfg.smf else 1}, v3")
            A("v_cndmask_b32 v5, 0, v5, vcc")
        if cfg.smf:
            assert not cfg.ap
            A("v_and_b32 v6, 1, v3")
            A("v_mov_b32 v7, 0xeeeeeeee")
            A(f"v_mov_b32 v{SIDX}, 0x44444444")
            A("v_cmp_eq_u32 vcc, 1, v6")
            A(f"v_cndmask_b32 v{SIDX}, v{SIDX}, v7, vcc")
        for i in range(4): A(f"v_accvgpr_write_b32 a{ONES + i}, v5")
        c = math.log2(math.e) / math.sqrt(128.0)
        A(f"s_mov_b32 s{SC}, {f32bits(c):#x}")
        A(f"s_mov_b32 s{SC + 1}, s{SC}")
        A(f"s_mov_b32 s{SC - 1}, 0xffff0000")
        A(f"s_mov_b32 s{SCNT}, {cfg.trips}")
        A(f"s_mov_b32 s{SMODE}, 0")
        if cfg.wv == 4: A(f"s_mov_b32 s{SVER}, s{SW}")
        elif cfg.wv == 2: A(f"s_and_b32 s{SVER}, s{SW}, 1" if cfg.wsel else f"s_lshr_b32 s{SVER}, s{SW}, 1")
        if cfg.ooff: A(f"s_mov_b32 s{S256}, 0x44800000")
        if cfg.perm: A("s_mov_b32 s42, 0x07060302")
        if cfg.itstamp: A("s_mov_b32 s35, -1"); A("v_mov_b32 v188, 0")
        A(f"s_mov_b32 s{SX8000}, 0x8000")
    def oinit1():
        A("s_waitcnt lgkmcnt(0)")
        A("s_mov_b32 s52, 0")
        for i in range(8):
            A(f"s_lshl_b32 s53, s{92 + i}, 16")
            A(f"s_and_b32 s53, s53, 0x7f800000")
            A(f"s_and_b32 s54, s{92 + i}, 0x7f800000")
            A("s_max_u32 s52, s52, s53")
            A("s_max_u32 s52, s52, s54")
        A(f"s_add_u32 s52, s52, {(int(cfg.boff) + cfg.ooff) << 23:#x}")
        A("s_min_u32 s52, s52, 0x70000000")
        A("s_or_b32 s52, s52, 0x400000")
        A(f"s_or_b32 s{SNC}, s52, 0x80000000")
    def oinit2():
        A("v_mov_b32 v6, s52")
        for i in range(128): A(f"v_accvgpr_write_b32 a{O0 + i}, v6")
    pend = [("K", 1), ("V", 0), ("K", 2), ("V", 1), ("K", 3)] if cfg.kdepth == 4 else [("K", 1), ("V", 0), ("V", 1), ("K", 2)]
    done_q = [0]
    def later(n):
        for _ in range(n):
            w, t = pend.pop(0)
            assert (w, t) not in (("V", 1), ("K", 3)) or done_q[0] >= 2
            dma_tile(st, cfg, w, t)
    def raw(fn):
        keep = list(st.vm); fn(); st.vm = keep
    if cfg.two:
        na, nb = cfg.two // 10, cfg.two % 10
        for qb in range(nb): dmaq(qb)
        A(f"s_bitcmp1_b32 s2, {cfg.twobit}")
        A("s_cbranch_scc1 L_qlate")
        for qb in range(nb, na): dmaq(qb)
        A("L_qlate:")
        part2()
        if cfg.ooff: oinit1(); oinit2()
        A(f"s_bitcmp1_b32 s2, {cfg.twobit}")
        A("s_cbranch_scc0 L_qdone")
        raw(lambda: [dmaq(qb) for qb in range(nb, na)])
        A("L_qdone:")
        for qb in range(na, 4): dmaq(qb)
    else:
        for qb in range(cfg.qfirst):
            dmaq(qb)
            if cfg.kpos == qb + 1:
                srd(SK, 6, 50, 524288)
                dma_tile(st, cfg, "K", 0)
        stamp(st, cfg, "dmaQa")
        part2()
        stamp(st, cfg, "init")
    if cfg.head:
        for x in cfg.hord:
            if x == "K": dma_tile(st, cfg, "K", 1)
            elif x == "V": dma_tile(st, cfg, "V", 0)
            else: dmaq(int(x))
    elif not cfg.two:
        for qb in range(cfg.qfirst, 4):
            if cfg.ooff and cfg.oiw == qb + 1: oinit1(); oinit2()
            dmaq(qb)
        later(cfg.sched[0])
    if cfg.pf == 2:
        st.vm = [o for o in st.vm]
        for o in st.vm:
            if o.tag == ("PF", 0): o.wr = set()
        prefetch("L_entry", "L_codeend", "v0")
    stamp(st, cfg, "dmaQb")
    if cfg.probe:
        waitv(st, ("K", 0)); stamp(st, cfg, "pK0")
        for qb in range(4):
            waitv(st, ("Q", qb)); stamp(st, cfg, f"pQ{qb}")
    def Rq(qb):
        waitv(st, ("Q", qb))
        stamp(st, cfg, f"Q{qb}landed")
        qoff = QSTAGE[qb] - QSTAGE[0]
        if qb == 3:
            qoff -= 16384
        for s in range(4):
            A(f"ds_read_b128 {R('v', Qf(qb, s), 4)}, v{12 + s} offset:{qoff}")
    def Aq(qb, ss=range(4)):
        for s in ss:
            st.wait_regs(R('v', Qf(qb, s), 4))
            tb = P0 + 32 + 8 * s
            for i in range(4):
                x = Qf(qb, s) + i
                A(f"v_lshlrev_b32 v{tb + 2 * i}, 16, v{x}")
                A(f"v_and_b32 v{tb + 2 * i + 1}, s{SC - 1}, v{x}")
            for i in range(4):
                A(f"v_pk_mul_f32 v[{tb + 2 * i}:{tb + 2 * i + 1}], v[{tb + 2 * i}:{tb + 2 * i + 1}], s[{SC}:{SC + 1}]")
            for i in range(4):
                A(f"v_cvt_pk_bf16_f32 v{Qf(qb, s) + i}, v{tb + 2 * i}, v{tb + 2 * i + 1}")
        if qb == 2:
            for s in range(4): A(f"v_add_u32 v{12 + s}, 0x4000, v{12 + s}")
        done_q[0] = qb + 1
    def dma_list(n):
        L = []
        for _ in range(n):
            w, t = pend.pop(0)
            assert (w, t) not in (("V", 1), ("K", 3)) or done_q[0] >= 2
            so = SOFFK if w == "K" else SOFFV
            L.append(("s", f"s_pack_ll_b32_b16 m0, s{so}, {0 if w == 'K' else 1}", None))
            for j in range(4): L.append(("m", (dmak_text if w == "K" else dmav_text)(cfg, j), (w, t)))
            L.append(("s", f"s_addk_i32 s{so}, 0x4000", None))
        return L
    def Bq(qb, early, dmas):
        x = Sb(0, qb)
        mx = [f"v_max3_f32 v1, v{x}, v{x + 1}, v{x + 2}", f"v_max_f32 v1, v1, v{x + 3}"]
        for sw in ("v_permlane16_swap_b32", "v_permlane32_swap_b32"):
            mx += ["v_mov_b32 v5, v1", "-", f"{sw} v1, v5", "v_max_f32 v1, v1, v5"]
        mx += [f"v_sub_f32 v{NEGM + 4 * qb + i}, {f32bits(float(cfg.boff)):#x}, v1" for i in range(4)]
        i = 0
        for kb in range(4):
            for s in range(4):
                d = R("v", Sb(kb, qb), 4)
                st.wait_regs(R('a', K0f(kb, s), 4))
                A(f"{MF} {d}, {R('a', K0f(kb, s), 4)}, {R('v', Qf(qb, s), 4)}, {'0' if s == 0 else d}")
                if i >= cfg.mxstart:
                    for _ in range(2):
                        if mx:
                            y = mx.pop(0)
                            if y == "-": break
                            A(y)
                elif dmas:
                    while dmas and dmas[0][0] == "s": A(dmas.pop(0)[1])
                    if dmas: _, y, tg = dmas.pop(0); A(y, tag=tg)
                elif early:
                    y = early.pop(0); A(y)
                    if not y.startswith("v_exp") and early and not early[0].startswith("v_exp"): A(early.pop(0))
                i += 1
        for _, y, tg in dmas: A(y, tag=tg)
        for y in mx:
            if y != "-": A(y)
        for y in early: A(y)
    def Eq(qb):
        tmp = Stream()
        x = [Sb(kb, qb) + r for kb in range(4) for r in range(4)]
        L = [f"v_pk_add_f32 v[{x[i]}:{x[i] + 1}], v[{x[i]}:{x[i] + 1}], v[{NEGM + 4 * qb}:{NEGM + 4 * qb + 1}]" for i in range(0, 16, 2)]
        softmax0(tmp, cfg, T, qb)
        return L + [i.text for i in tmp.ins if i.tag != "autonop"]
    def sync1():
        waitv(st, ("K", 1), ("V", 0))
        A("s_barrier")
        for s in range(4): A(kr_text(1, 0, s))
    if cfg.head or cfg.lite:
        head_phase(st, cfg, T, Rq)
        return
    if cfg.ooff and cfg.oiw < 3:
        oinit1()
        if cfg.oiw == 0: oinit2()
    Rq(0)
    Aq(0, range(cfg.a0))
    waitv(st, ("K", 0))
    A("s_barrier")
    stamp(st, cfg, "B0")
    for kb in range(4):
        for s in range(4):
            A(f"ds_read_b128 {R('a', K0f(kb, s), 4)}, v{KA + s} offset:{kb * 1024}")
    Aq(0, range(cfg.a0, 4)); Bq(0, [], dma_list(cfg.sched[1]))
    for y in Eq(0): A(y)
    if cfg.pf == 3: prefetch("L_entry", "L_codeend", "v0")
    if cfg.ooff and cfg.oiw == 1: oinit2()
    Rq(1); Aq(1); Bq(1, [], dma_list(cfg.sched[2]))
    for y in Eq(1): A(y)
    if cfg.pf == 4: prefetch("L_entry", "L_codeend", "v0")
    for _, y, tg in dma_list(cfg.sched[3]): A(y, tag=tg)
    if cfg.ooff and cfg.oiw == 2: oinit2()
    Rq(2); Aq(2); Bq(2, [], dma_list(cfg.sched[4]))
    e2 = Eq(2)
    Rq(3)
    for _ in range(cfg.e2first): A(e2.pop(0))
    Aq(3); Bq(3, e2, dma_list(len(pend)))
    sync1()
    if cfg.otouch: A(f"buffer_load_dword v185, v{OS}, s[{SO}:{SO+3}], s{SQB} offen nt", tag=("T", 0))
    for y in Eq(3): A(y)
    A("s_waitcnt lgkmcnt(0)")
    if cfg.dephase:
        A("s_bitcmp1_b32 s2, 3")
        A("s_cbranch_scc0 L_nodelay")
        st.ins.append(I(f"s_sleep {cfg.dephase}", "ctl"))
        A("L_nodelay:")
    stamp(st, cfg, "mainstart")
    A("s_branch L_entry")

def head_phase(st, cfg, T, Rq):
    A = st.add
    def K0b(kb, s):
        f = kb * 4 + s
        if cfg.lite: return R('a', K0f(kb, s), 4)
        return R('a', KF + 4 * f, 4) if f < 8 else R('a', Ob(f - 8, 3), 4)
    def K1b(kb, s, late):
        f = kb * 4 + s
        if f < 8: return R('a', Ob(f, 2), 4)
        f -= 8
        return R('v', Sb(f // 2, (0 if late else 2) + f % 2), 4)
    Wr = set((v[0],) + tuple(v[2:]) for v in T.wrapped)
    def scale(qb):
        L = []
        for s in range(4):
            tb = Pf(1, 2, 0) + 8 * (s % 2) if not cfg.lite else P0 + 32 + 8 * s
            for i in range(4):
                x = Qf(qb, s) + i
                L.append(f"v_lshlrev_b32 v{tb + 2 * i}, 16, v{x}")
                L.append((f"v_and_b32 v{tb + 2 * i + 1}, s{SC - 1}, v{x}", None, (), (f"qd{qb}_{s}",) if i == 3 else ()))
            for i in range(4): L.append(f"v_pk_mul_f32 v[{tb + 2 * i}:{tb + 2 * i + 1}], v[{tb + 2 * i}:{tb + 2 * i + 1}], s[{SC}:{SC + 1}]")
            for i in range(4): L.append(f"v_cvt_pk_bf16_f32 v{Qf(qb, s) + i}, v{tb + 2 * i}, v{tb + 2 * i + 1}")
        return L
    def qk0(qb):
        L = []
        for kb in range(4):
            for s in range(4):
                d = R("v", Sb(kb, qb), 4)
                L.append(f"{MF} {d}, {K0b(kb, s)}, {R('v', Qf(qb, s), 4)}, {'0' if s == 0 else d}")
        x = Sb(0, qb); a, b = (1, 5) if qb % 2 == 0 else (6, 7)
        L += [f"v_max3_f32 v{a}, v{x}, v{x + 1}, v{x + 2}", f"v_max_f32 v{a}, v{a}, v{x + 3}"]
        for sw in ("v_permlane16_swap_b32", "v_permlane32_swap_b32"):
            L += [f"v_mov_b32 v{b}, v{a}", f"{sw} v{a}, v{b}", f"v_max_f32 v{a}, v{a}, v{b}"]
        L += [f"v_sub_f32 v{NEGM + 4 * qb + i}, 0, v{a}" for i in range(4)]
        return L
    def sm(tt, qb):
        L = []
        for kb in range(4):
            x = Sb(kb, qb)
            if tt == 0:
                if cfg.hpk: L += [f"v_pk_add_f32 v[{x + i}:{x + i + 1}], v[{x + i}:{x + i + 1}], v[{NEGM + 4 * qb}:{NEGM + 4 * qb + 1}]" for i in (0, 2)]
                else: L += [f"v_add_f32 v{x + i}, v{x + i}, v{NEGM + 4 * qb}" for i in range(4)]
            for r in range(4):
                if (tt == 0 and not cfg.lite) or ("EXP", kb, qb, r) not in Wr: L.append(sm_text("EXP", tt, kb, qb, r))
            for r in range(2):
                if (tt == 0 and not cfg.lite) or ("CVT", kb, qb, r) not in Wr: L.append(sm_text("CVT", tt, kb, qb, r))
        return L
    def qk1(qb):
        L = []
        for kb in range(4):
            for s in range(4):
                d = R("v", Sb(kb, qb), 4)
                L.append(f"{MF} {d}, {K1b(kb, s, qb >= 2)}, {R('v', Qf(qb, s), 4)}, {R('v', NEGM + 4 * qb, 4) if s == 0 else d}")
        return L
    def pv0(qb):
        L = [mfma_text(cfg, ("ONE", qb, 0), 0)]
        for db in range(8):
            d = R("a", Ob(db, qb), 4)
            for sl in range(2):
                L.append(f"{MF} {d}, {R('a', Vf(db, sl), 4)}, {R('v', Pf(0, qb, sl), 4)}, {'0' if sl == 0 else d}")
        return L
    def dma(w, t, after=()):
        so = SOFFK if w == "K" else SOFFV
        L = [f"s_pack_ll_b32_b16 m0, s{so}, {0 if w == 'K' else 1}"]
        for j in range(4): L.append(((dmak_text if w == "K" else dmav_text)(cfg, j), (w, t), ("vmq",) + tuple(after), ("vmq",)))
        L.append(f"s_addk_i32 s{so}, 0x4000")
        return L
    def run(items, name):
        out, tend = schedule(items, mfma_bias=cfg.mbias)
        sys.stderr.write(f"  head region {name}: {len(out)} instrs, model {tend} cycles\n")
        for x, tg in out:
            i = parse(x)
            n = st.lgkm_needed(i.rd | i.wr)
            if n is not None: A(f"s_waitcnt lgkmcnt({n})")
            A(x, tag=tg)
    def dq(qb):
        L = [f"s_add_u32 m0, s{SW4K}, {QSTAGE[qb]}"]
        for j in range(4):
            L.append((f"buffer_load_dwordx4 v{8 + j}, s[{SQ}:{SQ+3}], s{SQB + qb} offen offset:{1024 * j}{cfg.qpol} lds", ("Q", qb), ("vmq",), ("vmq",)))
        return L
    def lst(spec):
        L = []
        for x in spec:
            L += dma("K", 1) if x == "K" else dma("V", 0) if x == "V" else dq(int(x))
        return L
    def now(L):
        for x in L:
            if isinstance(x, str): A(x)
            else: A(x[0], tag=x[1])
    k0r = [f"ds_read_b128 {K0b(kb, s)}, v{KA + s} offset:{kb * 1024}" for kb in range(4) for s in range(4)]
    k1r = lambda late, fr: [f"ds_read_b128 {K1b(f // 4, f % 4, late)}, v{KA + f % 4} offset:{16384 + (f // 4) * 1024}" for f in fr]
    v0r = [vr_text(0, db, sl, u) for db in range(8) for sl in range(2) for u in range(2)]
    qd = lambda qb: tuple(f"qd{qb}_{s}" for s in range(4))
    rel = dict(zip(("B0", "Q1", "B1", "Q2", "Q3", "B2", "D2", "D3", "D4", "D5", "DV", "BV", "Q0"), cfg.rel + [0] * 5))
    def dep(L, rd=(), wr=(), rl_=0):
        out = []
        for x in L:
            if isinstance(x, str): x = (x, None, (), ())
            out.append((x[0], x[1], tuple(x[2]) + tuple(rd), tuple(x[3]) + tuple(wr), rl_))
        return out
    def rq(qb):
        qoff = QSTAGE[qb] - QSTAGE[0] - (16384 if qb == 3 else 0)
        L = [(f"@W Q{qb}", None, (f"iss_Q{qb}",), (f"q{qb}",), rel.get(f"Q{qb}", 0))]
        L += dep([f"ds_read_b128 {R('v', Qf(qb, s), 4)}, v{12 + s} offset:{qoff}" for s in range(4)], rd=(f"q{qb}",))
        if qb == 2: L += [f"v_add_u32 v{12 + s}, 0x4000, v{12 + s}" for s in range(4)]
        return L
    def bar(name, tiles, rd=()):
        return [(f"@B {tiles}", None, tuple(f"iss_{x}" for x in tiles.split(",")) + tuple(rd), (name,), rel[name])]
    def iss(L, name, r, after=()):
        L = dep(L, rl_=r)
        L = [(x[0], x[1], x[2] + (tuple(after) if x[1] else ()), x[3] + ((f"iss_{name}",) if x[1] else ()), x[4]) for x in L]
        return L
    xk = [f"v_xor_b32 v{KA + s}, s{SX8000}, v{KA + s}" for s in range(4)]
    toks = []
    def tok(L):
        out = []
        for x in L:
            toks.append(f"tok{len(toks)}"); out.append((x[0], x[1], x[2], x[3] + (toks[-1],), x[4]))
        return out
    P = []
    if cfg.b0first: P += bar("B0", "K0") + rq(0) + tok(dep(k0r, rd=("B0",)))
    else: P += rq(0) + bar("B0", "K0") + tok(dep(k0r, rd=("B0",)))
    late = [x for x in cfg.hlate]
    for x in late:
        if x == "V": P += iss(dma("V", 0), "V0", rel["DV"], after=("q0",))
        else: P += iss(dq(int(x)), f"Q{x}", rel[f"D{x}"], after=("q0",))
    P += scale(0) + qk0(0) + sm(0, 0) + rq(1) + scale(1) + qk0(1)
    if "V" in late:
        P += bar("B1", "K1") + tok(dep(k1r(False, range(16)), rd=("B1",)))
        P += bar("BV", "V0") + tok(dep(v0r, rd=("BV",)))
    else:
        P += bar("B1", "K1,V0") + tok(dep(k1r(False, range(16)) + v0r, rd=("B1",)))
    P += sm(0, 1) + qk1(0) + qk1(1) + pv0(0) + sm(1, 0) + pv0(1) + sm(1, 1) + tok(dep(k1r(True, range(8, 16)), rd=("B1",)))
    P += iss(dma("V", 1), "V1", rel["D4"], after=qd(1)) + iss(dma("K", 2), "K2", rel["D4"])
    P += rq(2) + scale(2) + qk0(2) + rq(3) + xk
    P += iss(dma("V", 2), "V2", rel["D5"], after=qd(2)) + iss(dma("K", 3), "K3", rel["D5"], after=qd(0))
    P += sm(0, 2) + scale(3) + qk0(3) + qk1(2) + sm(0, 3) + qk1(3) + sm(1, 2) + pv0(2)
    P += bar("B2", "K2,V1", rd=tuple(toks))
    P += dep([kr_text(2, 0, s) for s in range(4)], rd=("B2",))
    P += sm(1, 3) + pv0(3)
    P += [("@E", None, tuple(f"a{KF + i}" for i in range(16)) + tuple(f"v{Sb(3, 3) + i}" for i in range(4)), (), 0)]
    if cfg.lite:
        toks.clear()
        P = rq(0) + bar("B0", "K0") + tok(dep(k0r, rd=("B0",)))
        P += iss(dma("K", 1), "K1", rel["D2"], after=("q0",)) + iss(dma("V", 0), "V0", rel["D3"])
        for qb in range(4):
            if qb: P += rq(qb)
            P += scale(qb) + qk0(qb) + sm(0, qb)
            if qb == 1: P += iss(dma("V", 1), "V1", rel["D4"], after=qd(1)) + iss(dma("K", 2), "K2", rel["D5"])
        P += bar("B1", "K1,V0", rd=tuple(toks))
        P += dep([kr_text(1, 0, s) for s in range(4)], rd=("B1",))
        P += [("@E", None, tuple(f"a{KF + i}" for i in range(16)) + tuple(f"v{Sb(3, 3) + i}" for i in range(4)), (), 0)]
    out, tend = schedule(P, tries=cfg.tries)
    sys.stderr.write(f"  head: {len(out)} instrs, model {tend} cycles\n")
    for x, tg in out:
        if x == "@E": continue
        if x.startswith("@"):
            tiles = [(y[0], int(y[1:])) for y in x.split()[1].split(",")]
            waitv(st, *tiles)
            if x.startswith("@B"):
                if "K2" in x or (cfg.lite and "K1" in x):
                    pend_ = set(r for y in k0r + k1r(True, range(16)) + k1r(False, range(16)) + v0r for r in parse(y).wr)
                    n = st.lgkm_needed(pend_)
                    if n is not None: A(f"s_waitcnt lgkmcnt({n})")
                A("s_barrier")
            stamp(st, cfg, x.split()[1].replace(",", ""))
            continue
        i = parse(x)
        n = st.lgkm_needed(i.rd | i.wr)
        if n is not None: A(f"s_waitcnt lgkmcnt({n})")
        A(x, tag=tg)
    A("s_waitcnt lgkmcnt(0)")
    stamp(st, cfg, "mainstart")
    if cfg.enop >= 0: A(f"s_nop {cfg.enop}")
    A("s_branch L_odd" if cfg.head else "s_branch L_entry")

IDN = 186
def rl(cfg, qb, i): return NEGM + 4 * qb + (i if cfg.ap else 0)

def tail(st, cfg, T):
    A = st.add
    t = NT - 1
    if cfg.twice:
        A("s_mov_b32 s35, 2")
        A("L_twice:")
        A("s_waitcnt vmcnt(0)")
        A("s_barrier")
    stamp(st, cfg, "loopend")
    vr = [vr_text(t, db, sl, u) for db in range(8) for sl in range(2) for u in range(2)]
    wr = [sm_text(v[0], t, v[2], v[3], v[4]) for v in T.wrapped]
    def pv(qb):
        return [mfma_text(cfg, ("PV", db, qb, sl), t) for db in range(8) for sl in ((0, 1) if db % 2 == 0 else (1, 0))]
    def emit(x):
        i = parse(x)
        if i.kind == "vst" and (cfg.nostore == 1):
            n = st.lgkm_needed(i.rd)
            if n is not None: A(f"s_waitcnt lgkmcnt({n})")
            return
        n = st.lgkm_needed(i.rd | i.wr)
        if n is not None: A(f"s_waitcnt lgkmcnt({n})")
        A(x)
    def lpre(qb):
        L = []
        if qb in cfg.ones:
            for i in range(4 if cfg.ap else 1): L.append(f"v_accvgpr_read_b32 v{rl(cfg, qb, i)}, a{L0 + 4 * qb + i}")
            x = rl(cfg, qb, 0)
            if cfg.smf:
                L.append(f"v_accvgpr_read_b32 v{x + 1}, a{L0 + 4 * qb + 1}")
                L.append(f"v_add_f32 v{x}, v{x}, v{x + 1}")
            if cfg.zrow:
                for sw in ("v_permlane16_swap_b32", "v_permlane32_swap_b32"):
                    L.append(f"v_mov_b32 v{x + 1}, v{x}")
                    L.append(f"{sw} v{x}, v{x + 1}")
                    L.append(f"v_add_f32 v{x}, v{x}, v{x + 1}")
        else:
            assert not cfg.ap
            x = rl(cfg, qb, 0)
            L.append(f"v_add_f32 v{x}, v{LS + 2 * qb}, v{LS + 2 * qb + 1}")
            for sw in ("v_permlane16_swap_b32", "v_permlane32_swap_b32"):
                L.append(f"v_mov_b32 v{x + 1}, v{x}")
                L.append(f"{sw} v{x}, v{x + 1}")
                L.append(f"v_add_f32 v{x}, v{x}, v{x + 1}")
        for i in range(4 if cfg.ap else 1): L.append(f"v_rcp_f32 v{rl(cfg, qb, i)}, v{rl(cfg, qb, i)}")
        return L
    def epi(qb, packed, last):
        L = []
        tb = S0 + (qb % 2) * 32
        pk = P0 + ((t + 1) % 2) * 32 + (qb % 2) * 16
        def fin(db):
            x = tb + 4 * db
            return [f"v_cvt_pk_bf16_f32 v{pk + 2 * db + i}, v{x + 2 * i}, v{x + 2 * i + 1}" for i in range(2)] + \
                   [f"ds_write_b64 v{VA + db}, v[{pk + 2 * db}:{pk + 2 * db + 1}] offset:{qb * 16384}"]
        for db in range(8):
            x = tb + 4 * db
            for i in range(4): L.append(f"v_accvgpr_read_b32 v{x + i}, a{Ob(db, qb) + i}")
            if packed:
                for i in (0, 2):
                    r = rl(cfg, qb, i)
                    L.append(f"v_pk_mul_f32 v[{x + i}:{x + i + 1}], v[{x + i}:{x + i + 1}], v[{r}:{r + 1}]" + ("" if cfg.ap else " op_sel_hi:[1,0]"))
            else:
                for i in range(4): L.append(f"v_mul_f32 v{x + i}, v{x + i}, v{rl(cfg, qb, i)}")
            if cfg.ap:
                for i in range(2): L.append(f"v_cvt_pk_bf16_f32 v{pk + 2 * db + i}, v{x + 2 * i}, v{x + 2 * i + 1}")
                if db > 0: L += fin(db - 1)
                L.append(f"v_mfma_f32_16x16x16_bf16 v[{x}:{x + 3}], v[{pk + 2 * db}:{pk + 2 * db + 1}], v[{IDN}:{IDN + 1}], 0")
            else:
                L += fin(db)
        if cfg.ap: L += fin(7)
        if last and packed and cfg.wgrp > 1:
            W = [x for x in L if x.startswith("ds_write")]; V = [x for x in L if not x.startswith("ds_write")]
            per = len(V) // 8; L = []
            for k in range(0, 8, cfg.wgrp): L += V[k * per:(k + cfg.wgrp) * per] + W[k:k + cfg.wgrp]
        for n in range(4): L.append(f"ds_read_b128 v[{tb + 4 * n}:{tb + 4 * n + 3}], v{KA + n} offset:{qb * 16384 + n * 1024}")
        St = [f"buffer_store_dwordx4 v[{tb + 4 * n}:{tb + 4 * n + 3}], v{OS}, s[{SO}:{SO+3}], s{SQB + qb} offen offset:{n * 1024}{cfg.opol}" for n in range(4)]
        return L, St
    addr = [f"v_xor_b32 v{VA + db}, {32 * db}, v{OW}" for db in range(8)] + [f"v_xor_b32 v{KA + n}, {64 * n}, v{OR_}" for n in range(4)]
    for _ in range(8): A(vr.pop(0))
    for x in wr: A(x)
    fill = []
    mf = [mfma_text(cfg, ("ONE", qb, sl), t) for qb in cfg.ones for sl in range(1 if cfg.smf else 2)] + pv(0)
    n1 = len(mf) - 16
    rest = lpre(0) + addr + ["s_waitcnt vmcnt(0)"]
    for i, m in enumerate(mf):
        emit(m)
        if vr:
            A(vr.pop(0))
            if vr and i >= n1 - 2: A(vr.pop(0))
        else:
            for _ in range(2):
                if rest: emit(rest.pop(0))
    prev = []
    for qb in range(4):
        L, St = epi(qb, (qb == 3 or cfg.pkt) and not cfg.ap, qb == 3)
        L = rest + L; rest = []
        for n, x in enumerate(prev): L.insert(cfg.stdelay + n * (cfg.ststep + 1), x)
        prev = St
        if qb < 3:
            L = L[:-7] + lpre(qb + 1) + L[-7:]
            mf = pv(qb + 1)
            ismem = lambda x: x.startswith("ds_") or x.startswith("buffer_")
            if cfg.pkt:
                stores = [x for x in L if x.startswith("buffer_")]
                L2 = []; k = 0; nw = 0
                for x in L:
                    if x.startswith("buffer_"): continue
                    if x.startswith("ds_write"):
                        L2 += [mf[k], x, mf[k + 1]]; k += 2; nw += 1
                        if stores and nw >= 2 and nw % 2 == 0 or (stores and nw == 7): L2.append(stores.pop(0))
                    else: L2.append(x)
                assert not stores and k == 16
                L = L2; mf = []
            pos = [i for i, x in enumerate(L) if ismem(x) and not (i and (ismem(L[i - 1]) or "mfma" in L[i - 1]))]
            while len(pos) < 16 and mf:
                e = [0] + pos
                runs = [(e[k + 1] - e[k], k) for k in range(len(pos))]
                ln, k = max(runs)
                pos.append(e[k] + (ln + 1) // 2 if k else 0); pos = sorted(set(pos))
            for n, m in enumerate(mf): L.insert(pos[n] + n, m)
        stamp(st, cfg, f"stg{qb}")
        for x in L: emit(x)
    stamp(st, cfg, "stg4")
    for x in prev: emit(x)

WA = LS
RA = [182, 183, 190, 191]
def tail2(st, cfg, T):
    A = st.add
    t = NT - 1
    assert cfg.smf and not cfg.ap and len(cfg.ones) == 4
    stamp(st, cfg, "loopend")
    vr = [vr_text(t, db, sl, u) for db in range(8) for sl in range(2) for u in range(2)]
    wr = [sm_text(v[0], t, v[2], v[3], v[4]) for v in T.wrapped]
    assert all(v[3] >= 2 for v in T.wrapped)
    def emit(x):
        i = parse(x)
        n = st.lgkm_needed(i.rd | i.wr)
        if n is not None: A(f"s_waitcnt lgkmcnt({n})")
        if i.kind == "vst" and cfg.nostore: return
        A(x)
    def pv(n):
        qb, db = n // 8, n % 8
        return [mfma_text(cfg, ("PV", db, qb, sl), t) for sl in ((0, 1) if db % 2 == 0 else (1, 0))]
    def one(qb): return mfma_text(cfg, ("ONE", qb, 0), t)
    def lpre(qb):
        x = rl(cfg, qb, 0)
        L = [f"v_accvgpr_read_b32 v{x}, a{L0 + 4 * qb}", f"v_accvgpr_read_b32 v{x + 1}, a{L0 + 4 * qb + 1}", f"v_add_f32 v{x}, v{x}, v{x + 1}"]
        if cfg.zrow:
            for sw in ("v_permlane16_swap_b32", "v_permlane32_swap_b32"):
                L += [f"v_mov_b32 v{x + 1}, v{x}", f"{sw} v{x}, v{x + 1}", f"v_add_f32 v{x}, v{x}, v{x + 1}"]
        return L + [f"v_rcp_f32 v{x}, v{x}"]
    LAG = cfg.tlag
    for _ in range(4): A(vr.pop(0))
    emit(one(0))
    for _ in range(4): A(vr.pop(0))
    emit(one(1))
    for _ in range(4): A(vr.pop(0))
    A("s_waitcnt vmcnt(0)")
    for x in wr: A(x)
    for x in lpre(0): emit(x)
    for n in range(LAG):
        m = pv(n)
        emit(m[0]); A(vr.pop(0)); A(vr.pop(0)); emit(m[1]); A(vr.pop(0)); A(vr.pop(0))
    emit(one(2));
    for x in lpre(1): emit(x)
    emit(one(3))
    stores = []
    for n in range(32):
        qb, db = n // 8, n % 8
        tb = S0 + (qb % 2) * 32
        pk = P0 + ((t + 1) % 2) * 32 + (qb % 2) * 16
        x = tb + 4 * db; r = rl(cfg, qb, 0)
        for i in range(4): emit(f"v_accvgpr_read_b32 v{x + i}, a{Ob(db, qb) + i}")
        if db == 4 and qb in (1, 2):
            for y in lpre(qb + 1): emit(y)
        if cfg.fallback and cfg.early and n == 21:
            rr = [rl(cfg, q, 0) for q in range(4)]
            A(f"s_mov_b32 s36, {f32bits(2.0 ** (-40 - cfg.boff)):#x}")
            A(f"v_min_f32 v3, v{rr[0]}, v{rr[1]}")
            A(f"s_lshl_b32 s38, s{SW}, 2")
            A(f"v_min3_f32 v3, v3, v{rr[2]}, v{rr[3]}")
            A(f"s_add_u32 s38, s38, {FLAGS}")
            A("v_cmp_nle_f32 vcc, s36, v3")
            A(f"v_mov_b32 v2, {FLAGS}")
            A("v_mov_b32 v3, s38")
        if cfg.fallback and cfg.early and n == 22:
            A("s_cmp_lg_u64 vcc, 0")
            A("s_cselect_b32 s37, 1, 0")
            A("v_mov_b32 v1, s37")
        for i in (0, 2): emit(f"v_pk_mul_f32 v[{x + i}:{x + i + 1}], v[{x + i}:{x + i + 1}], v[{r}:{r + 1}] op_sel_hi:[1,0]")
        for i in range(2): emit(f"v_cvt_pk_bf16_f32 v{pk + 2 * db + i}, v{x + 2 * i}, v{x + 2 * i + 1}")
        if cfg.fallback and cfg.early and n == 29:
            emit("v_or_b32 v4, v4, v5")
            emit("v_or3_b32 v4, v4, v6, v7")
        if cfg.fallback and cfg.early and n == 30:
            A("v_readfirstlane_b32 s37, v4")
        m = pv(n + LAG) if n + LAG < 32 else []
        W = f"ds_write_b64 v{WA + db}, v[{pk + 2 * db}:{pk + 2 * db + 1}] offset:{qb * 16384}"
        if m: emit(m[0])
        if m or n == 31:
            if not m:
                for k in range(32 - LAG, 31): emit(f"ds_write_b64 v{WA + k % 8}, v[{pk + 2 * (k % 8)}:{pk + 2 * (k % 8) + 1}] offset:{qb * 16384}")
            emit(W)
        if m: emit(m[1])
        if cfg.fallback and cfg.early:
            if n == 22: A("ds_write_b32 v3, v1"); flagw = st.ins[-1]
            if n == 25:
                k = len(st.lgkm) - 1 - st.lgkm.index(flagw) if flagw in st.lgkm else None
                if k is not None: A(f"s_waitcnt lgkmcnt({min(k, 14)})")
                A("s_barrier")
                A("ds_read_b128 v[4:7], v2")
        for _ in range(4):
            if vr: A(vr.pop(0))
        if db == 7:
            for k in range(4): emit(f"ds_read_b128 v[{tb + 4 * k}:{tb + 4 * k + 3}], v{RA[k]} offset:{qb * 16384 + k * 1024}")
            stores = [f"buffer_store_dwordx4 v[{tb + 4 * k}:{tb + 4 * k + 3}], v{OS}, s[{SO}:{SO+3}], s{SQB + qb} offen offset:{k * 1024}{cfg.opol}" for k in range(4)]
        elif stores and db >= cfg.st0 and m: emit(stores.pop(0))
    for x in stores: emit(x)

def tail3(st, cfg, T):
    A = st.add
    t0, t1 = NT - 2, NT - 1
    assert cfg.smf and not cfg.ap and len(cfg.ones) == 4 and cfg.early
    stamp(st, cfg, "loopend")
    def V1(db, sl): return Q0 + (db * 2 + sl) * 4
    def vr0(db): return [vr_text(t0, db, sl, u) for sl in range(2) for u in range(2)]
    def vr1(db): return [f"ds_read_b64_tr_b16 {R('v', V1(db, sl) + 2 * u, 2)}, v{VA + db} offset:{(t1 % 2) * 16384 + (8 * sl + 4 * u) * 256}"
                         for sl in range(2) for u in range(2)]
    def emit(x):
        i = parse(x)
        n = st.lgkm_needed(i.rd | i.wr)
        if n is not None: A(f"s_waitcnt lgkmcnt({n})")
        if i.kind == "vst" and cfg.nostore: return
        if cfg.now and x.startswith("ds_write_b64"): return
        A(x)
    def sm1(qb):
        E, C = [], []
        for kb in range(4):
            for r in range(4): E.append(sm_text("EXP", t1, kb, qb, r))
            for r in range(2): C.append(sm_text("CVT", t1, kb, qb, r))
        return E, C
    wrE = [(0, sm_text(v[0], t0, v[2], v[3], v[4])) for v in T.wrapped if v[0] == "EXP"]
    wrC = [sm_text(v[0], t0, v[2], v[3], v[4]) for v in T.wrapped if v[0] == "CVT"]
    E0, C0 = sm1(0)
    EL = wrE + [(16 * (k // 4) + 8, x) for k, x in enumerate(E0)]
    done = set()
    CL = wrC + C0
    def cready(x):
        i = parse(x)
        return not any(parse(e).wr & i.rd for _, e in EL)
    KD = {16 * (kb - 1) + 1 + 2 * s: kr_text(t1, kb, s) for kb in range(1, 4) for s in range(4)}
    D0 = [x for db in range(8) for x in vr0(db)]
    D1 = [x for db in range(8) for x in vr1(db)]
    lastE = None
    for g in range(64):
        A(mfma_text(cfg, T.M[g], t0))
        if g in (15, 31, 47):
            rs = set()
            for x in range(g + 1, g + 17): rs |= parse(mfma_text(cfg, T.M[x], t0)).rd
            n = st.lgkm_needed(rs)
            if n is not None: A(f"s_waitcnt lgkmcnt({n})")
        if g == 49: A("s_waitcnt vmcnt(0)")
        if g == 50: A("s_barrier")
        if g in KD: A(KD[g])
        elif EL and EL[0][0] <= g and g != 50:
            A(EL.pop(0)[1]); continue
        elif g >= 52: A(D1.pop(0))
        elif g != 50: A(D0.pop(0))
        if CL and cready(CL[0]) and g != 50: A(CL.pop(0))
    assert not EL
    for x in CL: A(x)
    stamp(st, cfg, "f1")
    def need(db):
        L = []
        for D in (D0, D1):
            while D and f"v{VA + db} " in D[0]: L.append(D.pop(0))
        return L
    def pv(n):
        qb, db = n // 8, n % 8
        d = R("a", Ob(db, qb), 4)
        a = [mfma_text(cfg, ("PV", db, qb, sl), t0) for sl in range(2)]
        b = [f"{MF} {d}, {R('v', V1(db, sl), 4)}, {R('v', Pf(t1 % 2, qb, sl), 4)}, {d}" for sl in range(2)]
        L = a + b
        return L if db % 2 == 0 else L[::-1]
    def ones(qb): return [mfma_text(cfg, ("ONE", qb, 0), t) for t in (t0, t1)]
    def lpre(qb):
        x = rl(cfg, qb, 0)
        return [f"v_accvgpr_read_b32 v{x}, a{L0 + 4 * qb}", f"v_accvgpr_read_b32 v{x + 1}, a{L0 + 4 * qb + 1}",
                f"v_add_f32 v{x}, v{x}, v{x + 1}", f"v_rcp_f32 v{x}, v{x}"] + \
               ([f"v_mul_f32 v{x + 1}, s{SNC}, v{x}"] if cfg.ooff else [])
    XT = lambda n: 4 + 4 * (n % 2)
    PT = lambda n: 12 + 2 * (n % 2)
    def W(n): return f"ds_write_b64 v{WA + n % 8}, v[{PT(n)}:{PT(n) + 1}] offset:{(n // 8) * 16384}"
    def body(n, plain):
        qb, db = n // 8, n % 8
        x = XT(n); r = rl(cfg, qb, 0)
        return ([f"v_accvgpr_read_b32 v{x + i}, a{Ob(db, qb) + i}" for i in range(4)],
                (([f"v_fma_f32 v{x + i}, v{x + i}, v{r}, v{r + 1}" for i in range(4)] if plain else
                  [f"v_pk_fma_f32 v[{x + i}:{x + i + 1}], v[{x + i}:{x + i + 1}], v[{r}:{r + 1}], v[{r}:{r + 1}] op_sel:[0,0,1] op_sel_hi:[1,0,1]" for i in (0, 2)]) if cfg.ooff else
                 ([f"v_mul_f32 v{x + i}, v{x + i}, v{r}" for i in range(4)] if plain else
                  [f"v_pk_mul_f32 v[{x + i}:{x + i + 1}], v[{x + i}:{x + i + 1}], v[{r}:{r + 1}] op_sel_hi:[1,0]" for i in (0, 2)])) +
                [f"v_cvt_pk_bf16_f32 v{PT(n) + i}, v{x + 2 * i}, v{x + 2 * i + 1}" for i in range(2)])
    def Rd(qb): return [f"ds_read_b128 v[{Sb(k, qb)}:{Sb(k, qb) + 3}], v{RA[k]} offset:{qb * 16384 + k * 1024}" for k in range(4)]
    def St(qb): return [f"buffer_store_dwordx4 v[{Sb(k, qb)}:{Sb(k, qb) + 3}], v{OS}, s[{SO}:{SO+3}], s{SQB + qb} offen offset:{k * 1024}{cfg.opol}" for k in range(4)]
    o = ones(0)
    pre = need(0) + need(1) + need(2)
    emit(o[0])
    for x in pre[:2]: A(x)
    emit(o[1])
    for x in pre[2:]: A(x)
    stores = []; E, C = [], []
    for q in (1, 2, 3):
        e, c = sm1(q); E += e; C += c
    onesq = 1; lq = []
    WL = 2 + cfg.deep
    pend_cvt = []
    for n in range(31 + WL):
        qb, db = n // 8, n % 8
        m = pv(n) if n < 32 else [None] * 4
        if n < 32: assert qb < onesq, "softmax of this q block not finished"
        nd = need(db + 3) if qb == 0 and db + 3 < 8 else []
        def M(k):
            if m[k]: emit(m[k])
        def X(cnt):
            for _ in range(cnt):
                if E: A(E.pop(0))
        plain = (not E) and n < 32 and n > 0
        rd, rest = body(n - 1, plain) if 0 < n <= 32 else ([], [])
        if cfg.ooff and cfg.fallback and 0 < n <= 32 and (n - 1) % 8 < 2:
            x = XT(n - 1); q_ = (n - 1) // 8; r_ = rl(cfg, q_, 0)
            if (n - 1) % 8 == 0:
                rest += [f"v_max3_f32 v{r_ + 2}, |v{x}|, |v{x + 1}|, |v{x + 2}|", f"v_max_f32_e64 v{r_ + 2}, v{r_ + 2}, |v{x + 3}|"]
            else:
                rest += [f"v_max3_f32 v{r_ + 2}, v{r_ + 2}, |v{x}|, |v{x + 1}|", f"v_max3_f32 v{r_ + 2}, v{r_ + 2}, |v{x + 2}|, |v{x + 3}|",
                         f"v_fma_f32 v{r_ + 2}, v{r_ + 2}, s{S256}, v{r_ + 1}"]
        if cfg.deep:
            mul, cv = rest[:-2], rest[-2:]
            rest = pend_cvt + mul; pend_cvt = cv
        M(0)
        if n >= WL: emit(W(n - WL))
        if n >= WL and (n - WL) % 8 == 7:
            for x in Rd(qb - 1): emit(x)
            stores = St(qb - 1)
        elif stores and db >= cfg.st3 + cfg.deep: emit(stores.pop(0))
        M(1)
        for x in nd[:4]: A(x)
        if plain:
            emit(rd.pop(0)); emit(rd.pop(0))
        X(1)
        M(2)
        for x in nd[4:]: A(x)
        if plain:
            emit(rd.pop(0)); emit(rd.pop(0))
        X(1)
        M(3)
        if cfg.fallback and n == 27: A("ds_write_b32 v3, v1"); flagw = st.ins[-1]
        if cfg.fallback and n == 29:
            if flagw in st.lgkm: A(f"s_waitcnt lgkmcnt({min(14, len(st.lgkm) - 1 - st.lgkm.index(flagw))})")
            A("s_barrier")
            A(f"ds_read_b128 v[{KA}:{KA + 3}], v2")
        if n == 0:
            X(cfg.ne)
            lq = lpre(0)
        for x in rd: emit(x)
        while C and not any(parse(e).wr & parse(C[0]).rd for e in E): A(C.pop(0))
        for x in lq: emit(x)
        lq = []
        if cfg.fallback and n == 26:
            rr = [rl(cfg, q, 0) for q in range(4)]
            A(f"s_mov_b32 s36, {f32bits(2.0 ** (-40 - cfg.boff)):#x}")
            A(f"v_min_f32 v3, v{rr[0]}, v{rr[1]}")
            A(f"s_lshl_b32 s38, s{SW}, 2")
            A(f"v_min3_f32 v3, v3, v{rr[2]}, v{rr[3]}")
            A(f"s_add_u32 s38, s38, {FLAGS}")
            A("v_cmp_nle_f32 vcc, s36, v3")
            A(f"v_mov_b32 v2, {FLAGS}")
            A("v_mov_b32 v3, s38")
        if onesq < 4 and len(C) <= 8 * (3 - onesq):
            o = ones(onesq)
            pkk = [x for x in rest if x.startswith("v_pk_")]; oth = [x for x in rest if not x.startswith("v_pk_")]
            for x in pkk + oth[:-2]: emit(x)
            emit(o[0]); emit(oth[-2]); emit(o[1]); emit(oth[-1])
            lq = lpre(onesq); onesq += 1
        else:
            for x in rest: emit(x)
        if cfg.fallback and n == 26:
            if cfg.ooff:
                rr = [rl(cfg, q, 0) + 2 for q in range(4)]
                A(f"v_min_f32 v1, v{rr[0]}, v{rr[1]}")
                A(f"v_min3_f32 v1, v1, v{rr[2]}, v{rr[3]}")
                A("v_cmp_nle_f32 s[52:53], 0, v1")
                A("s_or_b64 vcc, vcc, s[52:53]")
            else: A("s_cmp_lg_u64 vcc, 0")
            A("s_cselect_b32 s37, 1, 0")
            A("v_mov_b32 v1, s37")
        if cfg.fallback and n == 31:
            emit(f"v_or_b32 v{KA}, v{KA}, v{KA + 1}")
            emit(f"v_or3_b32 v{KA}, v{KA}, v{KA + 2}, v{KA + 3}")
        if cfg.fallback and n == 32: A(f"v_readfirstlane_b32 s37, v{KA}")
        if n in (8, 16, 24): stamp(st, cfg, f"b{n}")
    assert not stores and not D0 and not D1 and not pend_cvt
    emit(W(31))
    for x in Rd(3): emit(x)
    for x in St(3): emit(x)

def finish(st, cfg, T):
    A = st.add
    stamp(st, cfg, "stored")
    if cfg.twice:
        A("s_sub_u32 s35, s35, 1")
        A("s_cmp_lg_u32 s35, 0")
        A("s_cbranch_scc1 L_twice")
    if cfg.fallback and cfg.early:
        A(f"s_cmp_gt_u32 s37, s{SMODE}")
        A("s_cbranch_scc1 L_fallback")
    elif cfg.fallback:
        A(f"s_cmp_lg_u32 s{SMODE}, 0")
        A("s_cbranch_scc1 L_done")
        A(f"s_mov_b32 s36, {f32bits(2.0 ** (-40 - cfg.boff)):#x}")
        rr = sorted(set(rl(cfg, qb, i) for qb in range(4) for i in range(4)))
        A(f"v_min_f32 v3, v{rr[0]}, v{rr[1]}")
        for i in range(2, len(rr), 2): A(f"v_min3_f32 v3, v3, v{rr[i]}, v{rr[i + 1]}")
        A("v_cmp_nle_f32 vcc, s36, v3")
        A("s_cmp_lg_u64 vcc, 0")
        A("s_cselect_b32 s37, 1, 0")
        A("v_mov_b32 v1, s37")
        A(f"s_lshl_b32 s38, s{SW}, 2")
        A(f"s_add_u32 s38, s38, {FLAGS}")
        A("v_mov_b32 v3, s38")
        A("ds_write_b32 v3, v1")
        A("s_waitcnt lgkmcnt(0)")
        A("s_barrier")
        A(f"v_mov_b32 v3, {FLAGS}")
        A("ds_read_b128 v[4:7], v3")
        A("s_waitcnt lgkmcnt(0)")
        A("v_or_b32 v4, v4, v5")
        A("v_or3_b32 v4, v4, v6, v7")
        A("v_readfirstlane_b32 s37, v4")
        A("s_cmp_lg_u32 s37, 0")
        A("s_cbranch_scc1 L_fallback")
        A("L_done:")
    if cfg.stamps:
        A("s_waitcnt vmcnt(0)")
        stamp(st, cfg, "drained")
        if cfg.spin:
            n1_, n2_, K_ = cfg.spin.split(",")
            nm = st.stampnames
            A(f"s_sub_u32 s36, s{65 + 2 * nm.index(n2_)}, s{65 + 2 * nm.index(n1_)}")
            A(f"s_mul_i32 s36, s36, {K_}")
            A("s_min_u32 s36, s36, 50000")
            A("L_spin:")
            A("s_memrealtime s[62:63]")
            A("s_waitcnt lgkmcnt(0)")
            A(f"s_sub_u32 s37, s62, s{65 + 2 * nm.index('drained')}")
            A("s_cmp_lt_u32 s37, s36")
            A("s_cbranch_scc1 L_spin")
            A("s_endpgm")
        if cfg.dbg:
            nm = st.stampnames
            def sr(n, w): return 64 + 2 * nm.index(n) + w
            A("s_mov_b32 s8, s56"); A("s_mov_b32 s9, s57"); A("s_mov_b32 s10, 0x100"); A("s_mov_b32 s11, 0x20000")
            A(f"s_not_b32 s36, s{sr('start', 1)}")
            A(f"s_mov_b32 s37, s{sr('drained', 1)}")
            A(f"s_sub_u32 s38, s{sr('loopend', 0)}, s{sr('mainstart', 0)}")
            A(f"s_sub_u32 s39, s{sr('loopend', 1)}, s{sr('mainstart', 1)}")
            A(f"s_not_b32 s40, s39")
            A(f"s_mov_b32 s41, s{sr('mainstart', 1)}")
            A(f"s_mov_b32 s42, s{sr('loopend', 1)}")
            A("s_mov_b64 exec, 1")
            A("v_mov_b32 v1, 0")
            for k in range(7):
                A(f"v_mov_b32 v4, s{36 + k}")
                st.ins.append(I(f"buffer_atomic_umax v4, v1, s[8:11], 0 offen offset:{4 * k}", "ctl"))
                A("s_waitcnt vmcnt(0)")
            A("s_endpgm")
        A("s_mov_b32 s8, s56"); A("s_mov_b32 s9, s57"); A("s_mov_b32 s10, 0x100000"); A("s_mov_b32 s11, 0x20000")
        A("s_lshl_b32 s3, s2, 2"); A(f"s_add_u32 s3, s3, s{SW}"); A("s_lshl_b32 s3, s3, 7")
        A("v_mov_b32 v1, s3")
        for k in range((len(st.stampnames) + 1) // 2):
            for i in range(4): A(f"v_mov_b32 v{4 + i}, s{64 + 4 * k + i}")
            A(f"buffer_store_dwordx4 v[4:7], v1, s[8:11], 0 offen offset:{16 * k}")
            A("s_nop 1")
    if cfg.itstamp:
        A("s_lshl_b32 s3, s3, 1")
        A("s_add_u32 s3, s3, 0x40000")
        A("v_and_b32 v1, 63, v0")
        A("v_lshl_add_u32 v1, v1, 2, s3")
        A("buffer_store_dword v188, v1, s[8:11], 0 offen")
    A("L_end:")
    A("s_endpgm")
    A("L_codeend:")

def fallback(cfg, T):
    st = Stream(); A = st.add
    A("L_fallback:")
    A("s_waitcnt vmcnt(0) lgkmcnt(0)")
    A(f"s_mov_b32 s{SMODE}, 1")
    A("v_and_b32 v2, 63, v0")
    A("v_and_b32 v3, 15, v2")
    A("v_lshrrev_b32 v4, 4, v2")
    A("v_lshrrev_b32 v5, 2, v3")
    A("v_lshlrev_b32 v5, 12, v5")
    A("v_and_b32 v6, 3, v3")
    A("v_lshl_add_u32 v5, v6, 8, v5")
    for s in range(4):
        A(f"v_add_u32 v6, {4 * s}, v4")
        A("v_xor_b32 v6, v6, v3")
        A(f"v_lshl_add_u32 v{KA + s}, v6, 4, v5")
    A("v_lshrrev_b32 v5, 2, v3")
    A("v_and_b32 v6, 1, v4")
    A("v_lshl_add_u32 v6, v6, 2, v5")
    A("v_lshl_add_u32 v5, v4, 4, v5")
    A("v_lshlrev_b32 v5, 8, v5")
    A("v_and_b32 v7, 3, v3")
    A("v_lshl_add_u32 v5, v7, 3, v5")
    A(f"v_add_u32 v5, {VBASE}, v5")
    for db in range(8):
        A(f"v_xor_b32 v7, {db}, v6")
        A(f"v_lshl_add_u32 v{VA + db}, v7, 5, v5")
    if cfg.pkt == 3:
        A("v_lshlrev_b32 v5, 8, v3")
        A("v_lshl_add_u32 v5, v4, 4, v5")
        for qb in range(4):
            for s in range(4):
                A(f"buffer_load_dwordx4 {R('v', Qf(qb, s), 4)}, v5, s[{SQ}:{SQ+3}], s{SQB + qb} offen offset:{64 * s}")
        A("s_waitcnt vmcnt(0)")
        for x in range(Q0, Q0 + 64):
            A(f"v_lshlrev_b32 v6, 16, v{x}")
            A(f"v_and_b32 v7, s{SC - 1}, v{x}")
            A(f"v_pk_mul_f32 v[6:7], v[6:7], s[{SC}:{SC + 1}]")
            A(f"v_cvt_pk_bf16_f32 v{x}, v6, v7")
    for qb in range(4): A(f"v_mov_b32 v{8 + qb}, 0xff800000")
    A(f"s_mov_b32 s{SOFFK}, s{SW4K}")
    A(f"s_mov_b32 s{SCNT}, {NT}")
    A("L_fb1:")
    A("s_barrier")
    A(f"s_mov_b32 m0, s{SW4K}")
    for j in range(4): A(dmak_text(cfg, j))
    A(f"s_addk_i32 s{SOFFK}, 0x4000")
    A("s_waitcnt vmcnt(0)")
    A("s_barrier")
    for kb in range(4):
        for s in range(4):
            A(f"ds_read_b128 {R('a', K0f(kb, s), 4)}, v{KA + s} offset:{kb * 1024}")
    A("s_waitcnt lgkmcnt(0)")
    for qb in range(4):
        for kb in range(4):
            for s in range(4):
                d = R("v", Sb(kb, qb), 4)
                A(f"{MF} {d}, {R('a', K0f(kb, s), 4)}, {R('v', Qf(qb, s), 4)}, {'0' if s == 0 else d}")
    A("s_nop 7")
    for qb in range(4):
        x = [Sb(kb, qb) + r for kb in range(4) for r in range(4)]
        for i in range(0, 16, 2): A(f"v_max3_f32 v{8 + qb}, v{8 + qb}, v{x[i]}, v{x[i + 1]}")
    A(f"s_sub_u32 s{SCNT}, s{SCNT}, 1")
    A(f"s_cmp_lg_u32 s{SCNT}, 0")
    A("s_cbranch_scc1 L_fb1")
    for qb in range(4):
        xlane(st, "v_max_f32", 8 + qb, 5)
        for i in range(4): A(f"v_sub_f32 v{NEGM + 4 * qb + i}, 0, v{8 + qb}")
    init_acc(st, cfg, True)
    A(f"s_mov_b32 s{SOFFK}, s{SW4K}")
    A(f"s_mov_b32 s{SOFFV}, s{SW4K}")
    A(f"s_mov_b32 s{SCNT}, {cfg.trips}")
    A("s_barrier")
    for w, t in (("K", 0), ("K", 1), ("V", 0), ("K", 2), ("V", 1), ("K", 3))[:cfg.kdepth + 2]: dma_tile(st, cfg, w, t)
    A("s_waitcnt vmcnt(0)")
    A("s_barrier")
    for kb in range(4):
        for s in range(4):
            A(f"ds_read_b128 {R('a', K0f(kb, s), 4)}, v{KA + s} offset:{kb * 1024}")
    A("s_waitcnt lgkmcnt(0)")
    for qb in range(4):
        for kb in range(4):
            for s in range(4):
                d = R("v", Sb(kb, qb), 4)
                c = R("v", NEGM + 4 * qb, 4) if s == 0 else d
                A(f"{MF} {d}, {R('a', K0f(kb, s), 4)}, {R('v', Qf(qb, s), 4)}, {c}")
    A("s_nop 7")
    for qb in range(4): softmax0(st, cfg, T, qb)
    A("s_barrier")
    for s in range(4): A(kr_text(1, 0, s))
    A("s_waitcnt lgkmcnt(0)")
    A("s_nop 7")
    A("s_branch L_entry")
    return st

def flat(cfg, T, forced):
    st = Stream(); rec = {}; marks = {}
    prologue(st, cfg, T)
    NL = cfg.NL
    for t in range(cfg.head, NL):
        marks[t] = len(st.ins)
        emit_iter(st, cfg, T, t, forced, rec)
    marks[NL] = len(st.ins)
    {3: tail3, 2: tail2}.get(cfg.pkt, tail)(st, cfg, T)
    finish(st, cfg, T)
    return st, rec, marks

def generate(cfg):
    cfg.NL = NT - 2 if cfg.pkt == 3 else NT - 1
    cfg.bpar = 1 if cfg.pkt == 3 else 0
    cfg.trips = 15 if cfg.pkt == 3 else 16
    vers = []
    gbase = list(cfg.gpos)
    for v in range(cfg.wv):
        cfg.gpos = [g + cfg.wstep * v for g in gbase]
        T = build_template(cfg)
        st, rec, marks = flat(cfg, T, {})
        forced = {}; cls = {}
        for (t, g), n in rec.items(): cls.setdefault((t % 2, g), []).append(n)
        for (t, g), n in rec.items():
            x = [y for y in cls[(t % 2, g)] if y is not None]
            forced[(t, g)] = min(x) if x else None
        st, rec, marks = flat(cfg, T, forced)
        its = {t: st.text(marks[t], marks[t + 1]) for t in range(cfg.head, cfg.NL)}
        for t in range(2 + cfg.head, cfg.NL): assert its[t] == its[t - 2], f"loop not periodic at {t}"
        its[0] = its[2]
        nl = [x for x in st.nops_inserted if marks[1] <= x[0] < marks[3]]
        sys.stderr.write(f"G={T.G} loop body instrs={marks[3]-marks[1]} nops in loop: {nl}; total auto nops {len(st.nops_inserted)}\n")
        vers.append((its, st.text(0, marks[cfg.head]), st.text(marks[cfg.NL]), sorted(T.wrapped)))
    cfg.gpos = gbase
    for x in vers[1:]: assert x[1:] == vers[0][1:], "versions differ outside the loop"
    out = []
    out.append(open("standalone__gqa_softmax__prompt.s.ref").read().split("; Override")[0].rstrip())
    if cfg.stamps: out.append("; STAMPS " + " ".join(st.stampnames))
    out.append(f"; @launch grid=(256,1,1) block=(256,1,1) lds={cfg.lds}")
    out.append(DOC)
    out.append('.amdgcn_target "amdgcn-amd-amdhsa--gfx950"\n.text')
    out.append(f".globl {KNAME}\n.p2align 8\n.type {KNAME},@function\n{KNAME}:")
    out.append(st.text(0, marks[cfg.head]))
    if cfg.wv == 1:
        out.append(".p2align 6")
        out.append("L_loop:")
        if cfg.bpar == 0: out.append(its[1])
        out.append("L_entry:")
        out.append(its[0])
        if cfg.bpar == 1: out.append("L_odd:\n" + its[1])
    else:
        assert cfg.bpar == 1 and not cfg.head and out[-1].rstrip().endswith("s_branch L_entry")
        out[-1] = out[-1].rstrip()[:-len("s_branch L_entry")].rstrip()
        out.append("L_entry:")
        for v in range(cfg.wv - 1):
            out.append(f"  s_cmp_eq_u32 s{SVER}, {v}\n  s_cbranch_scc1 L_loop{v}")
        out.append(f"  s_branch L_loop{cfg.wv - 1}")
        for v in range(cfg.wv):
            out.append(f".p2align 6\nL_loop{v}:")
            out.append((vers[v][0][0] + "\n" + vers[v][0][1]).replace("L_loop", f"L_loop{v}"))
            if v < cfg.wv - 1: out.append("  s_branch L_tail")
        out.append("L_tail:")
    out.append(st.text(marks[cfg.NL]))
    if cfg.fallback: out.append(fallback(cfg, T).text())
    out.append(f'''.section .rodata,"a"
.p2align 6
.amdhsa_kernel {KNAME}
  .amdhsa_next_free_vgpr 512
  .amdhsa_next_free_sgpr 102
  .amdhsa_accum_offset 256
  .amdhsa_group_segment_fixed_size 0
  .amdhsa_kernarg_size 48
  .amdhsa_user_sgpr_count 2
  .amdhsa_user_sgpr_kernarg_segment_ptr 1
  .amdhsa_system_sgpr_workgroup_id_x 1
.end_amdhsa_kernel''')
    return "\n".join(out) + "\n", T

if __name__ == "__main__":
    ap = argparse.ArgumentParser()
    ap.add_argument("-o", default="/dev/stdout")
    ap.add_argument("--ones", default="0,1,2,3")
    for n, d in (("ap", 0), ("bous", 1), ("lag", 8), ("stamps", 0), ("vstart", 9), ("vend", 200), ("show", 0), ("nobar", 0),
                 ("nodma", 0), ("pf", 0), ("qfirst", 2), ("hid", 8), ("kpos", 0), ("a0", 0), ("two", 0), ("twobit", 3), ("dephase", 0), ("wv", 1), ("wstep", 2), ("wsel", 0), ("oiw", 2), ("sperm", 0), ("ooff", 0), ("perm", 0), ("lite", 0), ("b0first", 0), ("tries", 60), ("head", 0), ("hpk", 1), ("h0", 100), ("mbias", 0), ("otouch", 0), ("wfix", 0), ("now", 0), ("deep", 0), ("ne", 2), ("st3", 3), ("early", 0), ("tlag", 2), ("st0", 1), ("pat", 0), ("pkt", 0), ("pvb", 1), ("twice", 0), ("kdepth", 4), ("wgrp", 4), ("mxstart", 7), ("e2first", 17), ("smf", 0), ("zrow", 0), ("tailgap", 12), ("gexcl", 0), ("grp", 1), ("nostore", 0), ("dbg", 0), ("itstamp", 0), ("probe", 0), ("qmap", 0), ("stdelay", 20), ("ststep", 8), ("fallback", 1)):
        ap.add_argument("--" + n, type=int, default=d)
    ap.add_argument("--gpos", default="11,27,43,57,71,85,99,109")
    ap.add_argument("--only", default="")
    ap.add_argument("--boff", type=float, default=0)
    ap.add_argument("--apl", type=int, default=0)
    ap.add_argument("--hord", default="KV23")
    ap.add_argument("--rel", default="300,700,1300,2600,3200,4200,0,600,2200,3400")
    ap.add_argument("--hlate", default="23")
    ap.add_argument("--ha", default="")
    ap.add_argument("--hb", default="")
    ap.add_argument("--skip", default="")
    ap.add_argument("--spin", default="")
    ap.add_argument("--flip", default="")
    ap.add_argument("--extra", default="")
    ap.add_argument("--empty", default="")
    ap.add_argument("--sched", default="0,1,1,3,0")
    ap.add_argument("--pol", default="")
    ap.add_argument("--qpol", default="")
    ap.add_argument("--opol", default="")
    a = ap.parse_args()
    cfg = Cfg()
    cfg.__dict__.update(vars(a))
    cfg.ones = [int(x) for x in a.ones.split(",") if x != ""]
    cfg.gpos = [int(x) for x in a.gpos.split(",")]
    cfg.extra = [int(x) for x in a.extra.split(",") if x != ""]
    cfg.rel = [int(x) for x in a.rel.split(",")]
    cfg.flip = [int(x) for x in a.flip.split(",") if x != ""]
    cfg.empty = [int(x) for x in a.empty.split(",") if x != ""]
    cfg.sched = [int(x) for x in a.sched.split(",")]
    for n in ("pol", "qpol", "opol"):
        v = getattr(cfg, n).replace("+", " ")
        setattr(cfg, n, " " + v if v else "")
    PERM[0] = cfg.perm
    cfg.lds = 131072 + 64
    for cfg.enop in (-1, 0, 1, 2, 3, 5, 7):
        try:
            txt, T = generate(cfg); break
        except AssertionError as e:
            if "periodic" not in str(e): raise
    open(a.o, "w").write(txt)
    if a.show:
        for g in range(T.G):
            sys.stderr.write(f"{g:3d} {T.typ[g]} {T.M[g]} | {T.sca[g]} | {T.mem[g]} | {T.val[g]}\n")
```
